```python
import torch

def _softmax(x, axis=-1):
    return torch.softmax(x, dim=axis)
def _gelu(x):
    return torch.nn.functional.gelu(x, approximate="tanh")
def _silu(x):
    return torch.nn.functional.silu(x)
def _sigmoid(x):
    return torch.sigmoid(x)
def _layernorm(x, axis=-1, eps=1e-5):
    m = x.mean(dim=axis, keepdim=True)
    v = x.var(dim=axis, keepdim=True, unbiased=False)
    return (x - m) / torch.sqrt(v + eps)
def _scatter_add(tgt, idx, src, axis=0):
    return tgt.clone().index_add_(axis, idx, src)
def _segment_sum(src, seg, n):
    out = torch.zeros((n,) + src.shape[1:], dtype=src.dtype)
    return out.index_add_(0, seg, src)
def _pad(x, pw):
    flat = tuple(v for pair in reversed(pw) for v in pair)
    return torch.nn.functional.pad(x, flat)

kernel_name = 'gated_mix__softmax_full_mha__mixer_channel_mlp__prompt'

def setup_inputs():

    _w = (lambda a: (lambda t: t.to(torch.bfloat16) if t.is_floating_point() else t)(torch.as_tensor(a)))
    def _A_setup():
        B, S, D = 1, 2048, 576
        return {
            "x": _w((lambda *s: torch.randn(*s, dtype=torch.bfloat16) * 0.05)(B, S, D)),
            "wqkv": _w((lambda *s: torch.randn(*s, dtype=torch.bfloat16) * 0.8)(D, 3 * D)),
            "wo": _w((lambda *s: torch.randn(*s, dtype=torch.bfloat16) * 0.1)(D, D)),
        }
    _A_in = _A_setup()

    def _B_setup():
        B, S, D, F = 1, 2048, 576, 4608
        return {
            "x": _w((lambda *s: torch.randn(*s, dtype=torch.bfloat16) * 0.05)(B, S, D)),
            "w1": _w((lambda *s: torch.randn(*s, dtype=torch.bfloat16) * 1.6)(D, F) * (D ** -0.5)),
            "b1": _w((lambda *s: torch.randn(*s, dtype=torch.bfloat16) * 0.8)(F)),
            "w2": _w((lambda *s: torch.randn(*s, dtype=torch.bfloat16) * 0.05)(F, D) * (F ** -0.5)),
            "b2": _w((lambda *s: torch.randn(*s, dtype=torch.bfloat16) * 0.05)(D)),
        }
    _B_in = _B_setup()

    return {
        "A_x": _A_in["x"],
        "A_wqkv": _A_in["wqkv"],
        "A_wo": _A_in["wo"],
        "B_x": _B_in["x"],
        "B_w1": _B_in["w1"],
        "B_b1": _B_in["b1"],
        "B_w2": _B_in["w2"],
        "B_b2": _B_in["b2"],
        "gate_w": _w((lambda *s: torch.randn(*s, dtype=torch.bfloat16) * 0.05)(576) * 16.0),
    }

def reference(A_x, A_wqkv, A_wo, B_x, B_w1, B_b1, B_w2, B_b2, gate_w):
    def _A_ref(x, wqkv, wo):
        B, S, D = x.shape
        H = 32; Dh = D // H
        qkv = (lambda x, *d: x.permute(*d))((x @ wqkv).reshape(B, S, 3, H, Dh), 2, 0, 3, 1, 4)
        q, k, v = qkv[0], qkv[1], qkv[2]
        scale = Dh ** -0.5
        scores = torch.einsum("bhqd,bhkd->bhqk", q, k) * scale
        p = _softmax(scores, axis=-1)
        o = torch.einsum("bhqk,bhkd->bhqd", p, v)
        return (lambda x, *d: x.permute(*d))(o, 0, 2, 1, 3).reshape(B, S, D) @ wo

    def _B_ref(x, w1, b1, w2, b2):
        y = _layernorm(x, axis=-1)
        h = _gelu(torch.einsum("bsd,df->bsf", y, w1) + b1)
        return torch.einsum("bsf,fd->bsd", h, w2) + b2

    x = A_x
    g = _sigmoid((x * gate_w).sum(-1, keepdims=True))
    a = _A_ref(x, A_wqkv, A_wo)
    b = _B_ref(x, B_w1, B_b1, B_w2, B_b2)
    return g * a + (1 - g) * b
```

```python
import math, struct, sys

NAME = "gated_mix__softmax_full_mha__mixer_channel_mlp__prompt"

def f32(x):
    return "0x%08x" % struct.unpack("<I", struct.pack("<f", x))[0]

WS_Y = 0x0
WS_G = 0x240000
WS_Q = 0x400000
WS_KV = 0x800000
WS_H = 0x1000000
WS_O = 0x2400000
WS_P = 0x2800000
SLAB = 2048 * 576 * 4
SZ_X = 2048 * 576 * 2
SZ_H = 2048 * 4608 * 2


class K:
    def __init__(self, name):
        self.name = name
        self.L = []
        self.vm = []
        self.lg = []
        self.nlabel = 0

    def e(self, s):
        self.L.append("    " + s)

    def c(self, s):
        self.L.append("    ; " + s)

    def label(self, l):
        self.L.append(l + ":")

    def newlabel(self, p="L"):
        self.nlabel += 1
        return "%s_%s_%d" % (self.name[:6], p, self.nlabel)

    def vmem(self, s, tag=None):
        self.e(s)
        self.vm.append(tag)

    def ds(self, s, tag=None):
        self.e(s)
        self.lg.append(tag)

    def wait(self, vm=None, lg=None):
        parts = []
        if vm is not None:
            if vm == '*':
                n = 0
            else:
                idx = [i for i, t in enumerate(self.vm) if t == vm]
                n = len(self.vm) - 1 - idx[-1] if idx else None
            if n is not None:
                assert n <= 63
                parts.append("vmcnt(%d)" % n)
                self.vm = self.vm[len(self.vm) - n:] if n else []
        if lg is not None:
            if lg == '*':
                n = 0
            else:
                idx = [i for i, t in enumerate(self.lg) if t == lg]
                n = len(self.lg) - 1 - idx[-1] if idx else None
            if n is not None:
                assert n <= 15
                parts.append("lgkmcnt(%d)" % n)
                self.lg = self.lg[len(self.lg) - n:] if n else []
        if parts:
            self.e("s_waitcnt " + " ".join(parts))

    def sel(self, d, a, b):
        self.e("s_mov_b32 s%d, %s" % (d, b))
        self.e("s_cmov_b32 s%d, %s" % (d, a))

    def srd(self, d, ptr, off, size):
        if off:
            self.e("s_add_u32 s%d, s%d, 0x%x" % (d, ptr, off))
            self.e("s_addc_u32 s%d, s%d, 0" % (d + 1, ptr + 1))
        else:
            self.e("s_mov_b32 s%d, s%d" % (d, ptr))
            self.e("s_mov_b32 s%d, s%d" % (d + 1, ptr + 1))
        self.e("s_mov_b32 s%d, 0x%x" % (d + 2, size))
        self.e("s_mov_b32 s%d, 0x00020000" % (d + 3))


def vr(a, n=1):
    return "v%d" % a if n == 1 else "v[%d:%d]" % (a, a + n - 1)


def sr(a, n=1):
    return "s%d" % a if n == 1 else "s[%d:%d]" % (a, a + n - 1)


P_X, P_WQKV, P_WO, P_BX, P_W1, P_B1, P_W2, P_B2, P_GW, P_OUT, P_DBG, P_WS = [64 + 2 * i for i in range(12)]


def load_args(k):
    k.e("s_load_dwordx8 s[64:71], s[0:1], 0")
    k.e("s_load_dwordx8 s[72:79], s[0:1], 32")
    k.e("s_load_dwordx8 s[80:87], s[0:1], 64")


BUF = 20480
SA, SB, SO, SX = 8, 12, 16, 20
S_WB, S_BOFF, S_AOFF, S_W = 24, 25, 26, 27


class G:
    def __init__(self, MT):
        self.MT = MT
        self.ACC = 16
        self.A = self.ACC + MT * 36
        self.B = self.A + 3 * MT * 4
        self.VA = self.B + 12
        self.VD = self.VA + MT
        self.VL = self.VD + 5
        self.FREE = self.VL + 1

    def acc(self, i, j):
        return self.ACC + (i * 9 + j) * 4

    def a(self, ks, i):
        return self.A + ((ks % 3) * self.MT + i) * 4

    def b(self, t):
        return self.B + (t % 3) * 4


def gemm_setup_b(k, g, rsb, bitswap):
    k.c("DMA source offsets")
    k.e("s_mul_i32 s%d, s%d, 5120" % (S_WB, S_W))
    k.e("s_mul_i32 s28, s%d, 320" % S_W)
    for i in range(5):
        k.e("s_add_u32 s29, s28, %d" % (i * 64))
        if i >= 3:
            k.e("s_cmp_ge_u32 s29, 1152")
            k.e("s_cselect_b32 s30, 128, 0")
            k.e("s_sub_u32 s29, s29, s30")
        k.e("v_add_u32 v2, s29, v1")
        k.e("v_mul_u32_u24 v3, 3641, v2")
        k.e("v_lshrrev_b32 v3, 16, v3")
        k.e("v_mul_u32_u24 v4, 18, v3")
        k.e("v_sub_u32 v4, v2, v4")
        if bitswap:
            k.e("v_and_b32 v5, 0x33, v3")
            k.e("v_and_b32 v6, 4, v3")
            k.e("v_lshlrev_b32 v6, 1, v6")
            k.e("v_and_b32 v7, 8, v3")
            k.e("v_lshrrev_b32 v7, 1, v7")
            k.e("v_or3_b32 v3, v5, v6, v7")
        k.e("v_mul_u32_u24 v3, %d, v3" % rsb)
        k.e("v_lshlrev_b32 v4, 4, v4")
        k.e("v_add_u32 v3, v3, v4")
        if 0 < i < 4:
            k.e("v_subrev_u32 v%d, %d, v3" % (g.VD + i, i * 1024))
        else:
            k.e("v_mov_b32 v%d, v3" % (g.VD + i))
    k.c("LDS tr-read lane address")
    k.e("v_lshrrev_b32 v2, 4, v1")
    k.e("v_and_b32 v3, 15, v1")
    k.e("v_lshrrev_b32 v4, 2, v3")
    if bitswap:
        k.e("v_lshrrev_b32 v5, 1, v2")
        k.e("v_lshlrev_b32 v5, 4, v5")
        k.e("v_and_b32 v6, 1, v2")
        k.e("v_lshlrev_b32 v6, 2, v6")
        k.e("v_add3_u32 v4, v4, v5, v6")
    else:
        k.e("v_lshlrev_b32 v5, 2, v2")
        k.e("v_add_u32 v4, v4, v5")
    k.e("v_mul_u32_u24 v4, 288, v4")
    k.e("v_and_b32 v3, 3, v3")
    k.e("v_lshlrev_b32 v3, 3, v3")
    k.e("v_add_u32 v%d, v4, v3" % g.VL)


def gemm_dma(k, g, c, rsb):
    buf = c % 3
    k.e("s_add_u32 m0, s%d, %d" % (S_WB, buf * BUF))
    k.e("s_nop 0")
    for i in range(4):
        k.vmem("buffer_load_dwordx4 v%d, s[%d:%d], s%d offen offset:%d lds" % (g.VD + i, SB, SB + 3, S_BOFF, i * 1024), ("D", c))
    k.e("s_add_u32 m0, s%d, %d" % (S_WB, buf * BUF + 4096))
    k.e("s_nop 0")
    k.vmem("buffer_load_dwordx4 v%d, s[%d:%d], s%d offen lds" % (g.VD + 4, SB, SB + 3, S_BOFF), ("D", c))
    k.e("s_add_u32 s%d, s%d, %d" % (S_BOFF, S_BOFF, 64 * rsb))


def gemm_main(k, g, KS, rsb, bitswap, afrag):
    MT = g.MT
    NC = KS // 2
    HALF = (8 if bitswap else 16) * 288

    def aload(ks):
        for i in range(MT):
            if afrag:
                k.vmem("buffer_load_dwordx4 %s, v%d, s[%d:%d], s%d offen" % (vr(g.a(ks, i), 4), g.VA + i, SA, SA + 3, S_AOFF), ("A", ks))
            else:
                k.vmem("buffer_load_dwordx4 %s, v%d, s[%d:%d], s%d offen offset:%d" % (vr(g.a(ks, i), 4), g.VA + i, SA, SA + 3, S_AOFF, ks * 64), ("A", ks))
        if afrag:
            k.e("s_add_u32 s%d, s%d, 1024" % (S_AOFF, S_AOFF))

    def bread(t):
        ks, j = divmod(t, 9)
        off = ((ks // 2) % 3) * BUF + (ks & 1) * 9216 + j * 32
        b = g.b(t)
        k.ds("ds_read_b64_tr_b16 %s, v%d offset:%d" % (vr(b, 2), g.VL, off), ("B", t))
        k.ds("ds_read_b64_tr_b16 %s, v%d offset:%d" % (vr(b + 2, 2), g.VL, off + HALF), ("B", t))

    for c in range(min(3, NC)):
        gemm_dma(k, g, c, rsb)
    aload(0)
    aload(1)
    k.c("zero accumulators")
    for r in range(MT * 36):
        k.e("v_mov_b32 v%d, 0" % (g.ACC + r))
    k.wait(vm=("D", 0))
    k.e("s_barrier")
    bread(0)
    bread(1)
    NTS = KS * 9
    for t in range(NTS):
        ks, j = divmod(t, 9)
        if j == 0 and ks + 2 < KS:
            aload(ks + 2)
        tn = t + 2
        if tn < NTS:
            if tn % 18 == 0:
                c = tn // 18
                k.wait(vm=("D", c), lg='*')
                k.e("s_barrier")
                if c + 2 < NC:
                    gemm_dma(k, g, c + 2, rsb)
            bread(tn)
        k.wait(lg=("B", t), vm=("A", ks) if j == 0 else None)
        for i in range(MT):
            a = g.acc(i, j)
            k.e("v_mfma_f32_16x16x32_bf16 %s, %s, %s, %s" % (vr(a, 4), vr(g.b(t), 4), vr(g.a(ks, i), 4), vr(a, 4)))
    k.e("s_nop 7")
    k.e("s_nop 7")


def prologue_ids(k):
    k.e("v_and_b32 v1, 63, v0")
    k.e("v_lshrrev_b32 v2, 6, v0")
    k.e("s_nop 0")
    k.e("v_readfirstlane_b32 s%d, v2" % S_W)


def a_offsets_rowmajor(k, g, s_m0, stride):
    k.e("s_mul_i32 s28, s%d, %d" % (S_W, 16 * g.MT))
    k.e("s_add_u32 s28, s28, s%d" % s_m0)
    k.e("v_and_b32 v2, 15, v1")
    k.e("v_add_u32 v2, s28, v2")
    k.e("v_mul_u32_u24 v2, %d, v2" % stride)
    k.e("v_lshrrev_b32 v3, 4, v1")
    k.e("v_lshlrev_b32 v3, 4, v3")
    k.e("v_add_u32 v2, v2, v3")
    for i in range(g.MT):
        k.e("v_add_u32 v%d, %d, v2" % (g.VA + i, i * 16 * stride))


def bf16_round(k, d, s, t):
    k.e("v_cvt_pk_bf16_f32 v%d, v%d, v%d" % (t, s, s))
    k.e("v_lshlrev_b32 v%d, 16, v%d" % (d, t))


def red8(k, v, t):
    k.e("s_nop 1")
    k.e("v_add_f32_dpp v%d, v%d, v%d quad_perm:[1,0,3,2] row_mask:0xf bank_mask:0xf" % (t, v, v))
    k.e("s_nop 1")
    k.e("v_add_f32_dpp v%d, v%d, v%d quad_perm:[2,3,0,1] row_mask:0xf bank_mask:0xf" % (v, t, t))
    k.e("s_nop 1")
    k.e("v_add_f32_dpp v%d, v%d, v%d row_half_mirror row_mask:0xf bank_mask:0xf" % (t, v, v))
    k.e("v_mov_b32 v%d, v%d" % (v, t))


def k1_ln(k):
    k.c("---- LN / gate part")
    k.srd(SA, P_X, 0, SZ_X)
    k.srd(SB, P_GW, 0, 1152)
    k.srd(SO, P_WS, WS_Y, SZ_X)
    k.srd(SX, P_WS, WS_G, 8192)
    X, GW, F = 16, 52, 88
    k.e("s_lshl_b32 s28, s3, 5")
    k.e("s_lshl_b32 s29, s%d, 3" % S_W)
    k.e("s_add_u32 s28, s28, s29")
    k.e("v_lshrrev_b32 v2, 3, v1")
    k.e("v_add_u32 v2, s28, v2")
    k.e("v_and_b32 v3, 7, v1")
    k.e("v_lshlrev_b32 v4, 4, v3")
    k.e("v_mul_u32_u24 v5, 1152, v2")
    k.e("v_add_u32 v5, v5, v4")
    for i in range(9):
        k.vmem("buffer_load_dwordx4 %s, v5, s[%d:%d], 0 offen offset:%d" % (vr(X + 4 * i, 4), SA, SA + 3, i * 128))
    for i in range(9):
        k.vmem("buffer_load_dwordx4 %s, v4, s[%d:%d], 0 offen offset:%d" % (vr(GW + 4 * i, 4), SB, SB + 3, i * 128))
    k.wait(vm='*')
    for i in range(36):
        k.e("v_lshlrev_b32 v%d, 16, v%d" % (F + 2 * i, X + i))
        k.e("v_and_b32 v%d, 0xffff0000, v%d" % (F + 2 * i + 1, X + i))
    k.e("v_add_f32 v6, v%d, v%d" % (F, F + 1))
    k.e("v_add_f32 v7, v%d, v%d" % (F + 2, F + 3))
    for i in range(2, 36):
        k.e("v_add_f32 v%d, v%d, v%d" % (6 + (i & 1), 6 + (i & 1), F + 2 * i))
        k.e("v_add_f32 v%d, v%d, v%d" % (6 + (i & 1), 6 + (i & 1), F + 2 * i + 1))
    k.e("v_add_f32 v6, v6, v7")
    red8(k, 6, 7)
    k.e("v_mul_f32 v6, %s, v6" % f32(1.0 / 576))
    k.e("v_mov_b32 v10, 0")
    k.e("v_mov_b32 v11, 0")
    for i in range(36):
        k.e("v_lshlrev_b32 v8, 16, v%d" % (GW + i))
        k.e("v_and_b32 v9, 0xffff0000, v%d" % (GW + i))
        k.e("v_mul_f32 v8, v8, v%d" % (F + 2 * i))
        k.e("v_mul_f32 v9, v9, v%d" % (F + 2 * i + 1))
        k.e("v_cvt_pk_bf16_f32 v8, v8, v9")
        k.e("v_and_b32 v9, 0xffff0000, v8")
        k.e("v_lshlrev_b32 v8, 16, v8")
        k.e("v_add_f32 v10, v10, v8")
        k.e("v_add_f32 v11, v11, v9")
    k.e("v_add_f32 v10, v10, v11")
    red8(k, 10, 11)
    bf16_round(k, 10, 10, 10)
    k.e("v_mul_f32 v10, %s, v10" % f32(-math.log2(math.e)))
    k.e("v_exp_f32 v10, v10")
    k.e("s_nop 0")
    k.e("v_add_f32 v10, 1.0, v10")
    k.e("v_rcp_f32 v10, v10")
    k.e("s_nop 0")
    bf16_round(k, 10, 10, 10)
    k.e("v_lshlrev_b32 v11, 2, v2")
    k.e("v_cmp_eq_u32 vcc, 0, v3")
    k.e("s_and_saveexec_b64 s[30:31], vcc")
    k.vmem("buffer_store_dword v10, v11, s[%d:%d], 0 offen" % (SX, SX + 3))
    k.e("s_mov_b64 exec, s[30:31]")
    k.e("v_mov_b32 v8, 0")
    k.e("v_mov_b32 v9, 0")
    for i in range(72):
        k.e("v_sub_f32 v12, v%d, v6" % (F + i))
        k.e("v_fma_f32 v%d, v12, v12, v%d" % (8 + (i & 1), 8 + (i & 1)))
    k.e("v_add_f32 v8, v8, v9")
    red8(k, 8, 9)
    k.e("v_mul_f32 v8, %s, v8" % f32(1.0 / 576))
    bf16_round(k, 8, 8, 8)
    k.e("v_add_f32 v8, %s, v8" % f32(1e-5))
    bf16_round(k, 8, 8, 8)
    k.e("v_sqrt_f32 v8, v8")
    k.e("s_nop 0")
    bf16_round(k, 8, 8, 8)
    k.e("v_rcp_f32 v9, v8")
    bf16_round(k, 6, 6, 6)
    for i in range(36):
        a, b = F + 2 * i, F + 2 * i + 1
        k.e("v_sub_f32 v%d, v%d, v6" % (a, a))
        k.e("v_sub_f32 v%d, v%d, v6" % (b, b))
        k.e("v_cvt_pk_bf16_f32 v12, v%d, v%d" % (a, b))
        k.e("v_lshlrev_b32 v%d, 16, v12" % a)
        k.e("v_and_b32 v%d, 0xffff0000, v12" % b)
        for x, q, e in ((a, 12, 13), (b, 14, 15)):
            k.e("v_mul_f32 v%d, v%d, v9" % (q, x))
            k.e("v_fma_f32 v%d, -v%d, v8, v%d" % (e, q, x))
            k.e("v_fma_f32 v%d, v%d, v9, v%d" % (q, e, q))
        k.e("v_cvt_pk_bf16_f32 v%d, v12, v14" % (X + i))
    for i in range(9):
        k.vmem("buffer_store_dwordx4 %s, v5, s[%d:%d], 0 offen offset:%d" % (vr(X + 4 * i, 4), SO, SO + 3, i * 128))
    k.e("s_endpgm")


def k1():
    k = K("k1")
    g = G(2)
    load_args(k)
    prologue_ids(k)
    k.e("s_cmp_ge_u32 s2, 256")
    k.e("s_cbranch_scc1 k1_exit")
    k.e("s_waitcnt lgkmcnt(0)")
    k.e("s_cmp_lt_u32 s2, 192")
    k.e("s_cbranch_scc1 k1_gemm")
    k.e("s_sub_u32 s3, s2, 192")
    k1_ln(k)
    k.label("k1_gemm")
    k.vm = []
    k.lg = []
    k.e("s_and_b32 s3, s2, 15")
    k.e("s_lshl_b32 s3, s3, 7")
    k.e("s_lshr_b32 s4, s2, 4")
    k.srd(SA, P_X, 0, SZ_X)
    k.srd(SB, P_WQKV, 0, 576 * 1728 * 2)
    k.e("s_mul_i32 s%d, s4, 288" % S_BOFF)
    k.e("s_mov_b32 s%d, 0" % S_AOFF)
    a_offsets_rowmajor(k, g, 3, 1152)
    gemm_setup_b(k, g, 3456, True)
    gemm_main(k, g, 18, 3456, True, False)
    k.c("---- QKV epilogue")
    k.e("s_lshr_b32 s5, s4, 2")
    k.e("s_and_b32 s6, s4, 3")
    k.e("s_lshl_b32 s6, s6, 3")
    k.e("s_cmp_eq_u32 s5, 0")
    k.sel(28, "0x%x" % WS_Q, "0x%x" % WS_KV)
    k.sel(29, "0x%x" % (4 << 20), "0x%x" % (8 << 20))
    k.sel(32, 131072, 262144)
    k.sel(33, 2048, 4096)
    k.sel(38, f32(18 ** -0.5 * math.log2(math.e)), "1.0")
    k.e("s_add_u32 s%d, s%d, s28" % (SO, P_WS))
    k.e("s_addc_u32 s%d, s%d, 0" % (SO + 1, P_WS + 1))
    k.e("s_mov_b32 s%d, s29" % (SO + 2))
    k.e("s_mov_b32 s%d, 0x00020000" % (SO + 3))
    k.e("s_cmp_eq_u32 s5, 2")
    k.sel(34, 32, 1024)
    k.sel(35, 16, 512)
    k.sel(36, 2048, 0)
    k.sel(37, 64, 16)
    T = g.A
    k.e("s_lshl_b32 s28, s%d, 5" % S_W)
    k.e("s_add_u32 s28, s28, s3")
    k.e("s_lshr_b32 s28, s28, 5")
    k.e("s_mul_i32 s28, s28, s33")
    k.e("s_add_u32 s28, s28, s36")
    k.e("s_mul_i32 s29, s6, s32")
    k.e("s_add_u32 s28, s28, s29")
    k.e("v_and_b32 v2, 15, v1")
    k.e("v_mul_lo_u32 v10, v2, s37")
    k.e("v_add_u32 v10, s28, v10")
    k.e("s_lshl_b32 s29, s37, 4")
    k.e("v_add_u32 v11, s29, v10")
    k.e("v_lshrrev_b32 v3, 4, v1")
    k.e("v_lshlrev_b32 v3, 2, v3")
    for j in range(9):
        for pp in range(2):
            k.e("v_add_u32 v4, %d, v3" % (16 * j + 2 * pp))
            k.e("v_mul_u32_u24 v5, 3641, v4")
            k.e("v_lshrrev_b32 v5, 16, v5")
            k.e("v_mul_u32_u24 v6, 18, v5")
            k.e("v_sub_u32 v6, v4, v6")
            k.e("v_mul_lo_u32 v5, v5, s32")
            k.e("v_lshrrev_b32 v7, 4, v6")
            k.e("v_mul_lo_u32 v7, v7, s34")
            k.e("v_add_u32 v5, v5, v7")
            k.e("v_bfe_u32 v7, v6, 3, 1")
            k.e("v_mul_lo_u32 v7, v7, s35")
            k.e("v_add_u32 v5, v5, v7")
            k.e("v_and_b32 v7, 7, v6")
            k.e("v_lshlrev_b32 v7, 1, v7")
            k.e("v_add_u32 v5, v5, v7")
            for mi in range(2):
                a = g.acc(mi, j) + 2 * pp
                d = T + (j * 4 + pp * 2 + mi) % 16 * 2
                k.e("v_mul_f32 v%d, s38, v%d" % (a, a))
                k.e("v_mul_f32 v%d, s38, v%d" % (a + 1, a + 1))
                k.e("v_cvt_pk_bf16_f32 v%d, v%d, v%d" % (a, a, a + 1))
                k.e("v_add_u32 v%d, v5, v%d" % (a + 1, 10 + mi))
                k.vmem("buffer_store_dword v%d, v%d, s[%d:%d], 0 offen" % (a, a + 1, SO, SO + 3))
    k.e("s_cmp_eq_u32 s5, 0")
    k.e("s_cbranch_scc1 k1_exit")
    k.e("v_and_b32 v2, 127, v0")
    k.e("v_add_u32 v2, s3, v2")
    k.e("v_lshrrev_b32 v3, 5, v2")
    k.e("v_mul_lo_u32 v3, v3, s33")
    k.e("v_and_b32 v2, 31, v2")
    k.e("v_mul_lo_u32 v2, v2, s37")
    k.e("v_add_u32 v2, v2, v3")
    k.e("v_lshrrev_b32 v3, 7, v0")
    k.e("v_lshlrev_b32 v3, 2, v3")
    k.e("v_add_u32 v3, s6, v3")
    k.e("v_mul_lo_u32 v3, v3, s32")
    k.e("v_add_u32 v2, v2, v3")
    k.e("s_add_u32 s28, s34, s36")
    k.e("v_add_u32 v2, s28, v2")
    k.e("v_add_u32 v3, s35, v2")
    k.e("v_add_u32 v2, 4, v2")
    k.e("v_mov_b32 v4, 0x3f803f80")
    for r in (5, 6, 8, 9, 10, 11):
        k.e("v_mov_b32 v%d, 0" % r)
    k.e("s_mov_b32 s28, 0")
    for h in range(4):
        k.vmem("buffer_store_dwordx3 v[4:6], v2, s[%d:%d], s28 offen" % (SO, SO + 3))
        k.vmem("buffer_store_dwordx4 v[8:11], v3, s[%d:%d], s28 offen" % (SO, SO + 3))
        k.e("s_add_u32 s28, s28, s32")
    k.label("k1_exit")
    k.e("s_endpgm")
    return k, 176, 3 * BUF, 256


def k2_gemm1(k):
    g = G(4)
    BIAS = g.FREE
    k.c("---- GEMM1: wg s2 in 0..255")
    k.e("s_and_b32 s4, s2, 7")
    k.e("s_lshl_b32 s4, s4, 2")
    k.e("s_bfe_u32 s5, s2, 0x20003")
    k.e("s_add_u32 s4, s4, s5")
    k.e("s_lshr_b32 s3, s2, 5")
    k.e("s_lshl_b32 s3, s3, 8")
    k.srd(SA, P_WS, WS_Y, SZ_X)
    k.srd(SB, P_W1, 0, 576 * 4608 * 2)
    k.srd(SO, P_WS, WS_H, SZ_H)
    k.srd(SX, P_B1, 0, 9216)
    k.e("s_mul_i32 s%d, s4, 288" % S_BOFF)
    k.e("s_mov_b32 s%d, 0" % S_AOFF)
    k.e("v_lshrrev_b32 v2, 4, v1")
    k.e("v_lshlrev_b32 v2, 3, v2")
    for j in range(9):
        k.vmem("buffer_load_dwordx2 %s, v2, s[%d:%d], s%d offen offset:%d" % (vr(BIAS + 2 * j, 2), SX, SX + 3, S_BOFF, j * 32), "bias")
    a_offsets_rowmajor(k, g, 3, 1152)
    gemm_setup_b(k, g, 9216, True)
    gemm_main(k, g, 18, 9216, True, False)
    k.c("---- GELU epilogue")
    c0 = -2.0 * math.log2(math.e) * math.sqrt(2.0 / math.pi)
    c1 = c0 * 0.044715
    T = g.A
    k.e("v_mov_b32 v15, %s" % f32(c1))
    k.e("s_lshr_b32 s28, s3, 4")
    k.e("s_lshl_b32 s29, s%d, 2" % S_W)
    k.e("s_add_u32 s28, s28, s29")
    k.e("s_mul_i32 s28, s28, 147456")
    k.e("v_lshlrev_b32 v2, 4, v1")
    k.e("v_add_u32 v2, s28, v2")
    for mi in range(4):
        k.e("v_add_u32 v%d, %d, v2" % (g.VA + mi, mi * 147456))
    k.e("s_mul_i32 s30, s4, 9")
    n = 0
    for j in range(9):
        k.e("s_add_u32 s31, s30, %d" % j)
        k.e("s_lshr_b32 s32, s31, 1")
        k.e("s_lshl_b32 s32, s32, 10")
        k.e("s_and_b32 s31, s31, 1")
        k.e("s_lshl_b32 s31, s31, 3")
        k.e("s_add_u32 s32, s32, s31")
        b = BIAS + 2 * j
        k.e("v_lshlrev_b32 v4, 16, v%d" % b)
        k.e("v_and_b32 v5, 0xffff0000, v%d" % b)
        k.e("v_lshlrev_b32 v6, 16, v%d" % (b + 1))
        k.e("v_and_b32 v7, 0xffff0000, v%d" % (b + 1))
        for mi in range(4):
            a = g.acc(mi, j)
            t = T + (n % 4) * 8
            n += 1
            for r in range(4):
                k.e("v_add_f32 v%d, v%d, v%d" % (a + r, a + r, 4 + r))
            for r in range(4):
                k.e("v_mul_f32 v%d, v%d, v%d" % (t + r, a + r, a + r))
            for r in range(4):
                k.e("v_fmaak_f32 v%d, v%d, v15, %s" % (t + r, t + r, f32(c0)))
            for r in range(4):
                k.e("v_mul_f32 v%d, v%d, v%d" % (t + r, t + r, a + r))
            for r in range(4):
                k.e("v_exp_f32 v%d, v%d" % (t + r, t + r))
            for r in range(4):
                k.e("v_add_f32 v%d, 1.0, v%d" % (t + r, t + r))
            for r in range(4):
                k.e("v_rcp_f32 v%d, v%d" % (t + r, t + r))
            for r in range(4):
                k.e("v_mul_f32 v%d, v%d, v%d" % (t + r, t + r, a + r))
            k.e("v_cvt_pk_bf16_f32 v%d, v%d, v%d" % (t + 4, t, t + 1))
            k.e("v_cvt_pk_bf16_f32 v%d, v%d, v%d" % (t + 5, t + 2, t + 3))
            k.vmem("buffer_store_dwordx2 %s, v%d, s[%d:%d], s32 offen" % (vr(t + 4, 2), g.VA + mi, SO, SO + 3))
    k.e("s_endpgm")


def k2_attn(k):
    OA, OB, SAq, SBq, PA, PB, QA, QB, KR, VR = 16, 32, 48, 64, 80, 88, 96, 104, 112, 128
    VKC, VVC, VKN, VVN, VKB, VVB, VDM = 144, 145, 146, 147, 148, 149, 150
    S_NB, S_DOFF, S_CNT, S_FLAG, S_T = 28, 29, 30, 31, 32
    LOMASK = 40
    k.c("---- attention: wg s3 = s2-256")
    k.e("s_sub_u32 s3, s2, 256")
    k.e("s_and_b32 s4, s3, 7")
    k.e("s_lshr_b32 s5, s3, 6")
    k.e("s_lshl_b32 s5, s5, 3")
    k.e("s_add_u32 s4, s4, s5")
    k.e("s_bfe_u32 s5, s3, 0x30003")
    k.srd(SA, P_WS, WS_Q, 4 << 20)
    k.srd(SB, P_WS, WS_KV, 8 << 20)
    k.srd(SO, P_WS, WS_O, SZ_X)
    k.e("s_mov_b32 s%d, -1" % LOMASK)
    k.e("s_mov_b32 s%d, 0" % (LOMASK + 1))
    k.e("s_mov_b32 s%d, 0" % S_FLAG)
    k.e("s_lshl_b32 s%d, s%d, 12" % (S_WB, S_W))
    k.e("s_lshl_b32 s%d, s4, 18" % S_DOFF)
    k.e("s_mov_b32 s33, s%d" % S_DOFF)
    k.e("v_lshlrev_b32 v2, 4, v1")
    k.e("v_add_u32 v%d, s%d, v2" % (VDM, S_WB))
    def dma(m0expr):
        k.e(m0expr)
        k.e("s_nop 0")
        for i in range(4):
            k.e("buffer_load_dwordx4 v%d, s[%d:%d], s%d offen offset:%d lds" % (VDM, SB, SB + 3, S_DOFF, i * 1024))
        k.e("s_add_u32 s%d, s%d, 16384" % (S_DOFF, S_DOFF))
    dma("s_mov_b32 m0, s%d" % S_WB)
    dma("s_add_u32 m0, s%d, 16384" % S_WB)
    k.e("s_lshl_b32 s34, s4, 6")
    k.e("s_lshl_b32 s35, s5, 3")
    k.e("s_add_u32 s34, s34, s35")
    k.e("s_lshl_b32 s35, s%d, 1" % S_W)
    k.e("s_add_u32 s34, s34, s35")
    k.e("s_lshl_b32 s34, s34, 11")
    for X in (0, 1):
        for u in (0, 1):
            k.e("buffer_load_dwordx4 %s, v2, s[%d:%d], s34 offen offset:%d" % (vr(QA + 8 * X + 4 * u, 4), SA, SA + 3, X * 2048 + u * 1024))
    k.e("v_mov_b32 v%d, v2" % VKB)
    k.e("v_lshrrev_b32 v3, 5, v1")
    k.e("v_lshlrev_b32 v3, 2, v3")
    k.e("v_bfe_u32 v4, v1, 2, 2")
    k.e("v_add_u32 v3, v3, v4")
    k.e("v_lshlrev_b32 v3, 6, v3")
    k.e("v_bfe_u32 v4, v1, 4, 1")
    k.e("v_lshlrev_b32 v4, 5, v4")
    k.e("v_and_b32 v5, 3, v1")
    k.e("v_lshlrev_b32 v5, 3, v5")
    k.e("v_add3_u32 v3, v3, v4, v5")
    k.e("v_add_u32 v%d, 2048, v3" % VVB)
    k.e("v_mov_b32 v%d, v%d" % (VKC, VKB))
    k.e("v_mov_b32 v%d, v%d" % (VVC, VVB))
    k.e("v_add_u32 v%d, 16384, v%d" % (VKN, VKB))
    k.e("v_add_u32 v%d, 16384, v%d" % (VVN, VVB))
    k.e("s_mov_b32 s%d, 16384" % S_NB)
    for r in range(32):
        k.e("v_mov_b32 v%d, 0" % (OA + r))
    k.e("s_waitcnt vmcnt(0)")
    for X in (0, 1):
        q = QA + 8 * X + 4
        k.e("v_cndmask_b32 v%d, 0, v%d, s[%d:%d]" % (q, q, LOMASK, LOMASK + 1))
        for r in (1, 2, 3):
            k.e("v_mov_b32 v%d, 0" % (q + r))
    k.e("s_barrier")

    def ldk(buf, va, tile):
        for u in (0, 1):
            k.e("ds_read_b128 %s, v%d offset:%d" % (vr(KR + 8 * buf + 4 * u, 4), va, tile * 4096 + u * 1024))

    def ldv(buf, va, tile):
        for u in (0, 1):
            for h in (0, 1):
                k.e("ds_read_b64_tr_b16 %s, v%d offset:%d" % (vr(VR + 8 * buf + 4 * u + 2 * h, 2), va, tile * 4096 + u * 1024 + h * 512))

    def qk(S, kb, Q, part):
        if part == 0:
            return "v_mfma_f32_32x32x16_bf16 %s, %s, %s, 0" % (vr(S, 16), vr(KR + 8 * kb, 4), vr(Q, 4))
        return "v_mfma_f32_32x32x16_bf16 %s, %s, %s, %s" % (vr(S, 16), vr(KR + 8 * kb + 4, 4), vr(Q + 4, 4), vr(S, 16))

    def pv(O, vb, P, u):
        return "v_mfma_f32_32x32x16_bf16 %s, %s, %s, %s" % (vr(O, 16), vr(VR + 8 * vb + 4 * u, 4), vr(P + 4 * u, 4), vr(O, 16))

    def softmax_ops(S, P):
        e = lambda i: "v_exp_f32 v%d, v%d" % (S + i, S + i)
        c = lambda i: "v_cvt_pk_bf16_f32 v%d, v%d, v%d" % (P + i, S + 2 * i, S + 2 * i + 1)
        ops = [e(0), e(1), e(2), e(3), c(0)]
        for i in range(1, 7):
            ops += [e(2 * i + 2), e(2 * i + 3), c(i)]
        ops += [c(7)]
        return ops

    def phase(S, P, mf):
        ops = softmax_ops(S, P)
        for i, o in enumerate(ops):
            if i % 6 == 0 and i // 6 < len(mf):
                k.e(mf[i // 6])
            k.e(o)

    def rowmax_patch(S, Q, first, M):
        k.e("v_max3_f32 v2, v%d, v%d, v%d" % (S, S + 1, S + 2))
        for i in range(3, 15, 2):
            k.e("v_max3_f32 v2, v2, v%d, v%d" % (S + i, S + i + 1))
        if first:
            k.e("v_max_f32 v%d, v2, v%d" % (M, S + 15))
        else:
            k.e("v_max3_f32 v%d, v2, v%d, v%d" % (M, S + 15, M))

    def patch(M, Q):
        k.e("v_mov_b32 v3, v%d" % M)
        k.e("v_mov_b32 v4, v%d" % M)
        k.e("s_nop 1")
        k.e("v_permlane32_swap_b32 v3, v4")
        k.e("s_nop 1")
        k.e("v_max_f32 v3, v3, v4")
        k.e("v_sub_f32 v3, 0, v3")
        k.e("v_cvt_pk_bf16_f32 v4, v3, v3")
        k.e("v_lshlrev_b32 v4, 16, v4")
        k.e("v_sub_f32 v3, v3, v4")
        k.e("v_cvt_pk_bf16_f32 v3, v4, v3")
        k.e("v_cndmask_b32 v%d, 0, v3, s[%d:%d]" % (Q + 5, LOMASK, LOMASK + 1))

    ldk(0, VKC, 0)
    ldk(1, VKC, 1)
    ldv(0, VVC, 0)
    k.e("s_waitcnt lgkmcnt(0)")
    for S, Q in ((SAq, QA), (SBq, QB)):
        k.e(qk(S, 0, Q, 0))
        k.e(qk(S, 0, Q, 1))
    k.e("s_nop 7")
    k.e("s_nop 7")
    rowmax_patch(SAq, QA, True, 6)
    rowmax_patch(SBq, QB, True, 7)
    patch(6, QA)
    patch(7, QB)
    k.e("s_nop 1")
    k.e(qk(SAq, 0, QA, 0))
    k.e(qk(SAq, 0, QA, 1))
    k.e("s_nop 7")
    k.e("s_nop 7")
    phase(SAq, PA, [qk(SBq, 0, QB, 0), qk(SBq, 0, QB, 1)])
    k.e("s_mov_b32 s%d, 16" % S_CNT)
    k.label("k2_aloop")
    for tt in range(4):
        k.e("s_waitcnt lgkmcnt(0)")
        if tt == 2:
            k.e("s_waitcnt vmcnt(0)")
            k.e("s_barrier")
            k.e("s_add_u32 s%d, s%d, 16384" % (S_T, S_NB))
            k.e("s_cmp_eq_u32 s%d, 49152" % S_T)
            k.e("s_cmov_b32 s%d, 0" % S_T)
            dma("s_add_u32 m0, s%d, s%d" % (S_T, S_WB))
        if tt + 2 < 4:
            ldk(tt & 1, VKC, tt + 2)
        else:
            ldk(tt & 1, VKN, tt - 2)
        if tt + 1 < 4:
            ldv((tt + 1) & 1, VVC, tt + 1)
        else:
            ldv((tt + 1) & 1, VVN, 0)
        kb, vb = (tt + 1) & 1, tt & 1
        phase(SBq, PB, [qk(SAq, kb, QA, 0), qk(SAq, kb, QA, 1), pv(OA, vb, PA, 0), pv(OA, vb, PA, 1)])
        phase(SAq, PA, [qk(SBq, kb, QB, 0), qk(SBq, kb, QB, 1), pv(OB, vb, PB, 0), pv(OB, vb, PB, 1)])
    k.e("v_mov_b32 v%d, v%d" % (VKC, VKN))
    k.e("v_mov_b32 v%d, v%d" % (VVC, VVN))
    k.e("s_mov_b32 s%d, s%d" % (S_NB, S_T))
    k.e("v_add_u32 v%d, s%d, v%d" % (VKN, S_NB, VKB))
    k.e("v_add_u32 v%d, s%d, v%d" % (VVN, S_NB, VVB))
    k.e("s_sub_u32 s%d, s%d, 1" % (S_CNT, S_CNT))
    k.e("s_cmp_lg_u32 s%d, 0" % S_CNT)
    k.e("s_cbranch_scc1 k2_aloop")
    k.label("k2_fin")
    k.e("s_waitcnt vmcnt(0) lgkmcnt(0)")
    k.e("s_nop 7")
    k.e("s_nop 7")
    for X, O in ((0, OA), (1, OB)):
        k.e("v_mov_b32 v%d, v%d" % (8 + 2 * X, O + 10))
        k.e("v_mov_b32 v%d, v%d" % (9 + 2 * X, O + 10))
    k.e("s_nop 1")
    k.e("v_permlane32_swap_b32 v8, v9")
    k.e("v_permlane32_swap_b32 v10, v11")
    k.e("s_nop 1")
    k.e("s_cmp_lg_u32 s%d, 0" % S_FLAG)
    k.e("s_cbranch_scc1 k2_store")
    k.e("v_max_f32 v2, v8, v10")
    k.e("v_mov_b32 v3, %s" % f32(2.0 ** 40))
    k.e("v_cmp_nlt_f32 vcc, v8, v3")
    k.e("s_nop 1")
    k.e("s_mov_b64 s[36:37], vcc")
    k.e("v_cmp_nlt_f32 vcc, v10, v3")
    k.e("s_nop 1")
    k.e("s_or_b64 s[36:37], vcc, s[36:37]")
    k.e("s_cbranch_scc1 k2_fallback")
    k.label("k2_store")
    k.e("v_rcp_f32 v8, v8")
    k.e("v_rcp_f32 v10, v10")
    k.e("s_lshl_b32 s34, s5, 8")
    k.e("s_lshl_b32 s35, s%d, 6" % S_W)
    k.e("s_add_u32 s34, s34, s35")
    k.e("v_and_b32 v2, 31, v1")
    k.e("v_add_u32 v2, s34, v2")
    k.e("v_mul_u32_u24 v2, 1152, v2")
    k.e("s_mul_i32 s35, s4, 36")
    k.e("v_lshrrev_b32 v3, 5, v1")
    k.e("v_lshlrev_b32 v3, 3, v3")
    k.e("v_add3_u32 v2, v2, v3, s35")
    for X, O in ((0, OA), (1, OB)):
        for r in range(10):
            k.e("v_mul_f32 v%d, v%d, v%d" % (O + r, O + r, 8 + 2 * X))
        for r in range(5):
            k.e("v_cvt_pk_bf16_f32 v%d, v%d, v%d" % (O + r, O + 2 * r, O + 2 * r + 1))
        k.e("buffer_store_dwordx2 %s, v2, s[%d:%d], 0 offen offset:%d" % (vr(O, 2), SO, SO + 3, X * 32 * 1152 % 4096 if False else 0) if X == 0 else "v_add_u32 v5, %d, v2" % (32 * 1152))
        va = 2 if X == 0 else 5
        if X == 1:
            k.e("buffer_store_dwordx2 %s, v5, s[%d:%d], 0 offen" % (vr(O, 2), SO, SO + 3))
        k.e("buffer_store_dwordx2 %s, v%d, s[%d:%d], 0 offen offset:16" % (vr(O + 2, 2), va, SO, SO + 3))
        k.e("s_mov_b64 exec, s[%d:%d]" % (LOMASK, LOMASK + 1))
        k.e("buffer_store_dword v%d, v%d, s[%d:%d], 0 offen offset:32" % (O + 4, va, SO, SO + 3))
        k.e("s_mov_b64 exec, -1")
    k.e("s_endpgm")
    k.label("k2_fallback")
    k.e("s_mov_b32 s%d, 1" % S_FLAG)
    k.e("v_mov_b32 v%d, 0" % (QA + 5))
    k.e("v_mov_b32 v%d, 0" % (QB + 5))
    k.e("v_mov_b32 v6, 0xff800000")
    k.e("v_mov_b32 v7, 0xff800000")
    k.e("s_add_u32 s38, s%d, 49152" % S_WB)
    k.e("v_lshlrev_b32 v12, 4, v1")
    k.e("v_add_u32 v13, s38, v%d" % VKB)
    k.e("v_add_u32 v14, s38, v%d" % VVB)
    for ps in (0, 1):
        k.e("s_mov_b32 s%d, s33" % S_DOFF)
        k.e("s_mov_b32 s%d, 64" % S_CNT)
        k.label("k2_fb%d" % ps)
        k.e("s_mov_b32 m0, s38")
        k.e("s_nop 0")
        for i in range(4):
            k.e("buffer_load_dwordx4 v12, s[%d:%d], s%d offen offset:%d lds" % (SB, SB + 3, S_DOFF, i * 1024))
        k.e("s_add_u32 s%d, s%d, 4096" % (S_DOFF, S_DOFF))
        k.e("s_waitcnt vmcnt(0)")
        ldk(0, 13, 0)
        if ps:
            ldv(0, 14, 0)
        k.e("s_waitcnt lgkmcnt(0)")
        for S, Q in ((SAq, QA), (SBq, QB)):
            k.e(qk(S, 0, Q, 0))
            k.e(qk(S, 0, Q, 1))
        k.e("s_nop 7")
        k.e("s_nop 7")
        if ps == 0:
            rowmax_patch(SAq, QA, False, 6)
            rowmax_patch(SBq, QB, False, 7)
        else:
            for S, P in ((SAq, PA), (SBq, PB)):
                for o in softmax_ops(S, P):
                    k.e(o)
            k.e("s_nop 1")
            for O, P in ((OA, PA), (OB, PB)):
                k.e(pv(O, 0, P, 0))
                k.e(pv(O, 0, P, 1))
        k.e("s_sub_u32 s%d, s%d, 1" % (S_CNT, S_CNT))
        k.e("s_cmp_lg_u32 s%d, 0" % S_CNT)
        k.e("s_cbranch_scc1 k2_fb%d" % ps)
        if ps == 0:
            patch(6, QA)
            patch(7, QB)
            for r in range(32):
                k.e("v_mov_b32 v%d, 0" % (OA + r))
            k.e("s_nop 1")
    k.e("s_branch k2_fin")


def k2():
    k = K("k2")
    load_args(k)
    prologue_ids(k)
    k.e("s_cmp_ge_u32 s2, 512")
    k.e("s_cbranch_scc1 k2_exit")
    k.e("s_waitcnt lgkmcnt(0)")
    k.e("s_cmp_ge_u32 s2, 256")
    k.e("s_cbranch_scc1 k2_attn")
    k2_gemm1(k)
    k.label("k2_attn")
    k.vm = []
    k.lg = []
    k2_attn(k)
    k.label("k2_exit")
    k.e("s_endpgm")
    return k, 248, 65536, 512


def k3_store(k, g):
    k.c("---- store f32 partial tile")
    k.srd(SO, P_WS, WS_P, 5 * SLAB)
    k.e("s_lshl_b32 s28, s6, 2")
    k.e("s_add_u32 s28, s28, s%d" % S_W)
    k.e("s_mul_i32 s28, s28, %d" % (18 * 1024))
    k.e("s_mul_i32 s29, s5, %d" % SLAB)
    k.e("s_add_u32 s28, s28, s29")
    k.e("v_lshlrev_b32 v2, 4, v1")
    for mi in range(2):
        for j in range(9):
            n = mi * 9 + j
            k.vmem("buffer_store_dwordx4 %s, v2, s[%d:%d], s28 offen offset:%d" % (vr(g.acc(mi, j), 4), SO, SO + 3, (n % 4) * 1024))
            if n % 4 == 3:
                k.e("s_add_u32 s28, s28, 4096")
    k.e("s_endpgm")


def k3():
    k = K("k3")
    g = G(2)
    load_args(k)
    prologue_ids(k)
    k.e("s_cmp_ge_u32 s2, 320")
    k.e("s_cbranch_scc1 k3_exit")
    k.e("s_waitcnt lgkmcnt(0)")
    k.e("s_cmp_ge_u32 s2, 256")
    k.e("s_cbranch_scc1 k3_oproj")
    k.e("s_and_b32 s5, s2, 3")
    k.e("s_bfe_u32 s3, s2, 0x10002")
    k.e("s_lshl_b32 s3, s3, 3")
    k.e("s_lshr_b32 s4, s2, 5")
    k.e("s_add_u32 s3, s3, s4")
    k.e("s_bfe_u32 s4, s2, 0x20003")
    k.e("s_lshl_b32 s6, s3, 2")
    k.e("s_add_u32 s6, s6, s4")
    k.srd(SA, P_WS, WS_H, SZ_H)
    k.srd(SB, P_W2, 0, 4608 * 576 * 2)
    k.e("s_mul_i32 s%d, s5, %d" % (S_BOFF, 1152 * 1152))
    k.e("s_mul_i32 s28, s4, 288")
    k.e("s_add_u32 s%d, s%d, s28" % (S_BOFF, S_BOFF))
    k.e("s_mov_b32 s%d, 0" % S_AOFF)
    k.e("s_lshl_b32 s28, s3, 3")
    k.e("s_lshl_b32 s29, s%d, 1" % S_W)
    k.e("s_add_u32 s28, s28, s29")
    k.e("s_mul_i32 s28, s28, 144")
    k.e("s_mul_i32 s29, s5, 36")
    k.e("s_add_u32 s28, s28, s29")
    k.e("s_lshl_b32 s28, s28, 10")
    k.e("v_lshlrev_b32 v2, 4, v1")
    k.e("v_add_u32 v%d, s28, v2" % g.VA)
    k.e("v_add_u32 v%d, %d, v%d" % (g.VA + 1, 147456, g.VA))
    gemm_setup_b(k, g, 1152, False)
    gemm_main(k, g, 36, 1152, False, True)
    k3_store(k, g)
    k.label("k3_oproj")
    k.vm = []
    k.lg = []
    k.e("s_sub_u32 s6, s2, 256")
    k.e("s_and_b32 s4, s6, 3")
    k.e("s_lshr_b32 s3, s6, 2")
    k.e("s_lshl_b32 s3, s3, 7")
    k.e("s_mov_b32 s5, 4")
    k.srd(SA, P_WS, WS_O, SZ_X)
    k.srd(SB, P_WO, 0, 576 * 576 * 2)
    k.e("s_mul_i32 s%d, s4, 288" % S_BOFF)
    k.e("s_mov_b32 s%d, 0" % S_AOFF)
    a_offsets_rowmajor(k, g, 3, 1152)
    gemm_setup_b(k, g, 1152, True)
    gemm_main(k, g, 18, 1152, True, False)
    k3_store(k, g)
    k.label("k3_exit")
    k.e("s_endpgm")
    return k, 176, 3 * BUF, 320


def k4():
    k = K("k4")
    load_args(k)
    prologue_ids(k)
    k.e("s_cmp_ge_u32 s2, 384")
    k.e("s_cbranch_scc1 k4_exit")
    k.e("s_waitcnt lgkmcnt(0)")
    k.srd(SA, P_WS, WS_P, 5 * SLAB)
    k.srd(SB, P_WS, WS_G, 8192)
    k.srd(SX, P_B2, 0, 1152)
    k.srd(SO, P_OUT, 0, SZ_X)
    k.e("s_lshl_b32 s3, s2, 2")
    k.e("s_add_u32 s3, s3, s%d" % S_W)
    k.e("s_mul_i32 s4, s3, 43691")
    k.e("s_lshr_b32 s4, s4, 17")
    k.e("s_mul_i32 s5, s4, 3")
    k.e("s_sub_u32 s5, s3, s5")
    k.e("s_mul_i32 s5, s5, 3")
    k.e("s_mul_i32 s6, s4, 9")
    k.e("s_add_u32 s6, s6, s5")
    k.e("s_lshl_b32 s6, s6, 10")
    k.e("v_lshlrev_b32 v2, 4, v1")
    D = 16
    for sl in range(5):
        for jj in range(3):
            k.vmem("buffer_load_dwordx4 %s, v2, s[%d:%d], s6 offen offset:%d" % (vr(D + (sl * 3 + jj) * 4, 4), SA, SA + 3, jj * 1024))
        if sl < 4:
            k.e("s_add_u32 s6, s6, %d" % SLAB)
    k.e("s_lshr_b32 s7, s4, 5")
    k.e("s_lshl_b32 s7, s7, 7")
    k.e("s_and_b32 s28, s4, 7")
    k.e("s_lshl_b32 s28, s28, 4")
    k.e("s_add_u32 s7, s7, s28")
    k.e("s_bfe_u32 s28, s4, 0x20003")
    k.e("s_mul_i32 s28, s28, 144")
    k.e("s_lshl_b32 s29, s5, 4")
    k.e("s_add_u32 s28, s28, s29")
    k.e("s_lshl_b32 s28, s28, 1")
    k.e("v_and_b32 v3, 15, v1")
    k.e("v_add_u32 v3, s7, v3")
    k.e("v_lshlrev_b32 v4, 2, v3")
    k.vmem("buffer_load_dword v5, v4, s[%d:%d], 0 offen" % (SB, SB + 3))
    k.e("v_lshrrev_b32 v4, 4, v1")
    k.e("v_lshlrev_b32 v4, 3, v4")
    for jj in range(3):
        k.vmem("buffer_load_dwordx2 %s, v4, s[%d:%d], s28 offen offset:%d" % (vr(8 + 2 * jj, 2), SX, SX + 3, jj * 32))
    k.e("v_mul_u32_u24 v3, 1152, v3")
    k.e("v_add_u32 v3, v3, v4")
    k.wait(vm='*')
    k.e("v_sub_f32 v6, 1.0, v5")
    bf16_round(k, 6, 6, 6)
    for jj in range(3):
        b = D + jj * 4
        a = D + (12 + jj) * 4
        k.e("v_lshlrev_b32 v76, 16, v%d" % (8 + 2 * jj))
        k.e("v_and_b32 v77, 0xffff0000, v%d" % (8 + 2 * jj))
        k.e("v_lshlrev_b32 v78, 16, v%d" % (9 + 2 * jj))
        k.e("v_and_b32 v79, 0xffff0000, v%d" % (9 + 2 * jj))
        for r in range(4):
            k.e("v_add_f32 v%d, v%d, v%d" % (b + r, b + r, b + 12 + r))
            k.e("v_add_f32 v%d, v%d, v%d" % (b + 24 + r, b + 24 + r, b + 36 + r))
            k.e("v_add_f32 v%d, v%d, v%d" % (b + r, b + r, b + 24 + r))
        for x, y in ((b, b + 1), (b + 2, b + 3), (a, a + 1), (a + 2, a + 3)):
            k.e("v_cvt_pk_bf16_f32 v7, v%d, v%d" % (x, y))
            k.e("v_lshlrev_b32 v%d, 16, v7" % x)
            k.e("v_and_b32 v%d, 0xffff0000, v7" % y)
        for r in range(4):
            k.e("v_add_f32 v%d, v%d, v%d" % (b + r, b + r, 76 + r))
        for x, y in ((b, b + 1), (b + 2, b + 3)):
            k.e("v_cvt_pk_bf16_f32 v7, v%d, v%d" % (x, y))
            k.e("v_lshlrev_b32 v%d, 16, v7" % x)
            k.e("v_and_b32 v%d, 0xffff0000, v7" % y)
        for r in range(4):
            k.e("v_mul_f32 v%d, v6, v%d" % (b + r, b + r))
            k.e("v_mul_f32 v%d, v5, v%d" % (a + r, a + r))
        for x, y in ((b, b + 1), (b + 2, b + 3), (a, a + 1), (a + 2, a + 3)):
            k.e("v_cvt_pk_bf16_f32 v7, v%d, v%d" % (x, y))
            k.e("v_lshlrev_b32 v%d, 16, v7" % x)
            k.e("v_and_b32 v%d, 0xffff0000, v7" % y)
        for r in range(4):
            k.e("v_add_f32 v%d, v%d, v%d" % (b + r, b + r, a + r))
        k.e("v_cvt_pk_bf16_f32 v%d, v%d, v%d" % (a, b, b + 1))
        k.e("v_cvt_pk_bf16_f32 v%d, v%d, v%d" % (a + 1, b + 2, b + 3))
        k.vmem("buffer_store_dwordx2 %s, v3, s[%d:%d], s28 offen offset:%d" % (vr(a, 2), SO, SO + 3, jj * 32))
    k.label("k4_exit")
    k.e("s_endpgm")
    return k, 80, 0, 384


def emit(kernels):
    out = []
    hdr = open("cdna_kernels/%s.s.ref" % NAME).read().split("\n")
    for l in hdr:
        if l.startswith("; @launch") or l.startswith("; Override") or l.startswith("; grid="):
            continue
        if l.startswith(";"):
            out.append(l)
    for k, nv, lds, nwg in kernels:
        out.append("; @launch kernel=%s_kernel grid=(%d,1,1) block=(256,1,1) lds=%d" % (k.name, nwg, lds))
    out.append('.amdgcn_target "amdgcn-amd-amdhsa--gfx950"')
    out.append(".text")
    for k, nv, lds, nwg in kernels:
        out.append(".globl %s_kernel" % k.name)
        out.append(".p2align 8")
        out.append(".type %s_kernel,@function" % k.name)
        out.append("%s_kernel:" % k.name)
        out += k.L
    out.append('.section .rodata,"a"')
    for k, nv, lds, nwg in kernels:
        out.append(".p2align 6")
        out.append(".amdhsa_kernel %s_kernel" % k.name)
        out.append("  .amdhsa_next_free_vgpr %d" % nv)
        out.append("  .amdhsa_next_free_sgpr 96")
        out.append("  .amdhsa_accum_offset %d" % ((nv + 3) // 4 * 4))
        out.append("  .amdhsa_group_segment_fixed_size 0")
        out.append("  .amdhsa_kernarg_size 96")
        out.append("  .amdhsa_user_sgpr_count 2")
        out.append("  .amdhsa_user_sgpr_kernarg_segment_ptr 1")
        out.append("  .amdhsa_system_sgpr_workgroup_id_x 1")
        out.append(".end_amdhsa_kernel")
    return "\n".join(out) + "\n"


if __name__ == "__main__":
    ks = [k1(), k2(), k3(), k4()]
    open("cdna_kernels/%s.s" % NAME, "w").write(emit(ks))
    print("written")
```

```python
import math, struct, sys

NAME = "gated_mix__softmax_full_mha__mixer_channel_mlp__prompt"

def f32(x):
    return "0x%08x" % struct.unpack("<I", struct.pack("<f", x))[0]

WS_Y = 0x0
WS_G = 0x240000
WS_Q = 0x400000
WS_KV = 0x800000
WS_H = 0x1000000
WS_O = 0x2400000
WS_P = 0x2800000
WS_DIAG = 0x6000000
DIAG = False
SLAB = 2048 * 576 * 4
SZ_X = 2048 * 576 * 2
SZ_H = 2048 * 4608 * 2


class K:
    def __init__(self, name):
        self.name = name
        self.L = []
        self.vm = []
        self.lg = []
        self.nlabel = 0
        self.nstamp = 0
        self.block = 256

    def e(self, s):
        self.L.append("    " + s)

    def c(self, s):
        self.L.append("    ; " + s)

    def label(self, l):
        self.L.append(l + ":")

    def newlabel(self, p="L"):
        self.nlabel += 1
        return "%s_%s_%d" % (self.name[:6], p, self.nlabel)

    def vmem(self, s, tag=None):
        self.e(s)
        self.vm.append(tag)

    def ds(self, s, tag=None):
        self.e(s)
        self.lg.append(tag)

    def wait(self, vm=None, lg=None):
        parts = []
        if vm is not None:
            if vm == '*':
                n = 0
            else:
                idx = [i for i, t in enumerate(self.vm) if t == vm]
                n = len(self.vm) - 1 - idx[-1] if idx else None
            if n is not None:
                assert n <= 63
                parts.append("vmcnt(%d)" % n)
                self.vm = self.vm[len(self.vm) - n:] if n else []
        if lg is not None:
            if lg == '*':
                n = 0
            else:
                idx = [i for i, t in enumerate(self.lg) if t == lg]
                n = len(self.lg) - 1 - idx[-1] if idx else None
            if n is not None:
                assert n <= 15
                parts.append("lgkmcnt(%d)" % n)
                self.lg = self.lg[len(self.lg) - n:] if n else []
        if parts:
            self.e("s_waitcnt " + " ".join(parts))

    def stamp(self):
        if not DIAG:
            return
        i = self.nstamp
        self.nstamp += 1
        assert i < 8
        self.e("s_waitcnt lgkmcnt(0)")
        self.e("s_memtime s[%d:%d]" % (44 + 2 * i, 45 + 2 * i))
        self.e("s_waitcnt lgkmcnt(0)")
        self.lg = []

    def dump(self, kidx):
        if not DIAG:
            return
        self.stamp()
        l = self.newlabel("nd")
        self.e("s_cmp_lg_u32 s%d, 0" % S_W)
        self.e("s_cbranch_scc1 %s" % l)
        self.srd(88, P_WS, WS_DIAG + kidx * 65536, 65536)
        self.e("s_lshl_b32 s92, s2, 6")
        self.e("v_mov_b32 v2, s92")
        for i in range(self.nstamp):
            self.e("v_mov_b32 v3, s%d" % (44 + 2 * i))
            self.e("buffer_store_dword v3, v2, s[88:91], 0 offen offset:%d" % (4 * i))
        self.label(l)
        self.nstamp = 1

    def sel(self, d, a, b):
        self.e("s_mov_b32 s%d, %s" % (d, b))
        self.e("s_cmov_b32 s%d, %s" % (d, a))

    def srd(self, d, ptr, off, size):
        if off:
            self.e("s_add_u32 s%d, s%d, 0x%x" % (d, ptr, off))
            self.e("s_addc_u32 s%d, s%d, 0" % (d + 1, ptr + 1))
        else:
            self.e("s_mov_b32 s%d, s%d" % (d, ptr))
            self.e("s_mov_b32 s%d, s%d" % (d + 1, ptr + 1))
        self.e("s_mov_b32 s%d, 0x%x" % (d + 2, size))
        self.e("s_mov_b32 s%d, 0x00020000" % (d + 3))


def vr(a, n=1):
    return "v%d" % a if n == 1 else "v[%d:%d]" % (a, a + n - 1)


def sr(a, n=1):
    return "s%d" % a if n == 1 else "s[%d:%d]" % (a, a + n - 1)


P_X, P_WQKV, P_WO, P_BX, P_W1, P_B1, P_W2, P_B2, P_GW, P_OUT, P_DBG, P_WS = [64 + 2 * i for i in range(12)]


def load_args(k):
    k.e("s_load_dwordx8 s[64:71], s[0:1], 0")
    k.e("s_load_dwordx8 s[72:79], s[0:1], 32")
    k.e("s_load_dwordx8 s[80:87], s[0:1], 64")


BUF = 20480
SA, SB, SO, SX = 8, 12, 16, 20
S_WB, S_BOFF, S_AOFF, S_W = 24, 25, 26, 27


class G:
    def __init__(self, MT, LA=2, TW=4, CK=2, NBUF=3):
        self.MT = MT
        self.LA = LA
        self.TW = TW
        self.CK = CK
        self.NBUF = NBUF
        self.NP = -(-9 * CK // TW)
        self.BUF = 20480 if TW == 4 else 9216 * CK
        self.ACC = 16
        self.A = self.ACC + MT * 36
        self.B = self.A + 3 * MT * 4
        self.VA = self.B + 4 * (LA + 1)
        self.VD = self.VA + MT
        self.VL = self.VD + self.NP
        self.FREE = self.VL + 1

    def acc(self, i, j):
        return self.ACC + (i * 9 + j) * 4

    def a(self, ks, i):
        return self.A + ((ks % 3) * self.MT + i) * 4

    def b(self, t):
        return self.B + (t % (self.LA + 1)) * 4


def gemm_setup_b(k, g, rsb, bitswap):
    k.c("DMA source offsets")
    if g.TW == 4:
        k.e("s_mul_i32 s%d, s%d, 5120" % (S_WB, S_W))
        k.e("s_mul_i32 s28, s%d, 320" % S_W)
    else:
        P0 = 9 * g.CK - g.NP
        k.e("s_and_b32 s28, s%d, 1" % S_W)
        k.e("s_lshr_b32 s31, s%d, 1" % S_W)
        k.e("s_mul_i32 s31, s31, %d" % (g.NBUF * g.BUF))
        k.e("s_mul_i32 s%d, s28, %d" % (S_WB, P0 * 1024))
        k.e("s_add_u32 s%d, s%d, s31" % (S_WB, S_WB))
        k.e("s_mul_i32 s28, s28, %d" % (P0 * 64))
    for i in range(g.NP):
        k.e("s_add_u32 s29, s28, %d" % (i * 64))
        if i >= 3 and g.TW == 4:
            k.e("s_cmp_ge_u32 s29, 1152")
            k.e("s_cselect_b32 s30, 128, 0")
            k.e("s_sub_u32 s29, s29, s30")
        k.e("v_add_u32 v2, s29, v1")
        k.e("v_mul_u32_u24 v3, 3641, v2")
        k.e("v_lshrrev_b32 v3, 16, v3")
        k.e("v_mul_u32_u24 v4, 18, v3")
        k.e("v_sub_u32 v4, v2, v4")
        if bitswap:
            k.e("v_and_b32 v5, 0x33, v3")
            k.e("v_and_b32 v6, 4, v3")
            k.e("v_lshlrev_b32 v6, 1, v6")
            k.e("v_and_b32 v7, 8, v3")
            k.e("v_lshrrev_b32 v7, 1, v7")
            k.e("v_or3_b32 v3, v5, v6, v7")
        k.e("v_mul_u32_u24 v3, %d, v3" % rsb)
        k.e("v_lshlrev_b32 v4, 4, v4")
        k.e("v_add_u32 v3, v3, v4")
        if i % 4:
            k.e("v_subrev_u32 v%d, %d, v3" % (g.VD + i, (i % 4) * 1024))
        else:
            k.e("v_mov_b32 v%d, v3" % (g.VD + i))
    k.c("LDS tr-read lane address")
    k.e("v_lshrrev_b32 v2, 4, v1")
    k.e("v_and_b32 v3, 15, v1")
    k.e("v_lshrrev_b32 v4, 2, v3")
    if bitswap:
        k.e("v_lshrrev_b32 v5, 1, v2")
        k.e("v_lshlrev_b32 v5, 4, v5")
        k.e("v_and_b32 v6, 1, v2")
        k.e("v_lshlrev_b32 v6, 2, v6")
        k.e("v_add3_u32 v4, v4, v5, v6")
    else:
        k.e("v_lshlrev_b32 v5, 2, v2")
        k.e("v_add_u32 v4, v4, v5")
    k.e("v_mul_u32_u24 v4, 288, v4")
    k.e("v_and_b32 v3, 3, v3")
    k.e("v_lshlrev_b32 v3, 3, v3")
    k.e("v_add_u32 v%d, v4, v3" % g.VL)
    if g.TW != 4:
        k.e("v_add_u32 v%d, s31, v%d" % (g.VL, g.VL))


def gemm_dma_ops(k, g, c, rsb):
    buf = c % g.NBUF
    ops = []
    for i in range(g.NP):
        def op(i=i):
            k.e("s_add_u32 m0, s%d, %d" % (S_WB, buf * g.BUF + (i // 4) * 4096))
            k.e("s_nop 0")
            k.vmem("buffer_load_dwordx4 v%d, s[%d:%d], s%d offen offset:%d lds" % (g.VD + i, SB, SB + 3, S_BOFF, (i % 4) * 1024), ("D", c))
            if i == g.NP - 1:
                k.e("s_add_u32 s%d, s%d, %d" % (S_BOFF, S_BOFF, 32 * g.CK * rsb))
        ops.append(op)
    return ops


def gemm_main(k, g, KS, rsb, bitswap, afrag, extra=None):
    MT = g.MT
    NC = KS // g.CK
    HALF = (8 if bitswap else 16) * 288
    SPREAD = "nospread" not in sys.argv

    def aload_ops(ks):
        ops = []
        for i in range(MT):
            def op(i=i):
                if afrag:
                    k.vmem("buffer_load_dwordx4 %s, v%d, s[%d:%d], s%d offen" % (vr(g.a(ks, i), 4), g.VA + i, SA, SA + 3, S_AOFF), ("A", ks))
                    if i == MT - 1:
                        k.e("s_add_u32 s%d, s%d, 1024" % (S_AOFF, S_AOFF))
                else:
                    k.vmem("buffer_load_dwordx4 %s, v%d, s[%d:%d], s%d offen offset:%d" % (vr(g.a(ks, i), 4), g.VA + i, SA, SA + 3, S_AOFF, ks * 64), ("A", ks))
            ops.append(op)
        return ops

    def bread(t):
        ks, j = divmod(t, 9)
        off = ((ks // g.CK) % g.NBUF) * g.BUF + (ks % g.CK) * 9216 + j * 32
        b = g.b(t)
        k.ds("ds_read_b64_tr_b16 %s, v%d offset:%d" % (vr(b, 2), g.VL, off), ("B", t))
        k.ds("ds_read_b64_tr_b16 %s, v%d offset:%d" % (vr(b + 2, 2), g.VL, off + HALF), ("B", t))

    k.stamp()
    ops = gemm_dma_ops(k, g, 0, rsb) + aload_ops(0) + gemm_dma_ops(k, g, 1, rsb) + aload_ops(1)
    for c in range(2, g.NBUF):
        ops += gemm_dma_ops(k, g, c, rsb)
    for op in ops:
        op()
    k.c("zero accumulators")
    for r in range(MT * 36):
        k.e("v_mov_b32 v%d, 0" % (g.ACC + r))
    k.wait(vm=("D", 0))
    k.e("s_barrier")
    k.stamp()
    for t in range(g.LA):
        bread(t)
    NTS = KS * 9
    q = []
    for t in range(NTS):
        ks, j = divmod(t, 9)
        if j == 0 and ks + 2 < KS and "xA" not in sys.argv:
            q = aload_ops(ks + 2) + q
        if extra is not None:
            extra(ks, j)
        tn = t + g.LA
        if tn < NTS:
            if tn % (9 * g.CK) == 0:
                c = tn // (9 * g.CK)
                while any(True for _ in q):
                    q.pop(0)()
                k.wait(vm=("D", c), lg='*')
                if "xB" not in sys.argv:
                    k.e("s_barrier")
                if c + g.NBUF - 1 < NC and "xD" not in sys.argv:
                    q += gemm_dma_ops(k, g, c + g.NBUF - 1, rsb)
            bread(tn)
        if q:
            q.pop(0)()
            while q and not SPREAD:
                q.pop(0)()
        k.wait(lg=("B", t), vm=("A", ks) if j == 0 else None)
        for i in range(MT):
            a = g.acc(i, j)
            k.e("v_mfma_f32_16x16x32_bf16 %s, %s, %s, %s" % (vr(a, 4), vr(g.b(t), 4), vr(g.a(ks, i), 4), vr(a, 4)))
    assert not q
    k.e("s_nop 7")
    k.e("s_nop 7")
    k.stamp()


def prologue_ids(k):
    k.stamp()
    k.e("v_and_b32 v1, 63, v0")
    k.e("v_lshrrev_b32 v2, 6, v0")
    k.e("s_nop 0")
    k.e("v_readfirstlane_b32 s%d, v2" % S_W)


def a_offsets_rowmajor(k, g, s_m0, stride):
    k.e("s_mul_i32 s28, s%d, %d" % (S_W, 16 * g.MT))
    k.e("s_add_u32 s28, s28, s%d" % s_m0)
    k.e("v_and_b32 v2, 15, v1")
    k.e("v_add_u32 v2, s28, v2")
    k.e("v_mul_u32_u24 v2, %d, v2" % stride)
    k.e("v_lshrrev_b32 v3, 4, v1")
    k.e("v_lshlrev_b32 v3, 4, v3")
    k.e("v_add_u32 v2, v2, v3")
    for i in range(g.MT):
        k.e("v_add_u32 v%d, %d, v2" % (g.VA + i, i * 16 * stride))


def a_offsets_frag(k, g, s_mt, tile_bytes):
    k.e("s_mul_i32 s28, s%d, %d" % (S_W, g.MT))
    k.e("s_add_u32 s28, s28, s%d" % s_mt)
    k.e("s_mul_i32 s28, s28, %d" % tile_bytes)
    k.e("v_lshlrev_b32 v2, 4, v1")
    k.e("v_add_u32 v2, s28, v2")
    for i in range(g.MT):
        k.e("v_add_u32 v%d, %d, v2" % (g.VA + i, i * tile_bytes))


def bf16_round(k, d, s, t):
    k.e("v_cvt_pk_bf16_f32 v%d, v%d, v%d" % (t, s, s))
    k.e("v_lshlrev_b32 v%d, 16, v%d" % (d, t))


def red8(k, v, t):
    k.e("s_nop 1")
    k.e("v_add_f32_dpp v%d, v%d, v%d quad_perm:[1,0,3,2] row_mask:0xf bank_mask:0xf" % (t, v, v))
    k.e("s_nop 1")
    k.e("v_add_f32_dpp v%d, v%d, v%d quad_perm:[2,3,0,1] row_mask:0xf bank_mask:0xf" % (v, t, t))
    k.e("s_nop 1")
    k.e("v_add_f32_dpp v%d, v%d, v%d row_half_mirror row_mask:0xf bank_mask:0xf" % (t, v, v))
    k.e("v_mov_b32 v%d, v%d" % (v, t))


def k1_ln(k):
    k.c("---- LN / gate part")
    k.srd(SA, P_X, 0, SZ_X)
    k.srd(SB, P_GW, 0, 1152)
    k.srd(SO, P_WS, WS_Y, SZ_X)
    k.srd(SX, P_WS, WS_G, 8192)
    X, GW, F = 16, 52, 88
    k.e("s_lshl_b32 s28, s3, 5")
    k.e("s_lshl_b32 s29, s%d, 3" % S_W)
    k.e("s_add_u32 s28, s28, s29")
    k.e("v_lshrrev_b32 v2, 3, v1")
    k.e("v_add_u32 v2, s28, v2")
    k.e("v_and_b32 v3, 7, v1")
    k.e("v_lshlrev_b32 v4, 4, v3")
    k.e("v_mul_u32_u24 v5, 1152, v2")
    k.e("v_add_u32 v5, v5, v4")
    for i in range(9):
        k.vmem("buffer_load_dwordx4 %s, v5, s[%d:%d], 0 offen offset:%d" % (vr(X + 4 * i, 4), SA, SA + 3, i * 128))
    for i in range(9):
        k.vmem("buffer_load_dwordx4 %s, v4, s[%d:%d], 0 offen offset:%d" % (vr(GW + 4 * i, 4), SB, SB + 3, i * 128))
    k.wait(vm='*')
    for i in range(36):
        k.e("v_lshlrev_b32 v%d, 16, v%d" % (F + 2 * i, X + i))
        k.e("v_and_b32 v%d, 0xffff0000, v%d" % (F + 2 * i + 1, X + i))
    k.e("v_add_f32 v6, v%d, v%d" % (F, F + 1))
    k.e("v_add_f32 v7, v%d, v%d" % (F + 2, F + 3))
    for i in range(2, 36):
        k.e("v_add_f32 v%d, v%d, v%d" % (6 + (i & 1), 6 + (i & 1), F + 2 * i))
        k.e("v_add_f32 v%d, v%d, v%d" % (6 + (i & 1), 6 + (i & 1), F + 2 * i + 1))
    k.e("v_add_f32 v6, v6, v7")
    red8(k, 6, 7)
    k.e("v_mul_f32 v6, %s, v6" % f32(1.0 / 576))
    k.e("v_mov_b32 v10, 0")
    k.e("v_mov_b32 v11, 0")
    for i in range(36):
        k.e("v_lshlrev_b32 v8, 16, v%d" % (GW + i))
        k.e("v_and_b32 v9, 0xffff0000, v%d" % (GW + i))
        k.e("v_mul_f32 v8, v8, v%d" % (F + 2 * i))
        k.e("v_mul_f32 v9, v9, v%d" % (F + 2 * i + 1))
        k.e("v_cvt_pk_bf16_f32 v8, v8, v9")
        k.e("v_and_b32 v9, 0xffff0000, v8")
        k.e("v_lshlrev_b32 v8, 16, v8")
        k.e("v_add_f32 v10, v10, v8")
        k.e("v_add_f32 v11, v11, v9")
    k.e("v_add_f32 v10, v10, v11")
    red8(k, 10, 11)
    bf16_round(k, 10, 10, 10)
    k.e("v_mul_f32 v10, %s, v10" % f32(-math.log2(math.e)))
    k.e("v_exp_f32 v10, v10")
    k.e("s_nop 0")
    k.e("v_add_f32 v10, 1.0, v10")
    k.e("v_rcp_f32 v10, v10")
    k.e("s_nop 0")
    bf16_round(k, 10, 10, 10)
    k.e("v_lshlrev_b32 v11, 2, v2")
    k.e("v_cmp_eq_u32 vcc, 0, v3")
    k.e("s_and_saveexec_b64 s[30:31], vcc")
    k.vmem("buffer_store_dword v10, v11, s[%d:%d], 0 offen" % (SX, SX + 3))
    k.e("s_mov_b64 exec, s[30:31]")
    k.e("v_mov_b32 v8, 0")
    k.e("v_mov_b32 v9, 0")
    for i in range(72):
        k.e("v_sub_f32 v12, v%d, v6" % (F + i))
        k.e("v_fma_f32 v%d, v12, v12, v%d" % (8 + (i & 1), 8 + (i & 1)))
    k.e("v_add_f32 v8, v8, v9")
    red8(k, 8, 9)
    k.e("v_mul_f32 v8, %s, v8" % f32(1.0 / 576))
    bf16_round(k, 8, 8, 8)
    k.e("v_add_f32 v8, %s, v8" % f32(1e-5))
    bf16_round(k, 8, 8, 8)
    k.e("v_sqrt_f32 v8, v8")
    k.e("s_nop 0")
    bf16_round(k, 8, 8, 8)
    k.e("v_rcp_f32 v9, v8")
    bf16_round(k, 6, 6, 6)
    for i in range(36):
        a, b = F + 2 * i, F + 2 * i + 1
        k.e("v_sub_f32 v%d, v%d, v6" % (a, a))
        k.e("v_sub_f32 v%d, v%d, v6" % (b, b))
        k.e("v_cvt_pk_bf16_f32 v12, v%d, v%d" % (a, b))
        k.e("v_lshlrev_b32 v%d, 16, v12" % a)
        k.e("v_and_b32 v%d, 0xffff0000, v12" % b)
        for x, q, e in ((a, 12, 13), (b, 14, 15)):
            k.e("v_mul_f32 v%d, v%d, v9" % (q, x))
            k.e("v_fma_f32 v%d, -v%d, v8, v%d" % (e, q, x))
            k.e("v_fma_f32 v%d, v%d, v9, v%d" % (q, e, q))
        k.e("v_cvt_pk_bf16_f32 v%d, v12, v14" % (X + i))
    k.e("v_lshrrev_b32 v5, 4, v2")
    k.e("v_mul_u32_u24 v5, 18432, v5")
    k.e("v_lshrrev_b32 v4, 2, v3")
    k.e("v_lshlrev_b32 v4, 10, v4")
    k.e("v_add_u32 v5, v5, v4")
    k.e("v_and_b32 v4, 3, v3")
    k.e("v_lshlrev_b32 v4, 8, v4")
    k.e("v_add_u32 v5, v5, v4")
    k.e("v_and_b32 v4, 15, v2")
    k.e("v_lshlrev_b32 v4, 4, v4")
    k.e("v_add_u32 v5, v5, v4")
    for i in range(9):
        k.e("s_mov_b32 s28, %d" % ((i >> 1) * 4096))
        k.vmem("buffer_store_dwordx4 %s, v5, s[%d:%d], s28 offen offset:%d" % (vr(X + 4 * i, 4), SO, SO + 3, (i & 1) * 2048))
    k.dump(0)
    k.e("s_endpgm")


def k1():
    k = K("k1")
    g = G(2)
    load_args(k)
    prologue_ids(k)
    k.e("s_cmp_ge_u32 s2, 256")
    k.e("s_cbranch_scc1 k1_exit")
    k.e("s_waitcnt lgkmcnt(0)")
    k.e("s_cmp_lt_u32 s2, 192")
    k.e("s_cbranch_scc1 k1_gemm")
    k.e("s_sub_u32 s3, s2, 192")
    k1_ln(k)
    k.label("k1_gemm")
    k.vm = []
    k.lg = []
    k.e("s_and_b32 s3, s2, 15")
    k.e("s_lshl_b32 s3, s3, 7")
    k.e("s_lshr_b32 s4, s2, 4")
    k.srd(SA, P_X, 0, SZ_X)
    k.srd(SB, P_WQKV, 0, 576 * 1728 * 2)
    k.e("s_mul_i32 s%d, s4, 288" % S_BOFF)
    k.e("s_mov_b32 s%d, 0" % S_AOFF)
    a_offsets_rowmajor(k, g, 3, 1152)
    gemm_setup_b(k, g, 3456, True)
    gemm_main(k, g, 18, 3456, True, False)
    k.c("---- QKV epilogue")
    k.e("s_lshr_b32 s5, s4, 2")
    k.e("s_and_b32 s6, s4, 3")
    k.e("s_lshl_b32 s6, s6, 3")
    k.e("s_cmp_eq_u32 s5, 0")
    k.sel(28, "0x%x" % WS_Q, "0x%x" % WS_KV)
    k.sel(29, "0x%x" % (4 << 20), "0x%x" % (8 << 20))
    k.sel(32, 131072, 262144)
    k.sel(33, 2048, 4096)
    k.sel(38, f32(18 ** -0.5 * math.log2(math.e)), "1.0")
    k.e("s_add_u32 s%d, s%d, s28" % (SO, P_WS))
    k.e("s_addc_u32 s%d, s%d, 0" % (SO + 1, P_WS + 1))
    k.e("s_mov_b32 s%d, s29" % (SO + 2))
    k.e("s_mov_b32 s%d, 0x00020000" % (SO + 3))
    k.e("s_cmp_eq_u32 s5, 2")
    k.sel(34, 32, 1024)
    k.sel(35, 16, 512)
    k.sel(36, 2048, 0)
    k.sel(37, 64, 16)
    T = g.A
    k.e("s_lshl_b32 s28, s%d, 5" % S_W)
    k.e("s_add_u32 s28, s28, s3")
    k.e("s_lshr_b32 s28, s28, 5")
    k.e("s_mul_i32 s28, s28, s33")
    k.e("s_add_u32 s28, s28, s36")
    k.e("s_mul_i32 s29, s6, s32")
    k.e("s_add_u32 s28, s28, s29")
    k.e("v_and_b32 v2, 15, v1")
    k.e("v_mul_lo_u32 v10, v2, s37")
    k.e("v_add_u32 v10, s28, v10")
    k.e("s_lshl_b32 s29, s37, 4")
    k.e("v_add_u32 v11, s29, v10")
    k.e("v_lshrrev_b32 v3, 4, v1")
    k.e("v_lshlrev_b32 v3, 2, v3")
    for j in range(9):
        for pp in range(2):
            k.e("v_add_u32 v4, %d, v3" % (16 * j + 2 * pp))
            k.e("v_mul_u32_u24 v5, 3641, v4")
            k.e("v_lshrrev_b32 v5, 16, v5")
            k.e("v_mul_u32_u24 v6, 18, v5")
            k.e("v_sub_u32 v6, v4, v6")
            k.e("v_mul_lo_u32 v5, v5, s32")
            k.e("v_lshrrev_b32 v7, 4, v6")
            k.e("v_mul_lo_u32 v7, v7, s34")
            k.e("v_add_u32 v5, v5, v7")
            k.e("v_bfe_u32 v7, v6, 3, 1")
            k.e("v_mul_lo_u32 v7, v7, s35")
            k.e("v_add_u32 v5, v5, v7")
            k.e("v_and_b32 v7, 7, v6")
            k.e("v_lshlrev_b32 v7, 1, v7")
            k.e("v_add_u32 v5, v5, v7")
            for mi in range(2):
                a = g.acc(mi, j) + 2 * pp
                d = T + (j * 4 + pp * 2 + mi) % 16 * 2
                k.e("v_mul_f32 v%d, s38, v%d" % (a, a))
                k.e("v_mul_f32 v%d, s38, v%d" % (a + 1, a + 1))
                k.e("v_cvt_pk_bf16_f32 v%d, v%d, v%d" % (a, a, a + 1))
                k.e("v_add_u32 v%d, v5, v%d" % (a + 1, 10 + mi))
                k.vmem("buffer_store_dword v%d, v%d, s[%d:%d], 0 offen" % (a, a + 1, SO, SO + 3))
    k.dump(0)
    k.e("s_cmp_eq_u32 s5, 0")
    k.e("s_cbranch_scc1 k1_exit")
    k.e("v_and_b32 v2, 127, v0")
    k.e("v_add_u32 v2, s3, v2")
    k.e("v_lshrrev_b32 v3, 5, v2")
    k.e("v_mul_lo_u32 v3, v3, s33")
    k.e("v_and_b32 v2, 31, v2")
    k.e("v_mul_lo_u32 v2, v2, s37")
    k.e("v_add_u32 v2, v2, v3")
    k.e("v_lshrrev_b32 v3, 7, v0")
    k.e("v_lshlrev_b32 v3, 2, v3")
    k.e("v_add_u32 v3, s6, v3")
    k.e("v_mul_lo_u32 v3, v3, s32")
    k.e("v_add_u32 v2, v2, v3")
    k.e("s_add_u32 s28, s34, s36")
    k.e("v_add_u32 v2, s28, v2")
    k.e("v_add_u32 v3, s35, v2")
    k.e("v_add_u32 v2, 4, v2")
    k.e("v_mov_b32 v4, 0x3f803f80")
    for r in (5, 6, 8, 9, 10, 11):
        k.e("v_mov_b32 v%d, 0" % r)
    k.e("s_mov_b32 s28, 0")
    for h in range(4):
        k.vmem("buffer_store_dwordx3 v[4:6], v2, s[%d:%d], s28 offen" % (SO, SO + 3))
        k.vmem("buffer_store_dwordx4 v[8:11], v3, s[%d:%d], s28 offen" % (SO, SO + 3))
        k.e("s_add_u32 s28, s28, s32")
    k.label("k1_exit")
    k.e("s_endpgm")
    return k, 176, 3 * BUF, 256


def k2_gemm1(k):
    g = G(4, 3)
    BIAS = g.FREE
    k.c("---- GEMM1: wg s3 = s2-256 in 0..255")
    k.e("s_and_b32 s3, s2, 255")
    k.e("s_and_b32 s4, s3, 7")
    k.e("s_lshl_b32 s4, s4, 2")
    k.e("s_bfe_u32 s5, s3, 0x20003")
    k.e("s_add_u32 s4, s4, s5")
    k.e("s_lshr_b32 s3, s3, 5")
    k.e("s_lshl_b32 s3, s3, 4")
    k.srd(SA, P_WS, WS_Y, SZ_X)
    k.srd(SB, P_W1, 0, 576 * 4608 * 2)
    k.srd(SO, P_WS, WS_H, SZ_H)
    k.srd(SX, P_B1, 0, 9216)
    k.e("s_mul_i32 s%d, s4, 288" % S_BOFF)
    k.e("s_mov_b32 s%d, 0" % S_AOFF)
    k.e("v_lshrrev_b32 v2, 4, v1")
    k.e("v_lshlrev_b32 v2, 3, v2")
    for j in range(9):
        k.vmem("buffer_load_dwordx2 %s, v2, s[%d:%d], s%d offen offset:%d" % (vr(BIAS + 2 * j, 2), SX, SX + 3, S_BOFF, j * 32), "bias")
    a_offsets_frag(k, g, 3, 18432)
    gemm_setup_b(k, g, 9216, True)
    gemm_main(k, g, 18, 9216, True, True)
    k.c("---- GELU epilogue")
    c0 = -2.0 * math.log2(math.e) * math.sqrt(2.0 / math.pi)
    c1 = c0 * 0.044715
    T = g.A
    for r, c in ((8, c1), (9, c1), (10, c0), (11, c0), (12, 1.0), (13, 1.0)):
        k.e("v_mov_b32 v%d, %s" % (r, f32(c)))
    k.e("s_lshl_b32 s29, s%d, 2" % S_W)
    k.e("s_add_u32 s28, s3, s29")
    k.e("s_mul_i32 s28, s28, 147456")
    k.e("v_lshlrev_b32 v2, 4, v1")
    k.e("v_add_u32 v2, s28, v2")
    for mi in range(4):
        k.e("v_add_u32 v%d, %d, v2" % (g.VA + mi, mi * 147456))
    k.e("s_mul_i32 s30, s4, 9")
    n = 0
    for j in range(9):
        k.e("s_add_u32 s31, s30, %d" % j)
        k.e("s_lshr_b32 s32, s31, 1")
        k.e("s_lshl_b32 s32, s32, 10")
        k.e("s_and_b32 s31, s31, 1")
        k.e("s_lshl_b32 s31, s31, 3")
        k.e("s_add_u32 s32, s32, s31")
        b = BIAS + 2 * j
        k.e("v_lshlrev_b32 v4, 16, v%d" % b)
        k.e("v_and_b32 v5, 0xffff0000, v%d" % b)
        k.e("v_lshlrev_b32 v6, 16, v%d" % (b + 1))
        k.e("v_and_b32 v7, 0xffff0000, v%d" % (b + 1))
        for mp in range(2):
            aa = [g.acc(2 * mp + q, j) for q in range(2)]
            tt = [T + ((n + q) % 4) * 8 for q in range(2)]
            n += 2
            prs = [(a + h, t + h, 4 + h) for a, t in zip(aa, tt) for h in (0, 2)]
            for a, t, bb in prs:
                k.e("v_pk_add_f32 %s, %s, %s" % (vr(a, 2), vr(a, 2), vr(bb, 2)))
            for a, t, bb in prs:
                k.e("v_pk_mul_f32 %s, %s, %s" % (vr(t, 2), vr(a, 2), vr(a, 2)))
            for a, t, bb in prs:
                k.e("v_pk_fma_f32 %s, %s, v[8:9], v[10:11]" % (vr(t, 2), vr(t, 2)))
            for a, t, bb in prs:
                k.e("v_pk_mul_f32 %s, %s, %s" % (vr(t, 2), vr(t, 2), vr(a, 2)))
            for a, t, bb in prs:
                k.e("v_exp_f32 v%d, v%d" % (t, t))
                k.e("v_exp_f32 v%d, v%d" % (t + 1, t + 1))
            for a, t, bb in prs:
                k.e("v_pk_add_f32 %s, %s, v[12:13]" % (vr(t, 2), vr(t, 2)))
            for a, t, bb in prs:
                k.e("v_rcp_f32 v%d, v%d" % (t, t))
                k.e("v_rcp_f32 v%d, v%d" % (t + 1, t + 1))
            for a, t, bb in prs:
                k.e("v_pk_mul_f32 %s, %s, %s" % (vr(t, 2), vr(t, 2), vr(a, 2)))
            for q in range(2):
                t = tt[q]
                k.e("v_cvt_pk_bf16_f32 v%d, v%d, v%d" % (t + 4, t, t + 1))
                k.e("v_cvt_pk_bf16_f32 v%d, v%d, v%d" % (t + 5, t + 2, t + 3))
                k.vmem("buffer_store_dwordx2 %s, v%d, s[%d:%d], s32 offen" % (vr(t + 4, 2), g.VA + 2 * mp + q, SO, SO + 3))
    k.dump(1)
    k.e("s_endpgm")


def attn(k, half, kidx):
    N = k.name
    O, S0, S1, P0, P1, Q, KR, VR = 16, 32, 48, 64, 72, 80, 88, 104
    SS, PP = (S0, S1), (P0, P1)
    VKC, VVC, VKN, VVN, VKB, VVB, VDM = 120, 121, 122, 123, 124, 125, 126
    S_NB, S_DOFF, S_CNT, S_FLAG, S_T = 28, 29, 30, 31, 32
    LOMASK = 40
    k.c("---- attention: wg s3 in 0..255")
    k.e("s_and_b32 s3, s2, 255")
    k.e("s_and_b32 s4, s3, 7")
    k.e("s_lshr_b32 s5, s3, 6")
    k.e("s_lshl_b32 s5, s5, 3")
    k.e("s_add_u32 s4, s4, s5")
    k.e("s_bfe_u32 s5, s3, 0x30003")
    k.e("s_lshl_b32 s5, s5, 2")
    k.e("s_add_u32 s5, s5, s%d" % S_W)
    k.e("s_add_u32 s5, s5, %d" % (half * 32))
    k.srd(SA, P_WS, WS_Q, 4 << 20)
    k.srd(SB, P_WS, WS_KV, 8 << 20)
    k.srd(SO, P_WS, WS_O, SZ_X)
    k.e("s_mov_b32 s%d, -1" % LOMASK)
    k.e("s_mov_b32 s%d, 0" % (LOMASK + 1))
    k.e("s_mov_b32 s%d, 0" % S_FLAG)
    k.e("s_lshl_b32 s%d, s%d, 12" % (S_WB, S_W))
    k.e("s_lshl_b32 s%d, s4, 18" % S_DOFF)
    k.e("s_mov_b32 s33, s%d" % S_DOFF)
    k.e("v_lshlrev_b32 v2, 4, v1")
    k.e("v_add_u32 v%d, s%d, v2" % (VDM, S_WB))

    def dma(m0expr):
        k.e(m0expr)
        k.e("s_nop 0")
        for i in range(4):
            k.e("buffer_load_dwordx4 v%d, s[%d:%d], s%d offen offset:%d lds" % (VDM, SB, SB + 3, S_DOFF, i * 1024))
        k.e("s_add_u32 s%d, s%d, 16384" % (S_DOFF, S_DOFF))
    dma("s_mov_b32 m0, s%d" % S_WB)
    k.e("s_lshl_b32 s34, s4, 6")
    k.e("s_add_u32 s34, s34, s5")
    k.e("s_lshl_b32 s34, s34, 11")
    for u in (0, 1):
        k.e("buffer_load_dwordx4 %s, v2, s[%d:%d], s34 offen offset:%d" % (vr(Q + 4 * u, 4), SA, SA + 3, u * 1024))
    dma("s_add_u32 m0, s%d, 16384" % S_WB)
    k.e("v_mov_b32 v%d, v2" % VKB)
    k.e("v_lshrrev_b32 v3, 5, v1")
    k.e("v_lshlrev_b32 v3, 2, v3")
    k.e("v_bfe_u32 v4, v1, 2, 2")
    k.e("v_add_u32 v3, v3, v4")
    k.e("v_lshlrev_b32 v3, 6, v3")
    k.e("v_bfe_u32 v4, v1, 4, 1")
    k.e("v_lshlrev_b32 v4, 5, v4")
    k.e("v_and_b32 v5, 3, v1")
    k.e("v_lshlrev_b32 v5, 3, v5")
    k.e("v_add3_u32 v3, v3, v4, v5")
    k.e("v_add_u32 v%d, 2048, v3" % VVB)
    k.e("v_mov_b32 v%d, v%d" % (VKC, VKB))
    k.e("v_mov_b32 v%d, v%d" % (VVC, VVB))
    k.e("v_add_u32 v%d, 16384, v%d" % (VKN, VKB))
    k.e("v_add_u32 v%d, 16384, v%d" % (VVN, VVB))
    k.e("s_mov_b32 s%d, 16384" % S_NB)
    for r in list(range(O, O + 16)) + list(range(P1, P1 + 8)) + list(range(VR + 8, VR + 16)):
        k.e("v_mov_b32 v%d, 0" % r)
    k.e("s_waitcnt vmcnt(4)")
    k.e("v_cndmask_b32 v%d, 0, v%d, s[%d:%d]" % (Q + 4, Q + 4, LOMASK, LOMASK + 1))
    for r in (5, 6, 7):
        k.e("v_mov_b32 v%d, 0" % (Q + r))
    k.e("s_barrier")
    k.stamp()

    def ldk(buf, va, tile):
        for u in (0, 1):
            k.e("ds_read_b128 %s, v%d offset:%d" % (vr(KR + 8 * buf + 4 * u, 4), va, tile * 4096 + u * 1024))

    def ldv(buf, va, tile):
        for u in (0, 1):
            for h in (0, 1):
                k.e("ds_read_b64_tr_b16 %s, v%d offset:%d" % (vr(VR + 8 * buf + 4 * u + 2 * h, 2), va, tile * 4096 + u * 1024 + h * 512))

    def qk(S, kb, part):
        if part == 0:
            return "v_mfma_f32_32x32x16_bf16 %s, %s, %s, 0" % (vr(S, 16), vr(KR + 8 * kb, 4), vr(Q, 4))
        return "v_mfma_f32_32x32x16_bf16 %s, %s, %s, %s" % (vr(S, 16), vr(KR + 8 * kb + 4, 4), vr(Q + 4, 4), vr(S, 16))

    def pv(vb, P, u):
        return "v_mfma_f32_32x32x16_bf16 %s, %s, %s, %s" % (vr(O, 16), vr(VR + 8 * vb + 4 * u, 4), vr(P + 4 * u, 4), vr(O, 16))

    def softmax_ops(S, P):
        e = lambda i: "v_exp_f32 v%d, v%d" % (S + i, S + i)
        c = lambda i: "v_cvt_pk_bf16_f32 v%d, v%d, v%d" % (P + i, S + 2 * i, S + 2 * i + 1)
        ops = [e(0), e(1), e(2), e(3), c(0)]
        for i in range(1, 7):
            ops += [e(2 * i + 2), e(2 * i + 3), c(i)]
        ops += [c(7)]
        return ops

    def phase(S, P, mf):
        ops = softmax_ops(S, P)
        for i, o in enumerate(ops):
            if i % 6 == 0 and i // 6 < len(mf):
                k.e(mf[i // 6])
            k.e(o)

    def rowmax(S, first, M):
        k.e("v_max3_f32 v2, v%d, v%d, v%d" % (S, S + 1, S + 2))
        for i in range(3, 15, 2):
            k.e("v_max3_f32 v2, v2, v%d, v%d" % (S + i, S + i + 1))
        if first:
            k.e("v_max_f32 v%d, v2, v%d" % (M, S + 15))
        else:
            k.e("v_max3_f32 v%d, v2, v%d, v%d" % (M, S + 15, M))

    def patch(M):
        k.e("v_mov_b32 v3, v%d" % M)
        k.e("v_mov_b32 v4, v%d" % M)
        k.e("s_nop 1")
        k.e("v_permlane32_swap_b32 v3, v4")
        k.e("s_nop 1")
        k.e("v_max_f32 v3, v3, v4")
        k.e("v_sub_f32 v3, 0, v3")
        k.e("v_cvt_pk_bf16_f32 v4, v3, v3")
        k.e("v_lshlrev_b32 v4, 16, v4")
        k.e("v_sub_f32 v3, v3, v4")
        k.e("v_cvt_pk_bf16_f32 v3, v4, v3")
        k.e("v_cndmask_b32 v%d, 0, v3, s[%d:%d]" % (Q + 5, LOMASK, LOMASK + 1))

    ldk(0, VKC, 0)
    ldk(1, VKC, 1)
    k.e("s_waitcnt lgkmcnt(0)")
    k.e(qk(S0, 0, 0))
    k.e(qk(S0, 0, 1))
    k.e("s_nop 7")
    k.e("s_nop 7")
    rowmax(S0, True, 6)
    patch(6)
    k.e("s_nop 1")
    k.e(qk(S0, 0, 0))
    k.e(qk(S0, 0, 1))
    k.e("s_nop 7")
    k.e("s_nop 7")
    k.stamp()
    k.e("s_mov_b32 s%d, 16" % S_CNT)
    k.label(N + "_aloop")
    for tt in range(4):
        k.e("s_waitcnt lgkmcnt(0)")
        if tt == 2:
            k.e("s_waitcnt vmcnt(0)")
            k.e("s_barrier")
            k.e("s_add_u32 s%d, s%d, 16384" % (S_T, S_NB))
            k.e("s_cmp_eq_u32 s%d, 49152" % S_T)
            k.e("s_cmov_b32 s%d, 0" % S_T)
            dma("s_add_u32 m0, s%d, s%d" % (S_T, S_WB))
        if tt + 2 < 4:
            ldk(tt & 1, VKC, tt + 2)
        else:
            ldk(tt & 1, VKN, tt - 2)
        ldv(tt & 1, VVC, tt)
        o = (tt + 1) & 1
        phase(SS[tt & 1], PP[tt & 1], [qk(SS[o], o, 0), qk(SS[o], o, 1), pv(o, PP[o], 0), pv(o, PP[o], 1)])
    k.e("v_mov_b32 v%d, v%d" % (VKC, VKN))
    k.e("v_mov_b32 v%d, v%d" % (VVC, VVN))
    k.e("s_mov_b32 s%d, s%d" % (S_NB, S_T))
    k.e("v_add_u32 v%d, s%d, v%d" % (VKN, S_NB, VKB))
    k.e("v_add_u32 v%d, s%d, v%d" % (VVN, S_NB, VVB))
    k.e("s_sub_u32 s%d, s%d, 1" % (S_CNT, S_CNT))
    k.e("s_cmp_lg_u32 s%d, 0" % S_CNT)
    k.e("s_cbranch_scc1 %s_aloop" % N)
    k.e("s_waitcnt lgkmcnt(0)")
    k.e(pv(1, P1, 0))
    k.e(pv(1, P1, 1))
    k.stamp()
    k.label(N + "_fin")
    k.e("s_waitcnt vmcnt(0) lgkmcnt(0)")
    k.e("s_nop 7")
    k.e("s_nop 7")
    k.e("v_mov_b32 v8, v%d" % (O + 10))
    k.e("v_mov_b32 v9, v%d" % (O + 10))
    k.e("s_nop 1")
    k.e("v_permlane32_swap_b32 v8, v9")
    k.e("s_nop 1")
    k.e("s_cmp_lg_u32 s%d, 0" % S_FLAG)
    k.e("s_cbranch_scc1 %s_store" % N)
    k.e("v_mov_b32 v3, %s" % f32(2.0 ** 40))
    k.e("v_cmp_nlt_f32 vcc, v8, v3")
    k.e("s_cbranch_vccnz %s_fallback" % N)
    k.label(N + "_store")
    k.e("v_rcp_f32 v8, v8")
    k.e("s_lshl_b32 s34, s5, 5")
    k.e("v_and_b32 v2, 31, v1")
    k.e("v_add_u32 v2, s34, v2")
    k.e("v_lshrrev_b32 v3, 4, v2")
    k.e("v_mul_u32_u24 v3, 18432, v3")
    k.e("v_and_b32 v2, 15, v2")
    k.e("v_lshlrev_b32 v2, 4, v2")
    k.e("v_add_u32 v2, v2, v3")
    k.e("s_mul_i32 s35, s4, 18")
    k.e("v_lshrrev_b32 v3, 5, v1")
    k.e("v_lshlrev_b32 v3, 2, v3")
    k.e("v_add_u32 v3, s35, v3")
    AD = S0
    for r, dd in enumerate((0, 2, 8, 10, 16)):
        k.e("v_add_u32 v4, %d, v3" % dd)
        k.e("v_lshrrev_b32 v5, 5, v4")
        k.e("v_lshlrev_b32 v5, 10, v5")
        k.e("v_bfe_u32 v6, v4, 3, 2")
        k.e("v_lshlrev_b32 v6, 8, v6")
        k.e("v_and_b32 v4, 7, v4")
        k.e("v_lshlrev_b32 v4, 1, v4")
        k.e("v_add3_u32 v4, v4, v5, v6")
        k.e("v_add_u32 v%d, v4, v2" % (AD + r))
    for r in range(10):
        k.e("v_mul_f32 v%d, v%d, v8" % (O + r, O + r))
    for r in range(5):
        k.e("v_cvt_pk_bf16_f32 v%d, v%d, v%d" % (O + r, O + 2 * r, O + 2 * r + 1))
    for r in range(4):
        k.e("buffer_store_dword v%d, v%d, s[%d:%d], 0 offen" % (O + r, AD + r, SO, SO + 3))
    k.e("s_mov_b64 exec, s[%d:%d]" % (LOMASK, LOMASK + 1))
    k.e("buffer_store_dword v%d, v%d, s[%d:%d], 0 offen" % (O + 4, AD + 4, SO, SO + 3))
    k.e("s_mov_b64 exec, -1")
    k.dump(kidx)
    k.e("s_endpgm")
    k.label(N + "_fallback")
    k.e("s_mov_b32 s%d, 1" % S_FLAG)
    k.e("v_mov_b32 v%d, 0" % (Q + 5))
    k.e("v_mov_b32 v6, 0xff800000")
    k.e("s_add_u32 s38, s%d, 49152" % S_WB)
    k.e("v_lshlrev_b32 v12, 4, v1")
    k.e("v_add_u32 v13, s38, v%d" % VKB)
    k.e("v_add_u32 v14, s38, v%d" % VVB)
    for ps in (0, 1):
        k.e("s_mov_b32 s%d, s33" % S_DOFF)
        k.e("s_mov_b32 s%d, 64" % S_CNT)
        k.label("%s_fb%d" % (N, ps))
        k.e("s_mov_b32 m0, s38")
        k.e("s_nop 0")
        for i in range(4):
            k.e("buffer_load_dwordx4 v12, s[%d:%d], s%d offen offset:%d lds" % (SB, SB + 3, S_DOFF, i * 1024))
        k.e("s_add_u32 s%d, s%d, 4096" % (S_DOFF, S_DOFF))
        k.e("s_waitcnt vmcnt(0)")
        ldk(0, 13, 0)
        if ps:
            ldv(0, 14, 0)
        k.e("s_waitcnt lgkmcnt(0)")
        k.e(qk(S0, 0, 0))
        k.e(qk(S0, 0, 1))
        k.e("s_nop 7")
        k.e("s_nop 7")
        if ps == 0:
            rowmax(S0, False, 6)
        else:
            for o in softmax_ops(S0, P0):
                k.e(o)
            k.e("s_nop 1")
            k.e(pv(0, P0, 0))
            k.e(pv(0, P0, 1))
        k.e("s_sub_u32 s%d, s%d, 1" % (S_CNT, S_CNT))
        k.e("s_cmp_lg_u32 s%d, 0" % S_CNT)
        k.e("s_cbranch_scc1 %s_fb%d" % (N, ps))
        if ps == 0:
            patch(6)
            for r in range(16):
                k.e("v_mov_b32 v%d, 0" % (O + r))
            k.e("s_nop 1")
    k.e("s_branch %s_fin" % N)


def mixed_kernel(name, half, kidx, gemm, nv, lds):
    k = K(name)
    load_args(k)
    prologue_ids(k)
    k.e("s_cmp_ge_u32 s2, 512")
    k.e("s_cbranch_scc1 %s_exit" % name)
    k.e("s_waitcnt lgkmcnt(0)")
    if "noattn" in sys.argv:
        k.e("s_cmp_lt_u32 s2, 256")
        k.e("s_cbranch_scc1 %s_exit" % name)
    k.e("s_cmp_lt_u32 s2, 256")
    k.e("s_cbranch_scc1 %s_attn" % name)
    if "nogemm" in sys.argv:
        k.e("s_branch %s_exit" % name)
    gemm(k)
    k.label(name + "_attn")
    k.vm = []
    k.lg = []
    attn(k, half, kidx)
    k.label(name + "_exit")
    k.e("s_endpgm")
    return k, nv, lds, 512


def k2():
    return mixed_kernel("k2", 0, 1, k2_gemm1, 252, 65536)


NSLAB = 4


def k3_gemm2(k):
    g = G(4, 3, 2, 1, 4)
    k.e("s_and_b32 s5, s2, 3")
    k.e("s_bfe_u32 s3, s2, 0x10002")
    k.e("s_lshl_b32 s3, s3, 3")
    k.e("s_bfe_u32 s4, s2, 0x30005")
    k.e("s_add_u32 s3, s3, s4")
    k.e("s_lshl_b32 s3, s3, 3")
    k.e("s_bfe_u32 s4, s2, 0x20003")
    k.e("s_lshr_b32 s6, s%d, 1" % S_W)
    k.e("s_and_b32 s7, s%d, 1" % S_W)
    k.e("s_lshl_b32 s28, s5, 1")
    k.e("s_add_u32 s28, s28, s6")
    k.srd(SA, P_WS, WS_H, SZ_H)
    k.srd(SB, P_W2, 0, 4608 * 576 * 2)
    k.e("s_mul_i32 s%d, s28, %d" % (S_BOFF, 576 * 1152))
    k.e("s_mul_i32 s29, s4, 288")
    k.e("s_add_u32 s%d, s%d, s29" % (S_BOFF, S_BOFF))
    k.e("s_mul_i32 s%d, s28, %d" % (S_AOFF, 18 * 1024))
    k.e("s_lshl_b32 s28, s7, 2")
    k.e("s_add_u32 s3, s3, s28")
    k.e("s_mul_i32 s28, s3, 147456")
    k.e("v_lshlrev_b32 v2, 4, v1")
    k.e("v_add_u32 v2, s28, v2")
    for i in range(4):
        k.e("v_add_u32 v%d, %d, v2" % (g.VA + i, i * 147456))
    gemm_setup_b(k, g, 1152, False)
    gemm_main(k, g, 18, 1152, False, True)
    k.c("---- exchange halves through LDS, add, store f32 partial tile")
    k.srd(SO, P_WS, WS_P, NSLAB * SLAB)
    k.e("v_lshlrev_b32 v2, 4, v1")
    k.e("s_mul_i32 s28, s%d, 18432" % S_W)
    k.e("v_add_u32 v3, s28, v2")
    k.e("s_xor_b32 s29, s%d, 2" % S_W)
    k.e("s_mul_i32 s29, s29, 18432")
    k.e("v_add_u32 v4, s29, v2")
    k.e("s_lshl_b32 s28, s6, 1")
    k.e("s_add_u32 s28, s28, s3")
    k.e("s_lshl_b32 s28, s28, 2")
    k.e("s_add_u32 s28, s28, s4")
    k.e("s_mul_i32 s28, s28, 9216")
    k.e("s_mul_i32 s29, s5, %d" % SLAB)
    k.e("s_add_u32 s28, s28, s29")
    k.e("s_barrier")
    k.e("s_cmp_lg_u32 s6, 0")
    k.e("s_cbranch_scc1 k3_hi")
    for kh in (0, 1):
        if kh:
            k.label("k3_hi")
        give = [g.acc(mi, j) for mi in ((2, 3) if kh == 0 else (0, 1)) for j in range(9)]
        keep = [g.acc(mi, j) for mi in ((0, 1) if kh == 0 else (2, 3)) for j in range(9)]
        for n, a in enumerate(give):
            k.e("ds_write_b128 v3, %s offset:%d" % (vr(a, 4), n * 1024))
        k.e("s_waitcnt lgkmcnt(0)")
        k.e("s_barrier")
        for n, a in enumerate(give):
            k.e("ds_read_b128 %s, v4 offset:%d" % (vr(a, 4), n * 1024))
            if n >= 8:
                m = n - 8
                k.e("s_waitcnt lgkmcnt(8)")
                k3_fin(k, keep, give, m)
        for m in range(10, 18):
            k.e("s_waitcnt lgkmcnt(%d)" % (17 - m))
            k3_fin(k, keep, give, m)
        k.dump(2)
        k.e("s_endpgm")


def k3():
    return mixed_kernel("k3", 1, 2, k3_gemm2, 236, 73728)


def k3_fin(k, keep, give, m):
    a, b = keep[m], give[m]
    k.e("v_pk_add_f32 %s, %s, %s" % (vr(a, 2), vr(a, 2), vr(b, 2)))
    k.e("v_pk_add_f32 %s, %s, %s" % (vr(a + 2, 2), vr(a + 2, 2), vr(b + 2, 2)))
    j = m % 9
    k.e("buffer_store_dwordx4 %s, v2, s[%d:%d], s28 offen offset:%d" % (vr(a, 4), SO, SO + 3, (j % 4) * 1024))
    if j % 4 == 3:
        k.e("s_add_u32 s28, s28, 4096")
    if j == 8:
        k.e("s_add_u32 s28, s28, %d" % (36864 - 8192))


def rnd2(k, x, y):
    k.e("v_cvt_pk_bf16_f32 v7, v%d, v%d" % (x, y))
    k.e("v_lshlrev_b32 v%d, 16, v7" % x)
    k.e("v_and_b32 v%d, 0xffff0000, v7" % y)


def k4():
    k = K("k4")
    load_args(k)
    prologue_ids(k)
    k.e("s_cmp_ge_u32 s2, 256")
    k.e("s_cbranch_scc1 k4_exit")
    k.e("s_waitcnt lgkmcnt(0)")
    g = G(1, 4, 2, 2, 3)
    XCH = 3 * g.BUF
    SG = 36
    k.e("s_and_b32 s4, s2, 3")
    k.e("s_lshr_b32 s3, s2, 2")
    k.e("s_lshl_b32 s3, s3, 1")
    k.srd(SG, P_WS, WS_G, 8192)
    k.e("s_mul_i32 s40, s4, 288")
    k.e("s_and_b32 s41, s%d, 1" % S_W)
    k.e("s_mul_i32 s43, s41, 9216")
    k.e("s_add_u32 s41, s41, s3")
    k.e("v_lshlrev_b32 v10, 4, v1")
    k.e("s_add_u32 s43, s43, %d" % XCH)
    k.e("v_add_u32 v15, s43, v10")
    k.e("s_lshl_b32 s42, s41, 4")
    k.e("v_and_b32 v11, 15, v1")
    k.e("v_add_u32 v11, s42, v11")
    k.e("v_lshrrev_b32 v12, 4, v1")
    k.e("v_lshlrev_b32 v12, 3, v12")
    k.e("v_lshlrev_b32 v13, 2, v11")
    k.vmem("buffer_load_dword v14, v13, s[%d:%d], 0 offen" % (SG, SG + 3), "g")
    k.e("s_cmp_ge_u32 s%d, 2" % S_W)
    k.e("s_cbranch_scc1 k4_help")
    k.srd(SA, P_WS, WS_O, SZ_X)
    k.srd(SB, P_WO, 0, 576 * 576 * 2)
    k.srd(SO, P_OUT, 0, SZ_X)
    k.e("s_mov_b32 s%d, s40" % S_BOFF)
    k.e("s_mov_b32 s%d, 0" % S_AOFF)
    k.e("v_mul_u32_u24 v11, 1152, v11")
    k.e("v_add_u32 v11, v11, v12")
    a_offsets_frag(k, g, 3, 18432)
    gemm_setup_b(k, g, 1152, True)
    gemm_main(k, g, 18, 1152, True, True)
    k.wait(vm='*')
    for jj in range(9):
        a = g.acc(0, jj)
        rnd2(k, a, a + 1)
        rnd2(k, a + 2, a + 3)
        for r in range(4):
            k.e("v_mul_f32 v%d, v14, v%d" % (a + r, a + r))
        rnd2(k, a, a + 1)
        rnd2(k, a + 2, a + 3)
    k.e("s_barrier")
    T = 52
    for jj in range(9):
        k.e("ds_read_b128 %s, v15 offset:%d" % (vr(T + 4 * jj, 4), jj * 1024))
    for jj in range(9):
        a = g.acc(0, jj)
        b = T + 4 * jj
        k.e("s_waitcnt lgkmcnt(%d)" % (8 - jj))
        k.e("v_pk_add_f32 %s, %s, %s" % (vr(a, 2), vr(a, 2), vr(b, 2)))
        k.e("v_pk_add_f32 %s, %s, %s" % (vr(a + 2, 2), vr(a + 2, 2), vr(b + 2, 2)))
        k.e("v_cvt_pk_bf16_f32 v%d, v%d, v%d" % (a, a, a + 1))
        k.e("v_cvt_pk_bf16_f32 v%d, v%d, v%d" % (a + 1, a + 2, a + 3))
        k.e("buffer_store_dwordx2 %s, v11, s[%d:%d], s40 offen offset:%d" % (vr(a, 2), SO, SO + 3, jj * 32))
    k.dump(3)
    k.e("s_endpgm")
    k.label("k4_help")
    k.vm = []
    k.lg = []
    SP = 32
    SL, BIAS = 16, 160
    k.srd(SP, P_WS, WS_P, NSLAB * SLAB)
    k.srd(SX, P_B2, 0, 1152)
    k.e("s_lshl_b32 s42, s41, 2")
    k.e("s_add_u32 s42, s42, s4")
    k.e("s_mul_i32 s42, s42, 9216")
    for n in range(36):
        sl, jj = divmod(n, 9)
        k.e("buffer_load_dwordx4 %s, v10, s[%d:%d], s42 offen offset:%d" % (vr(SL + n * 4, 4), SP, SP + 3, (jj % 4) * 1024))
        if jj % 4 == 3:
            k.e("s_add_u32 s42, s42, 4096")
        if jj == 8:
            k.e("s_add_u32 s42, s42, %d" % (SLAB - 8192))
    for jj in range(9):
        k.e("buffer_load_dwordx2 %s, v12, s[%d:%d], s40 offen offset:%d" % (vr(BIAS + 2 * jj, 2), SX, SX + 3, jj * 32))
    for i in range(6):
        k.e("s_barrier")
    k.e("s_waitcnt vmcnt(0)")
    k.e("v_sub_f32 v6, 1.0, v14")
    bf16_round(k, 6, 6, 6)
    BT = 180
    for jj in range(9):
        b = SL + jj * 4
        k.e("v_lshlrev_b32 v%d, 16, v%d" % (BT, BIAS + 2 * jj))
        k.e("v_and_b32 v%d, 0xffff0000, v%d" % (BT + 1, BIAS + 2 * jj))
        k.e("v_lshlrev_b32 v%d, 16, v%d" % (BT + 2, BIAS + 1 + 2 * jj))
        k.e("v_and_b32 v%d, 0xffff0000, v%d" % (BT + 3, BIAS + 1 + 2 * jj))
        for x, y in ((b, b + 36), (b + 72, b + 108), (b, b + 72)):
            for h in (0, 2):
                k.e("v_pk_add_f32 %s, %s, %s" % (vr(x + h, 2), vr(x + h, 2), vr(y + h, 2)))
        rnd2(k, b, b + 1)
        rnd2(k, b + 2, b + 3)
        for h in (0, 2):
            k.e("v_pk_add_f32 %s, %s, %s" % (vr(b + h, 2), vr(b + h, 2), vr(BT + h, 2)))
        rnd2(k, b, b + 1)
        rnd2(k, b + 2, b + 3)
        for r in range(4):
            k.e("v_mul_f32 v%d, v6, v%d" % (b + r, b + r))
        rnd2(k, b, b + 1)
        rnd2(k, b + 2, b + 3)
        k.e("ds_write_b128 v15, %s offset:%d" % (vr(b, 4), jj * 1024))
    k.e("s_waitcnt lgkmcnt(0)")
    for i in range(4):
        k.e("s_barrier")
    k.label("k4_exit")
    k.e("s_endpgm")
    return k, 184, XCH + 18432, 256


def emit(kernels):
    out = []
    hdr = open("cdna_kernels/%s.s.ref" % NAME).read().split("\n")
    for l in hdr:
        if l.startswith("; @launch") or l.startswith("; Override") or l.startswith("; grid="):
            continue
        if l.startswith(";"):
            out.append(l)
    for k, nv, lds, nwg in kernels:
        out.append("; @launch kernel=%s_kernel grid=(%d,1,1) block=(%d,1,1) lds=%d" % (k.name, nwg, k.block, lds))
    out.append('.amdgcn_target "amdgcn-amd-amdhsa--gfx950"')
    out.append(".text")
    for k, nv, lds, nwg in kernels:
        out.append(".globl %s_kernel" % k.name)
        out.append(".p2align 8")
        out.append(".type %s_kernel,@function" % k.name)
        out.append("%s_kernel:" % k.name)
        out += k.L
    out.append('.section .rodata,"a"')
    for k, nv, lds, nwg in kernels:
        out.append(".p2align 6")
        out.append(".amdhsa_kernel %s_kernel" % k.name)
        out.append("  .amdhsa_next_free_vgpr %d" % nv)
        out.append("  .amdhsa_next_free_sgpr 96")
        out.append("  .amdhsa_accum_offset %d" % ((nv + 3) // 4 * 4))
        out.append("  .amdhsa_group_segment_fixed_size 0")
        out.append("  .amdhsa_kernarg_size 96")
        out.append("  .amdhsa_user_sgpr_count 2")
        out.append("  .amdhsa_user_sgpr_kernarg_segment_ptr 1")
        out.append("  .amdhsa_system_sgpr_workgroup_id_x 1")
        out.append(".end_amdhsa_kernel")
    return "\n".join(out) + "\n"


if __name__ == "__main__":
    if "diag" in sys.argv:
        DIAG = True
        open("diag%s.s" % "".join(a for a in sys.argv[1:] if a != "diag"), "w").write(emit([k1(), k2(), k3(), k4()]))
        sys.exit(0)
    ks = [k1(), k2(), k3(), k4()]
    open("cdna_kernels/%s.s" % NAME, "w").write(emit(ks))
    print("written")
```

```python
import math, struct, sys

NAME = "gated_mix__softmax_full_mha__mixer_channel_mlp__prompt"

def f32(x):
    return "0x%08x" % struct.unpack("<I", struct.pack("<f", x))[0]

WS_Y = 0x0
WS_G = 0x240000
WS_Q = 0x400000
WS_KV = 0x800000
WS_H = 0x1000000
WS_O = 0x2400000
WS_P = 0x2800000
WS_F = 0x300000
F_H, F_QKV, F_LN, F_O, F_P = 0x0, 0x1000, 0x2000, 0x3000, 0x4000
WS_DIAG = 0x6000000
DIAG = False
SLAB = 2048 * 576 * 4
SZ_X = 2048 * 576 * 2
SZ_H = 2048 * 4608 * 2


class K:
    def __init__(self, name):
        self.name = name
        self.L = []
        self.vm = []
        self.lg = []
        self.nlabel = 0
        self.nstamp = 0
        self.block = 256

    def e(self, s):
        self.L.append("    " + s)

    def c(self, s):
        self.L.append("    ; " + s)

    def label(self, l):
        self.L.append(l + ":")

    def newlabel(self, p="L"):
        self.nlabel += 1
        return "%s_%s_%d" % (self.name[:6], p, self.nlabel)

    def vmem(self, s, tag=None):
        self.e(s)
        self.vm.append(tag)

    def ds(self, s, tag=None):
        self.e(s)
        self.lg.append(tag)

    def wait(self, vm=None, lg=None):
        parts = []
        if vm is not None:
            if vm == '*':
                n = 0
            else:
                idx = [i for i, t in enumerate(self.vm) if t == vm]
                n = len(self.vm) - 1 - idx[-1] if idx else None
            if n is not None:
                assert n <= 63
                parts.append("vmcnt(%d)" % n)
                self.vm = self.vm[len(self.vm) - n:] if n else []
        if lg is not None:
            if lg == '*':
                n = 0
            else:
                idx = [i for i, t in enumerate(self.lg) if t == lg]
                n = len(self.lg) - 1 - idx[-1] if idx else None
            if n is not None:
                assert n <= 15
                parts.append("lgkmcnt(%d)" % n)
                self.lg = self.lg[len(self.lg) - n:] if n else []
        if parts:
            self.e("s_waitcnt " + " ".join(parts))

    def stamp(self):
        if not DIAG:
            return
        i = self.nstamp
        self.nstamp += 1
        assert i < 8
        self.e("s_waitcnt lgkmcnt(0)")
        self.e("s_memtime s[%d:%d]" % (44 + 2 * i, 45 + 2 * i))
        if i == 0:
            self.e("s_memrealtime s[60:61]")
        self.e("s_waitcnt lgkmcnt(0)")
        self.lg = []

    def dump(self, kidx):
        if not DIAG:
            return
        self.stamp()
        self.e("s_memrealtime s[62:63]")
        self.e("s_waitcnt lgkmcnt(0)")
        l = self.newlabel("nd")
        self.e("s_cmp_lg_u32 s%d, 0" % S_W)
        self.e("s_cbranch_scc1 %s" % l)
        self.srd(88, P_WS, WS_DIAG + kidx * 65536, 65536)
        self.e("s_lshl_b32 s92, s2, 6")
        self.e("v_mov_b32 v2, s92")
        for i in range(self.nstamp):
            self.e("v_mov_b32 v3, s%d" % (44 + 2 * i))
            self.e("buffer_store_dword v3, v2, s[88:91], 0 offen offset:%d" % (4 * i))
        for i in (0, 1):
            self.e("v_mov_b32 v3, s%d" % (60 + 2 * i))
            self.e("buffer_store_dword v3, v2, s[88:91], 0 offen offset:%d" % (56 + 4 * i))
        self.label(l)
        self.nstamp = 1

    def sel(self, d, a, b):
        self.e("s_mov_b32 s%d, %s" % (d, b))
        self.e("s_cmov_b32 s%d, %s" % (d, a))

    def srd(self, d, ptr, off, size):
        if off:
            self.e("s_add_u32 s%d, s%d, 0x%x" % (d, ptr, off))
            self.e("s_addc_u32 s%d, s%d, 0" % (d + 1, ptr + 1))
        else:
            self.e("s_mov_b32 s%d, s%d" % (d, ptr))
            self.e("s_mov_b32 s%d, s%d" % (d + 1, ptr + 1))
        self.e("s_mov_b32 s%d, 0x%x" % (d + 2, size))
        self.e("s_mov_b32 s%d, 0x00020000" % (d + 3))


def pol(tag):
    return "".join(" " + f.split("=")[1].replace("+", " ") for f in sys.argv if f.startswith(tag + "="))


def opt(name, default):
    for f in sys.argv:
        if f.startswith(name + "="):
            return f.split("=")[1]
    return default


def vr(a, n=1):
    return "v%d" % a if n == 1 else "v[%d:%d]" % (a, a + n - 1)


def sr(a, n=1):
    return "s%d" % a if n == 1 else "s[%d:%d]" % (a, a + n - 1)


P_X, P_WQKV, P_WO, P_BX, P_W1, P_B1, P_W2, P_B2, P_GW, P_OUT, P_DBG, P_WS = [64 + 2 * i for i in range(12)]


def load_args(k):
    k.e("s_load_dwordx8 s[64:71], s[0:1], 0")
    k.e("s_load_dwordx8 s[72:79], s[0:1], 32")
    k.e("s_load_dwordx8 s[80:87], s[0:1], 64")


SF, S_NONCE, S_SP = 96, 100, 101
SPIN = 1 << 18


def nonce_write(k):
    l = k.newlabel("nw")
    k.e("s_or_b32 s28, s2, s%d" % S_W)
    k.e("s_cmp_lg_u32 s28, 0")
    k.e("s_cbranch_scc1 %s" % l)
    k.e("s_memrealtime s[28:29]")
    k.srd(SF, P_DBG, 0, 256)
    k.e("s_waitcnt lgkmcnt(0)")
    k.e("s_or_b32 s28, s28, 1")
    k.e("v_mov_b32 v2, s28")
    k.e("v_mov_b32 v3, 0")
    k.e("s_mov_b64 exec, 1")
    k.e("buffer_store_dword v2, v3, s[%d:%d], 0 offen sc1" % (SF, SF + 3))
    k.e("s_mov_b64 exec, -1")
    k.label(l)


def nonce_get(k):
    l = k.newlabel("ng")
    d = k.newlabel("ngd")
    k.srd(SF, P_DBG, 0, 256)
    k.e("v_mov_b32 v3, 0")
    k.e("s_mov_b32 s%d, %d" % (S_SP, SPIN))
    k.label(l)
    k.e("buffer_load_dword v2, v3, s[%d:%d], 0 offen sc1" % (SF, SF + 3))
    k.e("s_waitcnt vmcnt(0)")
    k.e("v_readfirstlane_b32 s%d, v2" % S_NONCE)
    k.e("s_cmp_lg_u32 s%d, 0" % S_NONCE)
    k.e("s_cbranch_scc1 %s" % d)
    k.e("s_sub_u32 s%d, s%d, 1" % (S_SP, S_SP))
    k.e("s_cbranch_scc1 %s" % d)
    k.e("s_sleep 1")
    k.e("s_branch %s" % l)
    k.label(d)
    k.srd(SF, P_WS, WS_F, 0x10000)


def publish(k, base, s_idx, first=False):
    k.e("s_waitcnt vmcnt(0)")
    k.vm = []
    k.e("s_barrier")
    l = k.newlabel("pb")
    k.e("s_cmp_lg_u32 s%d, 0" % S_W)
    k.e("s_cbranch_scc1 %s" % l)
    if first:
        nonce_get(k)
    k.e("s_lshl_b32 s28, s%d, 2" % s_idx)
    k.e("s_add_u32 s28, s28, %d" % base)
    k.e("v_mov_b32 v3, s28")
    k.e("v_mov_b32 v2, s%d" % S_NONCE)
    k.e("s_mov_b64 exec, 1")
    k.e("buffer_store_dword v2, v3, s[%d:%d], 0 offen sc1" % (SF, SF + 3))
    k.e("s_mov_b64 exec, -1")
    k.label(l)


def await_flags(k, base, s_idx, n, first=False, acquire=False, wide=False):
    l = k.newlabel("aw")
    lp = k.newlabel("awl")
    d = k.newlabel("awd")
    k.e("s_cmp_lg_u32 s%d, 0" % S_W)
    k.e("s_cbranch_scc1 %s" % l)
    if first:
        nonce_get(k)
    k.e("s_lshl_b32 s28, s%d, 2" % s_idx)
    k.e("s_add_u32 s28, s28, %d" % base)
    k.e("v_lshlrev_b32 v3, %d, v1" % (3 if wide else 2))
    k.e("v_add_u32 v3, s28, v3")
    if wide:
        n //= 2
    k.e("s_mov_b32 s28, %d" % ((1 << min(n, 32)) - 1))
    k.e("s_mov_b32 s29, %d" % ((1 << max(n - 32, 0)) - 1))
    k.e("s_mov_b64 exec, s[28:29]")
    k.e("s_mov_b32 s%d, %d" % (S_SP, SPIN))
    k.label(lp)
    if wide:
        k.e("buffer_load_dwordx2 v[4:5], v3, s[%d:%d], 0 offen sc1" % (SF, SF + 3))
        k.e("s_waitcnt vmcnt(0)")
        k.e("v_xor_b32 v4, s%d, v4" % S_NONCE)
        k.e("v_xor_b32 v5, s%d, v5" % S_NONCE)
        k.e("v_or_b32 v2, v4, v5")
        k.e("v_cmp_ne_u32 vcc, 0, v2")
    else:
        k.e("buffer_load_dword v2, v3, s[%d:%d], 0 offen sc1" % (SF, SF + 3))
        k.e("s_waitcnt vmcnt(0)")
        k.e("v_cmp_ne_u32 vcc, s%d, v2" % S_NONCE)
    k.e("s_cbranch_vccz %s" % d)
    k.e("s_sub_u32 s%d, s%d, 1" % (S_SP, S_SP))
    k.e("s_cbranch_scc1 %s" % d)
    k.e("s_sleep 1")
    k.e("s_branch %s" % lp)
    k.label(d)
    k.e("s_mov_b64 exec, -1")
    if acquire:
        k.e("buffer_inv sc1")
        k.e("s_waitcnt vmcnt(0)")
    k.label(l)
    k.e("s_barrier")


BUF = 20480
SA, SB, SO, SX = 8, 12, 16, 20
S_WB, S_BOFF, S_AOFF, S_W = 24, 25, 26, 27


class G:
    def __init__(self, MT, LA=2, TW=4, CK=2, NBUF=3, NJ=9, AR=3):
        self.MT = MT
        self.AR = AR
        self.NJ = NJ
        self.LA = LA
        self.TW = TW
        self.CK = CK
        self.NBUF = NBUF
        self.NP = -(-9 * CK // TW)
        self.BUF = 20480 if TW == 4 else 9216 * CK
        self.ACC = 16
        self.A = self.ACC + MT * NJ * 4
        self.B = self.A + AR * MT * 4
        self.VA = self.B + 4 * (LA + 1)
        self.VD = self.VA + MT
        self.VL = self.VD + self.NP
        self.FREE = self.VL + 1

    def acc(self, i, j):
        return self.ACC + (i * self.NJ + j) * 4

    def a(self, ks, i):
        return self.A + ((ks % self.AR) * self.MT + i) * 4

    def b(self, t):
        return self.B + (t % (self.LA + 1)) * 4


def gemm_setup_b(k, g, rsb, bitswap):
    k.c("DMA source offsets")
    if g.TW == 4:
        k.e("s_mul_i32 s%d, s%d, 5120" % (S_WB, S_W))
        k.e("s_mul_i32 s28, s%d, 320" % S_W)
    elif g.TW == 1:
        k.e("s_mul_i32 s31, s%d, %d" % (S_W, g.NBUF * g.BUF))
        k.e("s_mov_b32 s%d, s31" % S_WB)
        k.e("s_mov_b32 s28, 0")
    else:
        P0 = 9 * g.CK - g.NP
        k.e("s_and_b32 s28, s%d, 1" % S_W)
        k.e("s_lshr_b32 s31, s%d, 1" % S_W)
        k.e("s_mul_i32 s31, s31, %d" % (g.NBUF * g.BUF))
        k.e("s_mul_i32 s%d, s28, %d" % (S_WB, P0 * 1024))
        k.e("s_add_u32 s%d, s%d, s31" % (S_WB, S_WB))
        k.e("s_mul_i32 s28, s28, %d" % (P0 * 64))
    for i in range(g.NP):
        k.e("s_add_u32 s29, s28, %d" % (i * 64))
        if i >= 3 and g.TW == 4:
            k.e("s_cmp_ge_u32 s29, 1152")
            k.e("s_cselect_b32 s30, 128, 0")
            k.e("s_sub_u32 s29, s29, s30")
        k.e("v_add_u32 v2, s29, v1")
        k.e("v_mul_u32_u24 v3, 3641, v2")
        k.e("v_lshrrev_b32 v3, 16, v3")
        k.e("v_mul_u32_u24 v4, 18, v3")
        k.e("v_sub_u32 v4, v2, v4")
        if bitswap:
            k.e("v_and_b32 v5, 0x33, v3")
            k.e("v_and_b32 v6, 4, v3")
            k.e("v_lshlrev_b32 v6, 1, v6")
            k.e("v_and_b32 v7, 8, v3")
            k.e("v_lshrrev_b32 v7, 1, v7")
            k.e("v_or3_b32 v3, v5, v6, v7")
        k.e("v_mul_u32_u24 v3, %d, v3" % rsb)
        k.e("v_lshlrev_b32 v4, 4, v4")
        k.e("v_add_u32 v3, v3, v4")
        if i % 4:
            k.e("v_subrev_u32 v%d, %d, v3" % (g.VD + i, (i % 4) * 1024))
        else:
            k.e("v_mov_b32 v%d, v3" % (g.VD + i))
    k.c("LDS tr-read lane address")
    k.e("v_lshrrev_b32 v2, 4, v1")
    k.e("v_and_b32 v3, 15, v1")
    k.e("v_lshrrev_b32 v4, 2, v3")
    if bitswap:
        k.e("v_lshrrev_b32 v5, 1, v2")
        k.e("v_lshlrev_b32 v5, 4, v5")
        k.e("v_and_b32 v6, 1, v2")
        k.e("v_lshlrev_b32 v6, 2, v6")
        k.e("v_add3_u32 v4, v4, v5, v6")
    else:
        k.e("v_lshlrev_b32 v5, 2, v2")
        k.e("v_add_u32 v4, v4, v5")
    k.e("v_mul_u32_u24 v4, 288, v4")
    k.e("v_and_b32 v3, 3, v3")
    k.e("v_lshlrev_b32 v3, 3, v3")
    k.e("v_add_u32 v%d, v4, v3" % g.VL)
    if g.TW != 4:
        k.e("v_add_u32 v%d, s31, v%d" % (g.VL, g.VL))


def gemm_dma_ops(k, g, c, rsb):
    buf = c % g.NBUF
    ops = []
    for i in range(g.NP):
        def op(i=i):
            k.e("s_add_u32 m0, s%d, %d" % (S_WB, buf * g.BUF + (i // 4) * 4096))
            k.e("s_nop 0")
            k.vmem("buffer_load_dwordx4 v%d, s[%d:%d], s%d offen offset:%d lds" % (g.VD + i, SB, SB + 3, S_BOFF, (i % 4) * 1024), ("D", c))
            if i == g.NP - 1:
                k.e("s_add_u32 s%d, s%d, %d" % (S_BOFF, S_BOFF, 32 * g.CK * rsb))
        ops.append(op)
    return ops


def gemm_main(k, g, KS, rsb, bitswap, afrag, extra=None, pre=None, waitfn=None):
    MT = g.MT
    NJ = g.NJ
    NC = KS // g.CK
    HALF = (8 if bitswap else 16) * 288
    SPREAD = "nospread" not in sys.argv

    def aload_ops(ks):
        ops = []
        for i in range(MT):
            def op(i=i):
                if afrag:
                    k.vmem("buffer_load_dwordx4 %s, v%d, s[%d:%d], s%d offen%s" % (vr(g.a(ks, i), 4), g.VA + i, SA, SA + 3, S_AOFF, " sc1" if waitfn else ""), ("A", ks))
                    if i == MT - 1:
                        k.e("s_add_u32 s%d, s%d, 1024" % (S_AOFF, S_AOFF))
                else:
                    k.vmem("buffer_load_dwordx4 %s, v%d, s[%d:%d], s%d offen offset:%d" % (vr(g.a(ks, i), 4), g.VA + i, SA, SA + 3, S_AOFF, ks * 64), ("A", ks))
            ops.append(op)
        return ops

    def bread(t):
        ks, j = divmod(t, NJ)
        off = ((ks // g.CK) % g.NBUF) * g.BUF + (ks % g.CK) * 9216 + j * 32
        b = g.b(t)
        k.ds("ds_read_b64_tr_b16 %s, v%d offset:%d" % (vr(b, 2), g.VL, off), ("B", t))
        k.ds("ds_read_b64_tr_b16 %s, v%d offset:%d" % (vr(b + 2, 2), g.VL, off + HALF), ("B", t))

    k.stamp()
    if waitfn is None:
        ops = gemm_dma_ops(k, g, 0, rsb) + aload_ops(0) + gemm_dma_ops(k, g, 1, rsb) + aload_ops(1)
        for c in range(2, g.NBUF):
            ops += gemm_dma_ops(k, g, c, rsb)
        for ks in range(2, g.AR - 1):
            ops += aload_ops(ks)
    else:
        ops = []
        for c in range(g.NBUF):
            ops += gemm_dma_ops(k, g, c, rsb)
        ops += [waitfn]
        for ks in range(g.AR - 1):
            ops += aload_ops(ks)
    q = []
    for op in ops:
        op()
    if pre is not None:
        pre()
    k.c("zero accumulators")
    for r in range(MT * NJ * 4):
        k.e("v_mov_b32 v%d, 0" % (g.ACC + r))
    k.wait(vm=("D", 0))
    if g.TW > 1:
        k.e("s_barrier")
    k.stamp()
    for t in range(g.LA):
        bread(t)
    NTS = KS * NJ
    for t in range(NTS):
        ks, j = divmod(t, NJ)
        if j == 0 and ks + g.AR - 1 < KS and "xA" not in sys.argv:
            q = aload_ops(ks + g.AR - 1) + q
        if extra is not None:
            extra(ks, j)
        if j == 0 and getattr(k, "priok", None) == ks:
            k.e("s_setprio 0")
        tn = t + g.LA
        if tn < NTS:
            if tn % (NJ * g.CK) == 0:
                c = tn // (NJ * g.CK)
                while any(True for _ in q):
                    q.pop(0)()
                k.wait(vm=("D", c), lg='*')
                if "xB" not in sys.argv and g.TW > 1:
                    k.e("s_barrier")
                if c + g.NBUF - 1 < NC and "xD" not in sys.argv:
                    q += gemm_dma_ops(k, g, c + g.NBUF - 1, rsb)
            bread(tn)
        if q:
            q.pop(0)()
            while q and not SPREAD:
                q.pop(0)()
        k.wait(lg=("B", t), vm=("A", ks) if j == 0 else None)
        for i in range(MT):
            a = g.acc(i, j)
            k.e("v_mfma_f32_16x16x32_bf16 %s, %s, %s, %s" % (vr(a, 4), vr(g.b(t), 4), vr(g.a(ks, i), 4), vr(a, 4)))
    assert not q
    k.e("s_nop 7")
    k.e("s_nop 7")
    k.stamp()


def prologue_ids(k):
    k.stamp()
    k.e("v_and_b32 v1, 63, v0")
    k.e("v_lshrrev_b32 v2, 6, v0")
    k.e("s_nop 0")
    k.e("v_readfirstlane_b32 s%d, v2" % S_W)


def a_offsets_rowmajor(k, g, s_m0, stride):
    k.e("s_mul_i32 s28, s%d, %d" % (S_W, 16 * g.MT))
    k.e("s_add_u32 s28, s28, s%d" % s_m0)
    k.e("v_and_b32 v2, 15, v1")
    k.e("v_add_u32 v2, s28, v2")
    k.e("v_mul_u32_u24 v2, %d, v2" % stride)
    k.e("v_lshrrev_b32 v3, 4, v1")
    k.e("v_lshlrev_b32 v3, 4, v3")
    k.e("v_add_u32 v2, v2, v3")
    for i in range(g.MT):
        k.e("v_add_u32 v%d, %d, v2" % (g.VA + i, i * 16 * stride))


def a_offsets_frag(k, g, s_mt, tile_bytes):
    k.e("s_mul_i32 s28, s%d, %d" % (S_W, g.MT))
    k.e("s_add_u32 s28, s28, s%d" % s_mt)
    k.e("s_mul_i32 s28, s28, %d" % tile_bytes)
    k.e("v_lshlrev_b32 v2, 4, v1")
    k.e("v_add_u32 v2, s28, v2")
    for i in range(g.MT):
        k.e("v_add_u32 v%d, %d, v2" % (g.VA + i, i * tile_bytes))


def bf16_round(k, d, s, t):
    k.e("v_cvt_pk_bf16_f32 v%d, v%d, v%d" % (t, s, s))
    k.e("v_lshlrev_b32 v%d, 16, v%d" % (d, t))


def red8(k, v, t):
    k.e("s_nop 1")
    k.e("v_add_f32_dpp v%d, v%d, v%d quad_perm:[1,0,3,2] row_mask:0xf bank_mask:0xf" % (t, v, v))
    k.e("s_nop 1")
    k.e("v_add_f32_dpp v%d, v%d, v%d quad_perm:[2,3,0,1] row_mask:0xf bank_mask:0xf" % (v, t, t))
    k.e("s_nop 1")
    k.e("v_add_f32_dpp v%d, v%d, v%d row_half_mirror row_mask:0xf bank_mask:0xf" % (t, v, v))
    k.e("v_mov_b32 v%d, v%d" % (v, t))


def k1_ln(k, fused=False):
    k.c("---- LN / gate part")
    k.srd(SA, P_X, 0, SZ_X)
    k.srd(SB, P_GW, 0, 1152)
    k.srd(SO, P_WS, WS_Y, SZ_X)
    k.srd(SX, P_WS, WS_G, 8192)
    X, GW, F = 16, 52, 88
    k.e("s_lshl_b32 s28, s3, 5")
    k.e("s_lshl_b32 s29, s%d, 3" % S_W)
    k.e("s_add_u32 s28, s28, s29")
    k.e("v_lshrrev_b32 v2, 3, v1")
    k.e("v_add_u32 v2, s28, v2")
    k.e("v_and_b32 v3, 7, v1")
    k.e("v_lshlrev_b32 v4, 4, v3")
    k.e("v_mul_u32_u24 v5, 1152, v2")
    k.e("v_add_u32 v5, v5, v4")
    for i in range(9):
        k.vmem("buffer_load_dwordx4 %s, v5, s[%d:%d], 0 offen offset:%d" % (vr(X + 4 * i, 4), SA, SA + 3, i * 128))
    for i in range(9):
        k.vmem("buffer_load_dwordx4 %s, v4, s[%d:%d], 0 offen offset:%d" % (vr(GW + 4 * i, 4), SB, SB + 3, i * 128))
    k.wait(vm='*')
    for i in range(36):
        k.e("v_lshlrev_b32 v%d, 16, v%d" % (F + 2 * i, X + i))
        k.e("v_and_b32 v%d, 0xffff0000, v%d" % (F + 2 * i + 1, X + i))
    k.e("v_add_f32 v6, v%d, v%d" % (F, F + 1))
    k.e("v_add_f32 v7, v%d, v%d" % (F + 2, F + 3))
    for i in range(2, 36):
        k.e("v_add_f32 v%d, v%d, v%d" % (6 + (i & 1), 6 + (i & 1), F + 2 * i))
        k.e("v_add_f32 v%d, v%d, v%d" % (6 + (i & 1), 6 + (i & 1), F + 2 * i + 1))
    k.e("v_add_f32 v6, v6, v7")
    red8(k, 6, 7)
    k.e("v_mul_f32 v6, %s, v6" % f32(1.0 / 576))
    k.e("v_mov_b32 v10, 0")
    k.e("v_mov_b32 v11, 0")
    for i in range(36):
        k.e("v_lshlrev_b32 v8, 16, v%d" % (GW + i))
        k.e("v_and_b32 v9, 0xffff0000, v%d" % (GW + i))
        k.e("v_mul_f32 v8, v8, v%d" % (F + 2 * i))
        k.e("v_mul_f32 v9, v9, v%d" % (F + 2 * i + 1))
        k.e("v_cvt_pk_bf16_f32 v8, v8, v9")
        k.e("v_and_b32 v9, 0xffff0000, v8")
        k.e("v_lshlrev_b32 v8, 16, v8")
        k.e("v_add_f32 v10, v10, v8")
        k.e("v_add_f32 v11, v11, v9")
    k.e("v_add_f32 v10, v10, v11")
    red8(k, 10, 11)
    bf16_round(k, 10, 10, 10)
    k.e("v_mul_f32 v10, %s, v10" % f32(-math.log2(math.e)))
    k.e("v_exp_f32 v10, v10")
    k.e("s_nop 0")
    k.e("v_add_f32 v10, 1.0, v10")
    k.e("v_rcp_f32 v10, v10")
    k.e("s_nop 0")
    bf16_round(k, 10, 10, 10)
    k.e("v_lshlrev_b32 v11, 2, v2")
    k.e("v_cmp_eq_u32 vcc, 0, v3")
    k.e("s_and_saveexec_b64 s[30:31], vcc")
    k.vmem("buffer_store_dword v10, v11, s[%d:%d], 0 offen" % (SX, SX + 3))
    k.e("s_mov_b64 exec, s[30:31]")
    k.e("v_mov_b32 v8, 0")
    k.e("v_mov_b32 v9, 0")
    for i in range(72):
        k.e("v_sub_f32 v12, v%d, v6" % (F + i))
        k.e("v_fma_f32 v%d, v12, v12, v%d" % (8 + (i & 1), 8 + (i & 1)))
    k.e("v_add_f32 v8, v8, v9")
    red8(k, 8, 9)
    k.e("v_mul_f32 v8, %s, v8" % f32(1.0 / 576))
    bf16_round(k, 8, 8, 8)
    k.e("v_add_f32 v8, %s, v8" % f32(1e-5))
    bf16_round(k, 8, 8, 8)
    k.e("v_sqrt_f32 v8, v8")
    k.e("s_nop 0")
    bf16_round(k, 8, 8, 8)
    k.e("v_rcp_f32 v9, v8")
    bf16_round(k, 6, 6, 6)
    for i in range(36):
        a, b = F + 2 * i, F + 2 * i + 1
        k.e("v_sub_f32 v%d, v%d, v6" % (a, a))
        k.e("v_sub_f32 v%d, v%d, v6" % (b, b))
        k.e("v_cvt_pk_bf16_f32 v12, v%d, v%d" % (a, b))
        k.e("v_lshlrev_b32 v%d, 16, v12" % a)
        k.e("v_and_b32 v%d, 0xffff0000, v12" % b)
        for x, q, e in ((a, 12, 13), (b, 14, 15)):
            k.e("v_mul_f32 v%d, v%d, v9" % (q, x))
            k.e("v_fma_f32 v%d, -v%d, v8, v%d" % (e, q, x))
            k.e("v_fma_f32 v%d, v%d, v9, v%d" % (q, e, q))
        k.e("v_cvt_pk_bf16_f32 v%d, v12, v14" % (X + i))
    k.e("v_lshrrev_b32 v5, 4, v2")
    k.e("v_mul_u32_u24 v5, 18432, v5")
    k.e("v_lshrrev_b32 v4, 2, v3")
    k.e("v_lshlrev_b32 v4, 10, v4")
    k.e("v_add_u32 v5, v5, v4")
    k.e("v_and_b32 v4, 3, v3")
    k.e("v_lshlrev_b32 v4, 8, v4")
    k.e("v_add_u32 v5, v5, v4")
    k.e("v_and_b32 v4, 15, v2")
    k.e("v_lshlrev_b32 v4, 4, v4")
    k.e("v_add_u32 v5, v5, v4")
    for i in range(9):
        k.e("s_mov_b32 s28, %d" % ((i >> 1) * 4096))
        k.vmem("buffer_store_dwordx4 %s, v5, s[%d:%d], s28 offen offset:%d%s" % (vr(X + 4 * i, 4), SO, SO + 3, (i & 1) * 2048, " sc1"))
    if fused:
        k.stamp()
        publish(k, F_LN, 3, first=True)
    k.dump(0)
    if fused:
        k.e("s_branch %s_attn" % k.name)
    else:
        k.e("s_endpgm")


def k1():
    k = K("k1")
    load_args(k)
    prologue_ids(k)
    k.e("s_cmp_ge_u32 s2, 256")
    k.e("s_cbranch_scc1 k1_exit")
    k.e("s_waitcnt lgkmcnt(0)")
    k.e("s_mov_b32 s3, s2")
    k.e("s_cmp_lt_u32 s2, 192")
    k.e("s_cbranch_scc1 k1_q")
    k.e("s_sub_u32 s3, s2, 192")
    k1_ln(k, False)
    k.label("k1_q")
    qkv_tile(k, False)
    k.dump(0)
    k.label("k1_exit")
    k.e("s_endpgm")
    return k, 248, 65536, 256


def k1_body(k, fused):
    g = G(2)
    SC = " sc1" if fused else ""
    k.e("s_cmp_lt_u32 s2, 192")
    k.e("s_cbranch_scc1 k1_gemm")
    k.e("s_sub_u32 s3, s2, 192")
    k1_ln(k, fused)
    k.label("k1_gemm")
    k.vm = []
    k.lg = []
    k.e("s_and_b32 s3, s2, 15")
    k.e("s_lshl_b32 s3, s3, 7")
    k.e("s_lshr_b32 s4, s2, 4")
    k.srd(SA, P_X, 0, SZ_X)
    k.srd(SB, P_WQKV, 0, 576 * 1728 * 2)
    k.e("s_mul_i32 s%d, s4, 288" % S_BOFF)
    k.e("s_mov_b32 s%d, 0" % S_AOFF)
    a_offsets_rowmajor(k, g, 3, 1152)
    gemm_setup_b(k, g, 3456, True)
    gemm_main(k, g, 18, 3456, True, False)
    k.c("---- QKV epilogue")
    k.e("s_lshr_b32 s5, s4, 2")
    k.e("s_and_b32 s6, s4, 3")
    k.e("s_lshl_b32 s6, s6, 3")
    k.e("s_cmp_eq_u32 s5, 0")
    k.sel(28, "0x%x" % WS_Q, "0x%x" % WS_KV)
    k.sel(29, "0x%x" % (4 << 20), "0x%x" % (8 << 20))
    k.sel(32, 131072, 262144)
    k.sel(33, 2048, 4096)
    k.sel(38, f32(18 ** -0.5 * math.log2(math.e)), "1.0")
    k.e("s_add_u32 s%d, s%d, s28" % (SO, P_WS))
    k.e("s_addc_u32 s%d, s%d, 0" % (SO + 1, P_WS + 1))
    k.e("s_mov_b32 s%d, s29" % (SO + 2))
    k.e("s_mov_b32 s%d, 0x00020000" % (SO + 3))
    k.e("s_cmp_eq_u32 s5, 2")
    k.sel(34, 32, 1024)
    k.sel(35, 16, 512)
    k.sel(36, 2048, 0)
    k.sel(37, 64, 16)
    T = g.A
    k.e("s_lshl_b32 s28, s%d, 5" % S_W)
    k.e("s_add_u32 s28, s28, s3")
    k.e("s_lshr_b32 s28, s28, 5")
    k.e("s_mul_i32 s28, s28, s33")
    k.e("s_add_u32 s28, s28, s36")
    k.e("s_mul_i32 s29, s6, s32")
    k.e("s_add_u32 s28, s28, s29")
    k.e("v_and_b32 v2, 15, v1")
    k.e("v_mul_lo_u32 v10, v2, s37")
    k.e("v_add_u32 v10, s28, v10")
    k.e("s_lshl_b32 s29, s37, 4")
    k.e("v_add_u32 v11, s29, v10")
    k.e("v_lshrrev_b32 v3, 4, v1")
    k.e("v_lshlrev_b32 v3, 2, v3")
    for j in range(9):
        for pp in range(2):
            k.e("v_add_u32 v4, %d, v3" % (16 * j + 2 * pp))
            k.e("v_mul_u32_u24 v5, 3641, v4")
            k.e("v_lshrrev_b32 v5, 16, v5")
            k.e("v_mul_u32_u24 v6, 18, v5")
            k.e("v_sub_u32 v6, v4, v6")
            k.e("v_mul_lo_u32 v5, v5, s32")
            k.e("v_lshrrev_b32 v7, 4, v6")
            k.e("v_mul_lo_u32 v7, v7, s34")
            k.e("v_add_u32 v5, v5, v7")
            k.e("v_bfe_u32 v7, v6, 3, 1")
            k.e("v_mul_lo_u32 v7, v7, s35")
            k.e("v_add_u32 v5, v5, v7")
            k.e("v_and_b32 v7, 7, v6")
            k.e("v_lshlrev_b32 v7, 1, v7")
            k.e("v_add_u32 v5, v5, v7")
            for mi in range(2):
                a = g.acc(mi, j) + 2 * pp
                d = T + (j * 4 + pp * 2 + mi) % 16 * 2
                k.e("v_mul_f32 v%d, s38, v%d" % (a, a))
                k.e("v_mul_f32 v%d, s38, v%d" % (a + 1, a + 1))
                k.e("v_cvt_pk_bf16_f32 v%d, v%d, v%d" % (a, a, a + 1))
                k.e("v_add_u32 v%d, v5, v%d" % (a + 1, 10 + mi))
                k.vmem("buffer_store_dword v%d, v%d, s[%d:%d], 0 offen%s" % (a, a + 1, SO, SO + 3, SC))
    if fused:
        k.stamp()
    else:
        k.dump(0)
    k.e("s_cmp_eq_u32 s5, 0")
    k.e("s_cbranch_scc1 k1_done")
    k.e("v_and_b32 v2, 127, v0")
    k.e("v_add_u32 v2, s3, v2")
    k.e("v_lshrrev_b32 v3, 5, v2")
    k.e("v_mul_lo_u32 v3, v3, s33")
    k.e("v_and_b32 v2, 31, v2")
    k.e("v_mul_lo_u32 v2, v2, s37")
    k.e("v_add_u32 v2, v2, v3")
    k.e("v_lshrrev_b32 v3, 7, v0")
    k.e("v_lshlrev_b32 v3, 2, v3")
    k.e("v_add_u32 v3, s6, v3")
    k.e("v_mul_lo_u32 v3, v3, s32")
    k.e("v_add_u32 v2, v2, v3")
    k.e("s_add_u32 s28, s34, s36")
    k.e("v_add_u32 v2, s28, v2")
    k.e("v_add_u32 v3, s35, v2")
    k.e("v_add_u32 v2, 4, v2")
    k.e("v_mov_b32 v4, 0x3f803f80")
    for r in (5, 6, 8, 9, 10, 11):
        k.e("v_mov_b32 v%d, 0" % r)
    k.e("s_mov_b32 s28, 0")
    for h in range(4):
        k.vmem("buffer_store_dwordx3 v[4:6], v2, s[%d:%d], s28 offen%s" % (SO, SO + 3, SC))
        k.vmem("buffer_store_dwordx4 v[8:11], v3, s[%d:%d], s28 offen%s" % (SO, SO + 3, SC))
        k.e("s_add_u32 s28, s28, s32")
    k.label("k1_done")
    if fused:
        k.e("s_and_b32 s6, s4, 3")
        k.e("s_mul_i32 s6, s6, 48")
        k.e("s_lshl_b32 s5, s5, 4")
        k.e("s_add_u32 s6, s6, s5")
        k.e("s_lshr_b32 s3, s3, 7")
        k.e("s_add_u32 s6, s6, s3")
        publish(k, F_QKV, 6, first=True)
        k.dump(0)


def qkv_tile(k, fused=True):
    g = G(2, int(opt("qla", 2)), AR=int(opt("qar", 3)))
    AD = g.FREE
    k.vm = []
    k.lg = []
    k.e("s_lshr_b32 s4, s3, 4")
    k.e("s_and_b32 s3, s3, 15")
    k.srd(SA, P_X, 0, SZ_X)
    k.srd(SB, P_WQKV, 0, 576 * 1728 * 2)
    k.e("s_mul_i32 s%d, s4, 288" % S_BOFF)
    k.e("s_mov_b32 s%d, 0" % S_AOFF)
    k.e("s_lshl_b32 s28, s3, 2")
    k.e("s_add_u32 s33, s28, s%d" % S_W)
    k.e("s_lshl_b32 s28, s33, 5")
    k.e("v_and_b32 v2, 15, v1")
    k.e("v_add_u32 v2, s28, v2")
    k.e("v_mul_u32_u24 v2, 1152, v2")
    k.e("v_lshrrev_b32 v3, 4, v1")
    k.e("v_lshlrev_b32 v3, 4, v3")
    k.e("v_add_u32 v%d, v2, v3" % g.VA)
    k.e("v_add_u32 v%d, %d, v%d" % (g.VA + 1, 16 * 1152, g.VA))
    gemm_setup_b(k, g, 3456, True)

    def pre():
        k.c("epilogue addresses (in the shadow of the first loads)")
        k.e("s_lshr_b32 s5, s4, 2")
        k.e("s_cmp_eq_u32 s5, 2")
        k.sel(34, 32, 1024)
        k.sel(35, 16, 512)
        k.sel(37, 64, 16)
        k.e("s_lshl_b32 s28, s%d, 14" % S_W)
        k.e("v_and_b32 v2, 15, v1")
        k.e("v_mul_lo_u32 v10, v2, s37")
        k.e("v_add_u32 v10, s28, v10")
        k.e("s_lshl_b32 s29, s37, 4")
        k.e("v_lshrrev_b32 v3, 4, v1")
        k.e("v_lshlrev_b32 v3, 2, v3")
        for j in range(9):
            for pp in range(2):
                k.e("v_add_u32 v4, %d, v3" % (16 * j + 2 * pp))
                k.e("v_mul_u32_u24 v5, 3641, v4")
                k.e("v_lshrrev_b32 v5, 16, v5")
                k.e("v_mul_u32_u24 v6, 18, v5")
                k.e("v_sub_u32 v6, v4, v6")
                k.e("v_lshlrev_b32 v5, 11, v5")
                k.e("v_lshrrev_b32 v7, 4, v6")
                k.e("v_mul_lo_u32 v7, v7, s34")
                k.e("v_add_u32 v5, v5, v7")
                k.e("v_bfe_u32 v7, v6, 3, 1")
                k.e("v_mul_lo_u32 v7, v7, s35")
                k.e("v_add_u32 v5, v5, v7")
                k.e("v_and_b32 v7, 7, v6")
                k.e("v_lshlrev_b32 v7, 1, v7")
                k.e("v_add3_u32 v%d, v5, v7, v10" % (AD + (j * 2 + pp) * 2))
                k.e("v_add_u32 v%d, s29, v%d" % (AD + (j * 2 + pp) * 2 + 1, AD + (j * 2 + pp) * 2))
        k.e("v_and_b32 v2, 31, v1")
        k.e("v_mul_lo_u32 v2, v2, s37")
        k.e("v_lshrrev_b32 v3, 5, v1")
        k.e("v_lshlrev_b32 v3, 11, v3")
        k.e("s_add_u32 s29, s28, s34")
        k.e("v_add3_u32 v%d, v2, v3, s29" % (AD + 36))
        k.e("v_add_u32 v%d, s35, v%d" % (AD + 37, AD + 36))
        k.e("v_lshlrev_b32 v2, 4, v1")
        k.e("v_add_u32 v%d, s28, v2" % (AD + 38))
    gemm_main(k, g, 18, 3456, True, False, pre=pre)
    k.c("---- QKV epilogue through LDS")
    k.e("s_cmp_eq_u32 s5, 0")
    k.sel(28, "0x%x" % WS_Q, "0x%x" % WS_KV)
    k.sel(29, "0x%x" % (4 << 20), "0x%x" % (8 << 20))
    k.sel(32, 131072, 262144)
    k.sel(31, 2048, 4096)
    k.sel(38, f32(18 ** -0.5 * math.log2(math.e)), "1.0")
    k.e("s_add_u32 s%d, s%d, s28" % (SO, P_WS))
    k.e("s_addc_u32 s%d, s%d, 0" % (SO + 1, P_WS + 1))
    k.e("s_mov_b32 s%d, s29" % (SO + 2))
    k.e("s_mov_b32 s%d, 0x00020000" % (SO + 3))
    k.e("s_mul_i32 s31, s31, s33")
    k.e("s_and_b32 s28, s4, 3")
    k.e("s_lshl_b32 s28, s28, 3")
    k.e("s_mul_i32 s28, s28, s32")
    k.e("s_add_u32 s31, s31, s28")
    k.e("s_cmp_eq_u32 s5, 2")
    k.sel(28, 2048, 0)
    k.e("s_add_u32 s31, s31, s28")
    k.e("v_mov_b32 v4, 0x3f803f80")
    for r in (6, 7, 8, 9, 10, 11):
        k.e("v_mov_b32 v%d, 0" % r)
    k.e("s_barrier")
    for h in (0, 4096, 8192, 12288):
        k.ds("ds_write_b32 v%d, v4 offset:%d" % (AD + 36, 4 + h))
        k.ds("ds_write_b64 v%d, v[6:7] offset:%d" % (AD + 36, 8 + h))
        k.ds("ds_write_b128 v%d, v[8:11] offset:%d" % (AD + 37, h))
    for j in range(9):
        for pp in range(2):
            for mi in range(2):
                a = g.acc(mi, j) + 2 * pp
                k.e("v_mul_f32 v%d, s38, v%d" % (a, a))
                k.e("v_mul_f32 v%d, s38, v%d" % (a + 1, a + 1))
                k.e("v_cvt_pk_bf16_f32 v%d, v%d, v%d" % (a, a, a + 1))
                k.ds("ds_write_b32 v%d, v%d" % (AD + (j * 2 + pp) * 2 + mi, a))
    k.wait(lg='*')
    k.e("v_lshlrev_b32 v2, 4, v1")
    for i0 in (0, 8):
        for i in range(i0, i0 + 8):
            k.ds("ds_read_b128 %s, v%d offset:%d" % (vr(g.ACC + 4 * i, 4), AD + 38, i * 1024), ("R", i))
        for i in range(i0, i0 + 8):
            k.wait(lg=("R", i))
            k.vmem("buffer_store_dwordx4 %s, v2, s[%d:%d], s31 offen offset:%d sc1" % (vr(g.ACC + 4 * i, 4), SO, SO + 3, (i & 1) * 1024))
            if i & 1:
                k.e("s_add_u32 s31, s31, s32")
    if fused:
        k.stamp()
        k.e("s_and_b32 s6, s4, 3")
        k.e("s_mul_i32 s6, s6, 48")
        k.e("s_lshl_b32 s5, s5, 4")
        k.e("s_add_u32 s6, s6, s5")
        k.e("s_add_u32 s6, s6, s3")
        publish(k, F_QKV, 6, first=True)


def k2_gemm1(k, fused=False):
    g = G(4, 3)
    BIAS = g.FREE
    k.c("---- GEMM1: wg s3 = s2-256 in 0..255")
    k.e("s_and_b32 s3, s2, 255")
    k.e("s_and_b32 s4, s3, 7")
    k.e("s_lshl_b32 s4, s4, 2")
    k.e("s_bfe_u32 s5, s3, 0x20003")
    k.e("s_add_u32 s4, s4, s5")
    k.e("s_lshr_b32 s3, s3, 5")
    k.e("s_lshl_b32 s3, s3, 4")
    k.srd(SA, P_WS, WS_Y, SZ_X)
    k.srd(SB, P_W1, 0, 576 * 4608 * 2)
    k.srd(SO, P_WS, WS_H, SZ_H)
    k.srd(SX, P_B1, 0, 9216)
    k.e("s_mul_i32 s%d, s4, 288" % S_BOFF)
    k.e("s_mov_b32 s%d, 0" % S_AOFF)
    k.e("v_lshrrev_b32 v2, 4, v1")
    k.e("v_lshlrev_b32 v2, 3, v2")
    for j in range(9):
        k.vmem("buffer_load_dwordx2 %s, v2, s[%d:%d], s%d offen offset:%d" % (vr(BIAS + 2 * j, 2), SX, SX + 3, S_BOFF, j * 32), "bias")
    a_offsets_frag(k, g, 3, 18432)
    gemm_setup_b(k, g, 9216, True)
    wf = None
    if fused == 2:
        k.e("s_lshr_b32 s39, s3, 1")
        wf = lambda: (await_flags(k, F_LN, 39, 8), k.stamp())
    gemm_main(k, g, 18, 9216, True, True, waitfn=wf)
    k.c("---- GELU epilogue")
    if "ge" in sys.argv:
        k.e("s_setprio 3")
    c0 = -2.0 * math.log2(math.e) * math.sqrt(2.0 / math.pi)
    c1 = c0 * 0.044715
    T = g.A
    for r, c in ((8, c1), (9, c1), (10, c0), (11, c0), (12, 1.0), (13, 1.0)):
        k.e("v_mov_b32 v%d, %s" % (r, f32(c)))
    k.e("s_lshl_b32 s29, s%d, 2" % S_W)
    k.e("s_add_u32 s28, s3, s29")
    k.e("s_mul_i32 s28, s28, 147456")
    k.e("v_lshlrev_b32 v2, 4, v1")
    k.e("v_add_u32 v2, s28, v2")
    for mi in range(4):
        k.e("v_add_u32 v%d, %d, v2" % (g.VA + mi, mi * 147456))
    k.e("s_mul_i32 s30, s4, 9")
    k.e("s_and_b32 s31, s4, 1")
    k.e("s_cmp_lg_u32 s31, 0")
    k.e("s_cbranch_scc1 %s_gelu1" % k.name)
    for par in (0, 1):
        if par:
            k.label("%s_gelu1" % k.name)
        groups = [(0, 1), (2, 3), (4, 5), (6, 7), (8,)] if par == 0 else [(0,), (1, 2), (3, 4), (5, 6), (7, 8)]
        n = 0
        for grp in groups:
            k.e("s_add_u32 s31, s30, %d" % grp[0])
            k.e("s_lshr_b32 s32, s31, 1")
            k.e("s_lshl_b32 s32, s32, 10")
            if len(grp) == 1 and par == 1:
                k.e("s_add_u32 s32, s32, 8")
            bregs = ((4, 6), (14, 2))
            for j, (b0, b1) in zip(grp, bregs):
                b = BIAS + 2 * j
                k.e("v_lshlrev_b32 v%d, 16, v%d" % (b0, b))
                k.e("v_and_b32 v%d, 0xffff0000, v%d" % (b0 + 1, b))
                k.e("v_lshlrev_b32 v%d, 16, v%d" % (b1, b + 1))
                k.e("v_and_b32 v%d, 0xffff0000, v%d" % (b1 + 1, b + 1))
            for mp in range(2):
                prs = []
                slots = []
                for q in range(2):
                    t = T + ((n % 2) * 2 + q) * 12
                    slots.append(t)
                    for jj, j in enumerate(grp):
                        a = g.acc(2 * mp + q, j)
                        prs += [(a, t + 4 * jj, bregs[jj][0]), (a + 2, t + 4 * jj + 2, bregs[jj][1])]
                n += 1
                for a, t, bb in prs:
                    k.e("v_pk_add_f32 %s, %s, %s" % (vr(a, 2), vr(a, 2), vr(bb, 2)))
                for a, t, bb in prs:
                    k.e("v_pk_mul_f32 %s, %s, %s" % (vr(t, 2), vr(a, 2), vr(a, 2)))
                for a, t, bb in prs:
                    k.e("v_pk_fma_f32 %s, %s, v[8:9], v[10:11]" % (vr(t, 2), vr(t, 2)))
                for a, t, bb in prs:
                    k.e("v_pk_mul_f32 %s, %s, %s" % (vr(t, 2), vr(t, 2), vr(a, 2)))
                for a, t, bb in prs:
                    k.e("v_exp_f32 v%d, v%d" % (t, t))
                    k.e("v_exp_f32 v%d, v%d" % (t + 1, t + 1))
                for a, t, bb in prs:
                    k.e("v_pk_add_f32 %s, %s, v[12:13]" % (vr(t, 2), vr(t, 2)))
                for a, t, bb in prs:
                    k.e("v_rcp_f32 v%d, v%d" % (t, t))
                    k.e("v_rcp_f32 v%d, v%d" % (t + 1, t + 1))
                for a, t, bb in prs:
                    k.e("v_pk_mul_f32 %s, %s, %s" % (vr(t, 2), vr(t, 2), vr(a, 2)))
                for q in range(2):
                    t = slots[q]
                    for jj in range(len(grp)):
                        k.e("v_cvt_pk_bf16_f32 v%d, v%d, v%d" % (t + 8 + 2 * jj, t + 4 * jj, t + 4 * jj + 1))
                        k.e("v_cvt_pk_bf16_f32 v%d, v%d, v%d" % (t + 9 + 2 * jj, t + 4 * jj + 2, t + 4 * jj + 3))
                    k.vmem("buffer_store_dwordx%d %s, v%d, s[%d:%d], s32 offen sc1" % (2 * len(grp), vr(t + 8, 2 * len(grp)), g.VA + 2 * mp + q, SO, SO + 3))
        if par == 0:
            k.e("s_branch %s_gelu_end" % k.name)
    k.label("%s_gelu_end" % k.name)
    k.dump(1)
    if fused:
        k.e("s_lshr_b32 s3, s3, 4")
        k.e("s_lshl_b32 s3, s3, 5")
        k.e("s_add_u32 s3, s3, s4")
        if "ge0" in sys.argv:
            k.e("s_setprio 0")
        publish(k, F_H, 3, first=(fused == 1))
    else:
        k.e("s_endpgm")


def attn(k, half, kidx, nxt=None, wait=False):
    N = k.name + "h%d" % half
    O, S0, S1, P0, P1, Q, KR, VR = 16, 32, 48, 64, 72, 80, 88, 104
    SS, PP = (S0, S1), (P0, P1)
    VKC, VVC, VKN, VVN, VKB, VVB, VDM = 120, 121, 122, 123, 124, 125, 126
    S_NB, S_DOFF, S_CNT, S_FLAG, S_T = 28, 29, 30, 31, 32
    LOMASK = 40
    k.c("---- attention: wg s3 in 0..255")
    k.e("s_and_b32 s3, s2, 255")
    k.e("s_and_b32 s4, s3, 7")
    k.e("s_lshr_b32 s5, s3, 6")
    k.e("s_lshl_b32 s5, s5, 3")
    k.e("s_add_u32 s4, s4, s5")
    k.e("s_bfe_u32 s5, s3, 0x30003")
    k.e("s_lshl_b32 s5, s5, 2")
    k.e("s_add_u32 s5, s5, s%d" % S_W)
    k.e("s_add_u32 s5, s5, %d" % (half * 32))
    if wait:
        k.e("s_lshr_b32 s39, s4, 3")
        k.e("s_mul_i32 s39, s39, 48")
        await_flags(k, F_QKV, 39, 48, acquire=True)
        k.stamp()
    k.srd(SA, P_WS, WS_Q, 4 << 20)
    k.srd(SB, P_WS, WS_KV, 8 << 20)
    k.srd(SO, P_WS, WS_O, SZ_X)
    k.e("s_mov_b32 s%d, -1" % LOMASK)
    k.e("s_mov_b32 s%d, 0" % (LOMASK + 1))
    k.e("s_mov_b32 s%d, 0" % S_FLAG)
    k.e("s_lshl_b32 s%d, s%d, 12" % (S_WB, S_W))
    k.e("s_lshl_b32 s%d, s4, 18" % S_DOFF)
    k.e("s_mov_b32 s33, s%d" % S_DOFF)
    k.e("v_lshlrev_b32 v2, 4, v1")
    k.e("v_add_u32 v%d, s%d, v2" % (VDM, S_WB))

    def dma(m0expr):
        k.e(m0expr)
        k.e("s_nop 0")
        for i in range(4):
            k.e("buffer_load_dwordx4 v%d, s[%d:%d], s%d offen offset:%d lds" % (VDM, SB, SB + 3, S_DOFF, i * 1024))
        k.e("s_add_u32 s%d, s%d, 16384" % (S_DOFF, S_DOFF))
    dma("s_mov_b32 m0, s%d" % S_WB)
    k.e("s_lshl_b32 s34, s4, 6")
    k.e("s_add_u32 s34, s34, s5")
    k.e("s_lshl_b32 s34, s34, 11")
    for u in (0, 1):
        k.e("buffer_load_dwordx4 %s, v2, s[%d:%d], s34 offen offset:%d" % (vr(Q + 4 * u, 4), SA, SA + 3, u * 1024))
    dma("s_add_u32 m0, s%d, 16384" % S_WB)
    k.e("v_mov_b32 v%d, v2" % VKB)
    k.e("v_lshrrev_b32 v3, 5, v1")
    k.e("v_lshlrev_b32 v3, 2, v3")
    k.e("v_bfe_u32 v4, v1, 2, 2")
    k.e("v_add_u32 v3, v3, v4")
    k.e("v_lshlrev_b32 v3, 6, v3")
    k.e("v_bfe_u32 v4, v1, 4, 1")
    k.e("v_lshlrev_b32 v4, 5, v4")
    k.e("v_and_b32 v5, 3, v1")
    k.e("v_lshlrev_b32 v5, 3, v5")
    k.e("v_add3_u32 v3, v3, v4, v5")
    k.e("v_add_u32 v%d, 2048, v3" % VVB)
    k.e("v_mov_b32 v%d, v%d" % (VKC, VKB))
    k.e("v_mov_b32 v%d, v%d" % (VVC, VVB))
    k.e("v_add_u32 v%d, 16384, v%d" % (VKN, VKB))
    k.e("v_add_u32 v%d, 16384, v%d" % (VVN, VVB))
    k.e("s_mov_b32 s%d, 16384" % S_NB)
    for r in list(range(O, O + 16)) + list(range(P1, P1 + 8)) + list(range(VR + 8, VR + 16)):
        k.e("v_mov_b32 v%d, 0" % r)
    k.e("s_waitcnt vmcnt(4)")
    k.e("v_cndmask_b32 v%d, 0, v%d, s[%d:%d]" % (Q + 4, Q + 4, LOMASK, LOMASK + 1))
    for r in (5, 6, 7):
        k.e("v_mov_b32 v%d, 0" % (Q + r))
    k.e("s_barrier")
    k.stamp()

    def ldk(buf, va, tile):
        for u in (0, 1):
            k.e("ds_read_b128 %s, v%d offset:%d" % (vr(KR + 8 * buf + 4 * u, 4), va, tile * 4096 + u * 1024))

    def ldv(buf, va, tile):
        for u in (0, 1):
            for h in (0, 1):
                k.e("ds_read_b64_tr_b16 %s, v%d offset:%d" % (vr(VR + 8 * buf + 4 * u + 2 * h, 2), va, tile * 4096 + u * 1024 + h * 512))

    def qk(S, kb, part):
        if part == 0:
            return "v_mfma_f32_32x32x16_bf16 %s, %s, %s, 0" % (vr(S, 16), vr(KR + 8 * kb, 4), vr(Q, 4))
        return "v_mfma_f32_32x32x16_bf16 %s, %s, %s, %s" % (vr(S, 16), vr(KR + 8 * kb + 4, 4), vr(Q + 4, 4), vr(S, 16))

    def pv(vb, P, u):
        return "v_mfma_f32_32x32x16_bf16 %s, %s, %s, %s" % (vr(O, 16), vr(VR + 8 * vb + 4 * u, 4), vr(P + 4 * u, 4), vr(O, 16))

    def softmax_ops(S, P):
        e = lambda i: "v_exp_f32 v%d, v%d" % (S + i, S + i)
        c = lambda i: "v_cvt_pk_bf16_f32 v%d, v%d, v%d" % (P + i, S + 2 * i, S + 2 * i + 1)
        ops = [e(0), e(1), e(2), e(3), c(0)]
        for i in range(1, 7):
            ops += [e(2 * i + 2), e(2 * i + 3), c(i)]
        ops += [c(7)]
        return ops

    def phase(S, P, mf):
        ops = softmax_ops(S, P)
        for i, o in enumerate(ops):
            if i % 6 == 0 and i // 6 < len(mf):
                k.e(mf[i // 6])
            k.e(o)

    def rowmax(S, first, M):
        k.e("v_max3_f32 v2, v%d, v%d, v%d" % (S, S + 1, S + 2))
        for i in range(3, 15, 2):
            k.e("v_max3_f32 v2, v2, v%d, v%d" % (S + i, S + i + 1))
        if first:
            k.e("v_max_f32 v%d, v2, v%d" % (M, S + 15))
        else:
            k.e("v_max3_f32 v%d, v2, v%d, v%d" % (M, S + 15, M))

    def patch(M):
        k.e("v_mov_b32 v3, v%d" % M)
        k.e("v_mov_b32 v4, v%d" % M)
        k.e("s_nop 1")
        k.e("v_permlane32_swap_b32 v3, v4")
        k.e("s_nop 1")
        k.e("v_max_f32 v3, v3, v4")
        k.e("v_sub_f32 v3, 0, v3")
        k.e("v_cvt_pk_bf16_f32 v4, v3, v3")
        k.e("v_lshlrev_b32 v4, 16, v4")
        k.e("v_sub_f32 v3, v3, v4")
        k.e("v_cvt_pk_bf16_f32 v3, v4, v3")
        k.e("v_cndmask_b32 v%d, 0, v3, s[%d:%d]" % (Q + 5, LOMASK, LOMASK + 1))

    ldk(0, VKC, 0)
    ldk(1, VKC, 1)
    k.e("s_waitcnt lgkmcnt(0)")
    k.e(qk(S0, 0, 0))
    k.e(qk(S0, 0, 1))
    k.e("s_nop 7")
    k.e("s_nop 7")
    rowmax(S0, True, 6)
    patch(6)
    k.e("s_nop 1")
    k.e(qk(S0, 0, 0))
    k.e(qk(S0, 0, 1))
    k.e("s_nop 7")
    k.e("s_nop 7")
    k.stamp()
    k.e("s_mov_b32 s%d, 16" % S_CNT)
    k.label(N + "_aloop")
    for tt in range(4):
        k.e("s_waitcnt lgkmcnt(0)")
        if tt == 2:
            k.e("s_waitcnt vmcnt(0)")
            k.e("s_barrier")
            k.e("s_add_u32 s%d, s%d, 16384" % (S_T, S_NB))
            k.e("s_cmp_eq_u32 s%d, 49152" % S_T)
            k.e("s_cmov_b32 s%d, 0" % S_T)
            dma("s_add_u32 m0, s%d, s%d" % (S_T, S_WB))
        if tt + 2 < 4:
            ldk(tt & 1, VKC, tt + 2)
        else:
            ldk(tt & 1, VKN, tt - 2)
        ldv(tt & 1, VVC, tt)
        o = (tt + 1) & 1
        phase(SS[tt & 1], PP[tt & 1], [qk(SS[o], o, 0), qk(SS[o], o, 1), pv(o, PP[o], 0), pv(o, PP[o], 1)])
    k.e("v_mov_b32 v%d, v%d" % (VKC, VKN))
    k.e("v_mov_b32 v%d, v%d" % (VVC, VVN))
    k.e("s_mov_b32 s%d, s%d" % (S_NB, S_T))
    k.e("v_add_u32 v%d, s%d, v%d" % (VKN, S_NB, VKB))
    k.e("v_add_u32 v%d, s%d, v%d" % (VVN, S_NB, VVB))
    k.e("s_sub_u32 s%d, s%d, 1" % (S_CNT, S_CNT))
    k.e("s_cmp_lg_u32 s%d, 0" % S_CNT)
    k.e("s_cbranch_scc1 %s_aloop" % N)
    k.e("s_waitcnt lgkmcnt(0)")
    k.e(pv(1, P1, 0))
    k.e(pv(1, P1, 1))
    k.stamp()
    k.label(N + "_fin")
    k.e("s_waitcnt vmcnt(0) lgkmcnt(0)")
    k.e("s_nop 7")
    k.e("s_nop 7")
    k.e("v_mov_b32 v8, v%d" % (O + 10))
    k.e("v_mov_b32 v9, v%d" % (O + 10))
    k.e("s_nop 1")
    k.e("v_permlane32_swap_b32 v8, v9")
    k.e("s_nop 1")
    k.e("s_cmp_lg_u32 s%d, 0" % S_FLAG)
    k.e("s_cbranch_scc1 %s_store" % N)
    k.e("v_mov_b32 v3, %s" % f32(2.0 ** 40))
    k.e("v_cmp_nlt_f32 vcc, v8, v3")
    k.e("s_cbranch_vccnz %s_fallback" % N)
    k.label(N + "_store")
    k.e("v_rcp_f32 v8, v8")
    k.e("s_lshl_b32 s34, s5, 5")
    k.e("v_and_b32 v2, 31, v1")
    k.e("v_add_u32 v2, s34, v2")
    k.e("v_lshrrev_b32 v3, 4, v2")
    k.e("v_mul_u32_u24 v3, 18432, v3")
    k.e("v_and_b32 v2, 15, v2")
    k.e("v_lshlrev_b32 v2, 4, v2")
    k.e("v_add_u32 v2, v2, v3")
    k.e("s_mul_i32 s35, s4, 18")
    k.e("v_lshrrev_b32 v3, 5, v1")
    k.e("v_lshlrev_b32 v3, 2, v3")
    k.e("v_add_u32 v3, s35, v3")
    AD = S0
    for r, dd in enumerate((0, 2, 8, 10, 16)):
        k.e("v_add_u32 v4, %d, v3" % dd)
        k.e("v_lshrrev_b32 v5, 5, v4")
        k.e("v_lshlrev_b32 v5, 10, v5")
        k.e("v_bfe_u32 v6, v4, 3, 2")
        k.e("v_lshlrev_b32 v6, 8, v6")
        k.e("v_and_b32 v4, 7, v4")
        k.e("v_lshlrev_b32 v4, 1, v4")
        k.e("v_add3_u32 v4, v4, v5, v6")
        k.e("v_add_u32 v%d, v4, v2" % (AD + r))
    for r in range(10):
        k.e("v_mul_f32 v%d, v%d, v8" % (O + r, O + r))
    for r in range(5):
        k.e("v_cvt_pk_bf16_f32 v%d, v%d, v%d" % (O + r, O + 2 * r, O + 2 * r + 1))
    for r in range(4):
        k.e("buffer_store_dword v%d, v%d, s[%d:%d], 0 offen" % (O + r, AD + r, SO, SO + 3))
    k.e("s_mov_b64 exec, s[%d:%d]" % (LOMASK, LOMASK + 1))
    k.e("buffer_store_dword v%d, v%d, s[%d:%d], 0 offen" % (O + 4, AD + 4, SO, SO + 3))
    k.e("s_mov_b64 exec, -1")
    k.dump(kidx)
    k.e("s_branch %s" % nxt if nxt else "s_endpgm")
    k.label(N + "_fallback")
    k.e("s_mov_b32 s%d, 1" % S_FLAG)
    k.e("v_mov_b32 v%d, 0" % (Q + 5))
    k.e("v_mov_b32 v6, 0xff800000")
    k.e("s_add_u32 s38, s%d, 49152" % S_WB)
    k.e("v_lshlrev_b32 v12, 4, v1")
    k.e("v_add_u32 v13, s38, v%d" % VKB)
    k.e("v_add_u32 v14, s38, v%d" % VVB)
    for ps in (0, 1):
        k.e("s_mov_b32 s%d, s33" % S_DOFF)
        k.e("s_mov_b32 s%d, 64" % S_CNT)
        k.label("%s_fb%d" % (N, ps))
        k.e("s_mov_b32 m0, s38")
        k.e("s_nop 0")
        for i in range(4):
            k.e("buffer_load_dwordx4 v12, s[%d:%d], s%d offen offset:%d lds" % (SB, SB + 3, S_DOFF, i * 1024))
        k.e("s_add_u32 s%d, s%d, 4096" % (S_DOFF, S_DOFF))
        k.e("s_waitcnt vmcnt(0)")
        ldk(0, 13, 0)
        if ps:
            ldv(0, 14, 0)
        k.e("s_waitcnt lgkmcnt(0)")
        k.e(qk(S0, 0, 0))
        k.e(qk(S0, 0, 1))
        k.e("s_nop 7")
        k.e("s_nop 7")
        if ps == 0:
            rowmax(S0, False, 6)
        else:
            for o in softmax_ops(S0, P0):
                k.e(o)
            k.e("s_nop 1")
            k.e(pv(0, P0, 0))
            k.e(pv(0, P0, 1))
        k.e("s_sub_u32 s%d, s%d, 1" % (S_CNT, S_CNT))
        k.e("s_cmp_lg_u32 s%d, 0" % S_CNT)
        k.e("s_cbranch_scc1 %s_fb%d" % (N, ps))
        if ps == 0:
            patch(6)
            for r in range(16):
                k.e("v_mov_b32 v%d, 0" % (O + r))
            k.e("s_nop 1")
    k.e("s_branch %s_fin" % N)


def attn2(k, kidx, nxt=None, wait=False):
    OA, OB, SAq, SBq, PA, PB, QA, QB, KR, VR = 16, 32, 48, 64, 80, 88, 96, 104, 112, 128
    VKC, VVC, VKN, VVN, VKB, VVB, VDM = 144, 145, 146, 147, 148, 149, 150
    S_NB, S_DOFF, S_CNT, S_FLAG, S_T = 28, 29, 30, 31, 32
    LOMASK = 40
    k.c("---- attention: wg s3 = s2-256")
    k.e("s_and_b32 s3, s2, 255")
    k.e("s_and_b32 s4, s3, 7")
    k.e("s_lshr_b32 s5, s3, 6")
    k.e("s_lshl_b32 s5, s5, 3")
    k.e("s_add_u32 s4, s4, s5")
    k.e("s_bfe_u32 s5, s3, 0x30003")
    if wait:
        k.e("s_lshr_b32 s39, s4, 3")
        k.e("s_mul_i32 s39, s39, 48")
        await_flags(k, F_QKV, 39, 48, acquire=True)
        k.stamp()
    k.srd(SA, P_WS, WS_Q, 4 << 20)
    k.srd(SB, P_WS, WS_KV, 8 << 20)
    k.srd(SO, P_WS, WS_O, SZ_X)
    k.e("s_mov_b32 s%d, -1" % LOMASK)
    k.e("s_mov_b32 s%d, 0" % (LOMASK + 1))
    k.e("s_mov_b32 s%d, 0" % S_FLAG)
    k.e("s_lshl_b32 s%d, s%d, 12" % (S_WB, S_W))
    k.e("s_lshl_b32 s%d, s4, 18" % S_DOFF)
    k.e("s_mov_b32 s33, s%d" % S_DOFF)
    k.e("v_lshlrev_b32 v2, 4, v1")
    k.e("v_add_u32 v%d, s%d, v2" % (VDM, S_WB))
    def dma(m0expr):
        k.e(m0expr)
        k.e("s_nop 0")
        for i in range(4):
            k.e("buffer_load_dwordx4 v%d, s[%d:%d], s%d offen offset:%d lds" % (VDM, SB, SB + 3, S_DOFF, i * 1024))
        k.e("s_add_u32 s%d, s%d, 16384" % (S_DOFF, S_DOFF))
    dma("s_mov_b32 m0, s%d" % S_WB)
    dma("s_add_u32 m0, s%d, 16384" % S_WB)
    k.e("s_lshl_b32 s34, s4, 6")
    k.e("s_lshl_b32 s35, s5, 3")
    k.e("s_add_u32 s34, s34, s35")
    k.e("s_lshl_b32 s35, s%d, 1" % S_W)
    k.e("s_add_u32 s34, s34, s35")
    k.e("s_lshl_b32 s34, s34, 11")
    for X in (0, 1):
        for u in (0, 1):
            k.e("buffer_load_dwordx4 %s, v2, s[%d:%d], s34 offen offset:%d" % (vr(QA + 8 * X + 4 * u, 4), SA, SA + 3, X * 2048 + u * 1024))
    k.e("v_mov_b32 v%d, v2" % VKB)
    k.e("v_lshrrev_b32 v3, 5, v1")
    k.e("v_lshlrev_b32 v3, 2, v3")
    k.e("v_bfe_u32 v4, v1, 2, 2")
    k.e("v_add_u32 v3, v3, v4")
    k.e("v_lshlrev_b32 v3, 6, v3")
    k.e("v_bfe_u32 v4, v1, 4, 1")
    k.e("v_lshlrev_b32 v4, 5, v4")
    k.e("v_and_b32 v5, 3, v1")
    k.e("v_lshlrev_b32 v5, 3, v5")
    k.e("v_add3_u32 v3, v3, v4, v5")
    k.e("v_add_u32 v%d, 2048, v3" % VVB)
    k.e("v_mov_b32 v%d, v%d" % (VKC, VKB))
    k.e("v_mov_b32 v%d, v%d" % (VVC, VVB))
    k.e("v_add_u32 v%d, 16384, v%d" % (VKN, VKB))
    k.e("v_add_u32 v%d, 16384, v%d" % (VVN, VVB))
    k.e("s_mov_b32 s%d, 16384" % S_NB)
    for r in range(32):
        k.e("v_mov_b32 v%d, 0" % (OA + r))
    k.e("s_waitcnt vmcnt(0)")
    for X in (0, 1):
        q = QA + 8 * X + 4
        k.e("v_cndmask_b32 v%d, 0, v%d, s[%d:%d]" % (q, q, LOMASK, LOMASK + 1))
        for r in (1, 2, 3):
            k.e("v_mov_b32 v%d, 0" % (q + r))
    k.e("s_barrier")
    k.stamp()

    def ldk(buf, va, tile):
        for u in (0, 1):
            k.e("ds_read_b128 %s, v%d offset:%d" % (vr(KR + 8 * buf + 4 * u, 4), va, tile * 4096 + u * 1024))

    def ldv(buf, va, tile):
        for u in (0, 1):
            for h in (0, 1):
                k.e("ds_read_b64_tr_b16 %s, v%d offset:%d" % (vr(VR + 8 * buf + 4 * u + 2 * h, 2), va, tile * 4096 + u * 1024 + h * 512))

    def qk(S, kb, Q, part):
        if part == 0:
            return "v_mfma_f32_32x32x16_bf16 %s, %s, %s, 0" % (vr(S, 16), vr(KR + 8 * kb, 4), vr(Q, 4))
        return "v_mfma_f32_32x32x16_bf16 %s, %s, %s, %s" % (vr(S, 16), vr(KR + 8 * kb + 4, 4), vr(Q + 4, 4), vr(S, 16))

    def pv(O, vb, P, u):
        return "v_mfma_f32_32x32x16_bf16 %s, %s, %s, %s" % (vr(O, 16), vr(VR + 8 * vb + 4 * u, 4), vr(P + 4 * u, 4), vr(O, 16))

    def softmax_ops(S, P):
        e = lambda i: "v_exp_f32 v%d, v%d" % (S + i, S + i)
        c = lambda i: "v_cvt_pk_bf16_f32 v%d, v%d, v%d" % (P + i, S + 2 * i, S + 2 * i + 1)
        ops = [e(0), e(1), e(2), e(3), c(0)]
        for i in range(1, 7):
            ops += [e(2 * i + 2), e(2 * i + 3), c(i)]
        ops += [c(7)]
        return ops

    def phase(S, P, mf):
        ops = softmax_ops(S, P)
        for i, o in enumerate(ops):
            if i % 6 == 0 and i // 6 < len(mf) and "aXm" not in sys.argv:
                k.e(mf[i // 6])
            if "aXc" in sys.argv and "cvt" in o:
                continue
            if "aXe" in sys.argv and "exp" in o:
                continue
            k.e(o)

    def rowmax_patch(S, Q, first, M):
        k.e("v_max3_f32 v2, v%d, v%d, v%d" % (S, S + 1, S + 2))
        for i in range(3, 15, 2):
            k.e("v_max3_f32 v2, v2, v%d, v%d" % (S + i, S + i + 1))
        if first:
            k.e("v_max_f32 v%d, v2, v%d" % (M, S + 15))
        else:
            k.e("v_max3_f32 v%d, v2, v%d, v%d" % (M, S + 15, M))

    def patch(M, Q):
        k.e("v_mov_b32 v3, v%d" % M)
        k.e("v_mov_b32 v4, v%d" % M)
        k.e("s_nop 1")
        k.e("v_permlane32_swap_b32 v3, v4")
        k.e("s_nop 1")
        k.e("v_max_f32 v3, v3, v4")
        k.e("v_sub_f32 v3, 0, v3")
        k.e("v_cvt_pk_bf16_f32 v4, v3, v3")
        k.e("v_lshlrev_b32 v4, 16, v4")
        k.e("v_sub_f32 v3, v3, v4")
        k.e("v_cvt_pk_bf16_f32 v3, v4, v3")
        k.e("v_cndmask_b32 v%d, 0, v3, s[%d:%d]" % (Q + 5, LOMASK, LOMASK + 1))

    ldk(0, VKC, 0)
    ldk(1, VKC, 1)
    ldv(0, VVC, 0)
    k.e("s_waitcnt lgkmcnt(0)")
    for S, Q in ((SAq, QA), (SBq, QB)):
        k.e(qk(S, 0, Q, 0))
        k.e(qk(S, 0, Q, 1))
    k.e("s_nop 7")
    k.e("s_nop 7")
    rowmax_patch(SAq, QA, True, 6)
    rowmax_patch(SBq, QB, True, 7)
    patch(6, QA)
    patch(7, QB)
    k.e("s_nop 1")
    k.e(qk(SAq, 0, QA, 0))
    k.e(qk(SAq, 0, QA, 1))
    k.e("s_nop 7")
    k.e("s_nop 7")
    phase(SAq, PA, [qk(SBq, 0, QB, 0), qk(SBq, 0, QB, 1)])
    k.stamp()
    k.e("s_mov_b32 s%d, 16" % S_CNT)
    k.label("ka_loop")
    for tt in range(4):
        k.e("s_waitcnt lgkmcnt(0)")
        if tt == 2:
            k.e("s_waitcnt vmcnt(0)")
            if "aXb" not in sys.argv:
                k.e("s_barrier")
            k.e("s_add_u32 s%d, s%d, 16384" % (S_T, S_NB))
            k.e("s_cmp_eq_u32 s%d, 49152" % S_T)
            k.e("s_cmov_b32 s%d, 0" % S_T)
            dma("s_add_u32 m0, s%d, s%d" % (S_T, S_WB))
        if "aXl" in sys.argv:
            pass
        elif tt + 2 < 4:
            ldk(tt & 1, VKC, tt + 2)
        else:
            ldk(tt & 1, VKN, tt - 2)
        if "aXl" in sys.argv:
            pass
        elif tt + 1 < 4:
            ldv((tt + 1) & 1, VVC, tt + 1)
        else:
            ldv((tt + 1) & 1, VVN, 0)
        kb, vb = (tt + 1) & 1, tt & 1
        phase(SBq, PB, [qk(SAq, kb, QA, 0), qk(SAq, kb, QA, 1), pv(OA, vb, PA, 0), pv(OA, vb, PA, 1)])
        phase(SAq, PA, [qk(SBq, kb, QB, 0), qk(SBq, kb, QB, 1), pv(OB, vb, PB, 0), pv(OB, vb, PB, 1)])
    k.e("v_mov_b32 v%d, v%d" % (VKC, VKN))
    k.e("v_mov_b32 v%d, v%d" % (VVC, VVN))
    k.e("s_mov_b32 s%d, s%d" % (S_NB, S_T))
    k.e("v_add_u32 v%d, s%d, v%d" % (VKN, S_NB, VKB))
    k.e("v_add_u32 v%d, s%d, v%d" % (VVN, S_NB, VVB))
    k.e("s_sub_u32 s%d, s%d, 1" % (S_CNT, S_CNT))
    k.e("s_cmp_lg_u32 s%d, 0" % S_CNT)
    k.e("s_cbranch_scc1 ka_loop")
    k.stamp()
    k.label("ka_fin")
    k.e("s_waitcnt vmcnt(0) lgkmcnt(0)")
    k.e("s_nop 7")
    k.e("s_nop 7")
    for X, O in ((0, OA), (1, OB)):
        k.e("v_mov_b32 v%d, v%d" % (8 + 2 * X, O + 10))
        k.e("v_mov_b32 v%d, v%d" % (9 + 2 * X, O + 10))
    k.e("s_nop 1")
    k.e("v_permlane32_swap_b32 v8, v9")
    k.e("v_permlane32_swap_b32 v10, v11")
    k.e("s_nop 1")
    k.e("s_cmp_lg_u32 s%d, 0" % S_FLAG)
    k.e("s_cbranch_scc1 ka_store")
    k.e("v_max_f32 v2, v8, v10")
    k.e("v_mov_b32 v3, %s" % f32(2.0 ** 40))
    k.e("v_cmp_nlt_f32 vcc, v8, v3")
    k.e("s_nop 1")
    k.e("s_mov_b64 s[36:37], vcc")
    k.e("v_cmp_nlt_f32 vcc, v10, v3")
    k.e("s_nop 1")
    k.e("s_or_b64 s[36:37], vcc, s[36:37]")
    k.e("s_cbranch_scc1 ka_fallback")
    k.label("ka_store")
    k.e("v_rcp_f32 v8, v8")
    k.e("v_rcp_f32 v10, v10")
    k.e("s_lshl_b32 s34, s5, 8")
    k.e("s_lshl_b32 s35, s%d, 6" % S_W)
    k.e("s_add_u32 s34, s34, s35")
    k.e("v_and_b32 v2, 31, v1")
    k.e("v_add_u32 v2, s34, v2")
    k.e("v_lshrrev_b32 v3, 4, v2")
    k.e("v_mul_u32_u24 v3, 18432, v3")
    k.e("v_and_b32 v2, 15, v2")
    k.e("v_lshlrev_b32 v2, 4, v2")
    k.e("v_add_u32 v2, v2, v3")
    k.e("s_mul_i32 s35, s4, 18")
    k.e("v_lshrrev_b32 v3, 5, v1")
    k.e("v_lshlrev_b32 v3, 2, v3")
    k.e("v_add_u32 v3, s35, v3")
    AD = 48
    for r, dd in enumerate((0, 2, 8, 10, 16)):
        k.e("v_add_u32 v4, %d, v3" % dd)
        k.e("v_lshrrev_b32 v5, 5, v4")
        k.e("v_lshlrev_b32 v5, 10, v5")
        k.e("v_bfe_u32 v6, v4, 3, 2")
        k.e("v_lshlrev_b32 v6, 8, v6")
        k.e("v_and_b32 v4, 7, v4")
        k.e("v_lshlrev_b32 v4, 1, v4")
        k.e("v_add3_u32 v4, v4, v5, v6")
        k.e("v_add_u32 v%d, v4, v2" % (AD + r))
    k.e("s_mov_b32 s35, 36864")
    for X, O in ((0, OA), (1, OB)):
        so = "0" if X == 0 else "s35"
        for r in range(10):
            k.e("v_mul_f32 v%d, v%d, v%d" % (O + r, O + r, 8 + 2 * X))
        for r in range(5):
            k.e("v_cvt_pk_bf16_f32 v%d, v%d, v%d" % (O + r, O + 2 * r, O + 2 * r + 1))
        for r in range(4):
            k.e("buffer_store_dword v%d, v%d, s[%d:%d], %s offen" % (O + r, AD + r, SO, SO + 3, so))
        k.e("s_mov_b64 exec, s[%d:%d]" % (LOMASK, LOMASK + 1))
        k.e("buffer_store_dword v%d, v%d, s[%d:%d], %s offen" % (O + 4, AD + 4, SO, SO + 3, so))
        k.e("s_mov_b64 exec, -1")
    k.dump(kidx)
    k.e("s_branch %s" % nxt if nxt else "s_endpgm")
    k.label("ka_fallback")
    k.e("s_mov_b32 s%d, 1" % S_FLAG)
    k.e("v_mov_b32 v%d, 0" % (QA + 5))
    k.e("v_mov_b32 v%d, 0" % (QB + 5))
    k.e("v_mov_b32 v6, 0xff800000")
    k.e("v_mov_b32 v7, 0xff800000")
    k.e("s_add_u32 s38, s%d, 49152" % S_WB)
    k.e("v_lshlrev_b32 v12, 4, v1")
    k.e("v_add_u32 v13, s38, v%d" % VKB)
    k.e("v_add_u32 v14, s38, v%d" % VVB)
    for ps in (0, 1):
        k.e("s_mov_b32 s%d, s33" % S_DOFF)
        k.e("s_mov_b32 s%d, 64" % S_CNT)
        k.label("ka_fb%d" % ps)
        k.e("s_mov_b32 m0, s38")
        k.e("s_nop 0")
        for i in range(4):
            k.e("buffer_load_dwordx4 v12, s[%d:%d], s%d offen offset:%d lds" % (SB, SB + 3, S_DOFF, i * 1024))
        k.e("s_add_u32 s%d, s%d, 4096" % (S_DOFF, S_DOFF))
        k.e("s_waitcnt vmcnt(0)")
        ldk(0, 13, 0)
        if ps:
            ldv(0, 14, 0)
        k.e("s_waitcnt lgkmcnt(0)")
        for S, Q in ((SAq, QA), (SBq, QB)):
            k.e(qk(S, 0, Q, 0))
            k.e(qk(S, 0, Q, 1))
        k.e("s_nop 7")
        k.e("s_nop 7")
        if ps == 0:
            rowmax_patch(SAq, QA, False, 6)
            rowmax_patch(SBq, QB, False, 7)
        else:
            for S, P in ((SAq, PA), (SBq, PB)):
                for o in softmax_ops(S, P):
                    k.e(o)
            k.e("s_nop 1")
            for O, P in ((OA, PA), (OB, PB)):
                k.e(pv(O, 0, P, 0))
                k.e(pv(O, 0, P, 1))
        k.e("s_sub_u32 s%d, s%d, 1" % (S_CNT, S_CNT))
        k.e("s_cmp_lg_u32 s%d, 0" % S_CNT)
        k.e("s_cbranch_scc1 ka_fb%d" % ps)
        if ps == 0:
            patch(6, QA)
            patch(7, QB)
            for r in range(32):
                k.e("v_mov_b32 v%d, 0" % (OA + r))
            k.e("s_nop 1")
    k.e("s_branch ka_fin")


def mixed_kernel(name, half, kidx, gemm, nv, lds):
    k = K(name)
    load_args(k)
    prologue_ids(k)
    k.e("s_cmp_ge_u32 s2, 512")
    k.e("s_cbranch_scc1 %s_exit" % name)
    k.e("s_waitcnt lgkmcnt(0)")
    if "noattn" in sys.argv:
        k.e("s_cmp_lt_u32 s2, 256")
        k.e("s_cbranch_scc1 %s_exit" % name)
    k.e("s_cmp_lt_u32 s2, 256")
    k.e("s_cbranch_scc1 %s_attn" % name)
    if "nogemm" in sys.argv:
        k.e("s_branch %s_exit" % name)
    k.priok = None
    for f in sys.argv:
        if f.startswith("prio"):
            k.priok = int(f[4:])
            k.e("s_setprio 3")
    gemm(k)
    k.label(name + "_attn")
    k.vm = []
    k.lg = []
    attn(k, half, kidx)
    k.label(name + "_exit")
    k.e("s_endpgm")
    return k, nv, lds, 512


def k2():
    return mixed_kernel("k2", 0, 1, k2_gemm1, 252, 65536)


NSLAB = 4


def k3_gemm2(k, fused=False):
    g = G(4, 3, 2, 1, 4)
    k.e("s_and_b32 s5, s2, 3")
    k.e("s_bfe_u32 s3, s2, 0x10002")
    k.e("s_lshl_b32 s3, s3, 3")
    k.e("s_bfe_u32 s4, s2, 0x30005")
    k.e("s_add_u32 s3, s3, s4")
    k.e("s_lshl_b32 s3, s3, 3")
    k.e("s_bfe_u32 s4, s2, 0x20003")
    k.e("s_lshr_b32 s6, s%d, 1" % S_W)
    k.e("s_and_b32 s7, s%d, 1" % S_W)
    k.e("s_lshl_b32 s28, s5, 1")
    k.e("s_add_u32 s28, s28, s6")
    k.srd(SA, P_WS, WS_H, SZ_H)
    k.srd(SB, P_W2, 0, 4608 * 576 * 2)
    k.e("s_mul_i32 s%d, s28, %d" % (S_BOFF, 576 * 1152))
    k.e("s_mul_i32 s29, s4, 288")
    k.e("s_add_u32 s%d, s%d, s29" % (S_BOFF, S_BOFF))
    k.e("s_mul_i32 s%d, s28, %d" % (S_AOFF, 18 * 1024))
    k.e("s_lshl_b32 s28, s7, 2")
    k.e("s_add_u32 s3, s3, s28")
    k.e("s_mul_i32 s28, s3, 147456")
    k.e("v_lshlrev_b32 v2, 4, v1")
    k.e("v_add_u32 v2, s28, v2")
    for i in range(4):
        k.e("v_add_u32 v%d, %d, v2" % (g.VA + i, i * 147456))
    gemm_setup_b(k, g, 1152, False)
    wf = None
    if fused:
        k.e("s_lshr_b32 s39, s3, 4")
        k.e("s_lshl_b32 s39, s39, 5")
        k.e("s_lshl_b32 s28, s5, 3")
        k.e("s_add_u32 s39, s39, s28")
        wf = lambda: (await_flags(k, F_H, 39, 8), k.stamp())
    gemm_main(k, g, 18, 1152, False, True, waitfn=wf)
    k.c("---- exchange halves through LDS, add, store f32 partial tile")
    k.srd(SO, P_WS, WS_P, NSLAB * SLAB)
    k.e("v_lshlrev_b32 v2, 4, v1")
    k.e("s_mul_i32 s28, s%d, 18432" % S_W)
    k.e("v_add_u32 v3, s28, v2")
    k.e("s_xor_b32 s29, s%d, 2" % S_W)
    k.e("s_mul_i32 s29, s29, 18432")
    k.e("v_add_u32 v4, s29, v2")
    k.e("s_lshl_b32 s28, s6, 1")
    k.e("s_add_u32 s28, s28, s3")
    k.e("s_lshl_b32 s28, s28, 2")
    k.e("s_add_u32 s28, s28, s4")
    k.e("s_mul_i32 s28, s28, 9216")
    k.e("s_mul_i32 s29, s5, %d" % SLAB)
    k.e("s_add_u32 s28, s28, s29")
    k.e("s_barrier")
    k.e("s_cmp_lg_u32 s6, 0")
    k.e("s_cbranch_scc1 k3_hi")
    for kh in (0, 1):
        if kh:
            k.label("k3_hi")
        give = [g.acc(mi, j) for mi in ((2, 3) if kh == 0 else (0, 1)) for j in range(9)]
        keep = [g.acc(mi, j) for mi in ((0, 1) if kh == 0 else (2, 3)) for j in range(9)]
        for n, a in enumerate(give):
            k.e("ds_write_b128 v3, %s offset:%d" % (vr(a, 4), n * 1024))
        k.e("s_waitcnt lgkmcnt(0)")
        k.e("s_barrier")
        for n, a in enumerate(give):
            k.e("ds_read_b128 %s, v4 offset:%d" % (vr(a, 4), n * 1024))
            if n >= 8:
                m = n - 8
                k.e("s_waitcnt lgkmcnt(8)")
                k3_fin(k, keep, give, m)
        for m in range(10, 18):
            k.e("s_waitcnt lgkmcnt(%d)" % (17 - m))
            k3_fin(k, keep, give, m)
        k.dump(2)
        k.e("s_endpgm")


def k3():
    return mixed_kernel("k3", 1, 2, k3_gemm2, 236, 73728)


def k23():
    k = K("k2")
    load_args(k)
    prologue_ids(k)
    k.e("s_cmp_ge_u32 s2, 512")
    k.e("s_cbranch_scc1 k2_exit")
    k.e("s_waitcnt lgkmcnt(0)")
    nonce_write(k)
    k.e("s_cmp_lt_u32 s2, 256")
    k.e("s_cbranch_scc1 k2_attn")
    k.priok = None
    if "gp" in sys.argv:
        k.e("s_setprio 3")
    k2_gemm1(k, True)
    k.priok = int(opt("g2p", -1))
    k3_gemm2(k, True)
    k.label("k2_attn")
    k.vm = []
    k.lg = []
    if "a1" in sys.argv:
        attn(k, 0, 1, "k2_attn2")
        k.label("k2_attn2")
        k.e("s_barrier")
        attn(k, 1, 2)
    else:
        attn2(k, 1)
    k.label("k2_exit")
    k.e("s_endpgm")
    return k, 252, 73728, 512


def k3_fin(k, keep, give, m):
    a, b = keep[m], give[m]
    k.e("v_pk_add_f32 %s, %s, %s" % (vr(a, 2), vr(a, 2), vr(b, 2)))
    k.e("v_pk_add_f32 %s, %s, %s" % (vr(a + 2, 2), vr(a + 2, 2), vr(b + 2, 2)))
    j = m % 9
    k.e("buffer_store_dwordx4 %s, v2, s[%d:%d], s28 offen offset:%d%s" % (vr(a, 4), SO, SO + 3, (j % 4) * 1024, " sc1"))
    if j % 4 == 3:
        k.e("s_add_u32 s28, s28, 4096")
    if j == 8:
        k.e("s_add_u32 s28, s28, %d" % (36864 - 8192))


def rnd2(k, x, y):
    k.e("v_cvt_pk_bf16_f32 v7, v%d, v%d" % (x, y))
    k.e("v_lshlrev_b32 v%d, 16, v7" % x)
    k.e("v_and_b32 v%d, 0xffff0000, v7" % y)


def k4():
    k = K("k4")
    load_args(k)
    prologue_ids(k)
    k.e("s_cmp_ge_u32 s2, 256")
    k.e("s_cbranch_scc1 k4_exit")
    k.e("s_waitcnt lgkmcnt(0)")
    g = G(2, 4, 1, 1, 4, AR=int(opt("oar", 3)))
    XCH = 8 * g.BUF
    SG = 36
    k.e("s_and_b32 s4, s2, 3")
    k.e("s_lshr_b32 s3, s2, 2")
    k.e("s_lshl_b32 s3, s3, 1")
    k.srd(SG, P_WS, WS_G, 8192)
    k.e("s_mul_i32 s40, s4, 288")
    k.e("s_and_b32 s41, s%d, 1" % S_W)
    k.e("s_mul_i32 s43, s41, 9216")
    k.e("s_add_u32 s41, s41, s3")
    k.e("v_lshlrev_b32 v10, 4, v1")
    k.e("s_add_u32 s43, s43, %d" % XCH)
    k.e("v_add_u32 v15, s43, v10")
    k.e("s_lshl_b32 s42, s41, 4")
    k.e("v_and_b32 v11, 15, v1")
    k.e("v_add_u32 v11, s42, v11")
    k.e("v_lshrrev_b32 v12, 4, v1")
    k.e("v_lshlrev_b32 v12, 3, v12")
    k.e("v_lshlrev_b32 v13, 2, v11")
    k.vmem("buffer_load_dword v14, v13, s[%d:%d], 0 offen" % (SG, SG + 3), "g")
    k.e("s_cmp_ge_u32 s%d, 2" % S_W)
    k.e("s_cbranch_scc1 k4_help")
    k.srd(SA, P_WS, WS_O, SZ_X)
    k.srd(SB, P_WO, 0, 576 * 576 * 2)
    k.srd(SO, P_OUT, 0, SZ_X)
    k.e("s_mul_i32 s%d, s%d, %d" % (S_BOFF, S_W, 288 * 1152))
    k.e("s_add_u32 s%d, s%d, s40" % (S_BOFF, S_BOFF))
    k.e("s_mul_i32 s%d, s%d, %d" % (S_AOFF, S_W, 9 * 1024))
    k.e("v_mul_u32_u24 v11, 1152, v11")
    k.e("v_add_u32 v11, v11, v12")
    k.e("s_mul_i32 s28, s3, 18432")
    k.e("v_add_u32 v%d, s28, v10" % g.VA)
    k.e("v_add_u32 v%d, 18432, v%d" % (g.VA + 1, g.VA))
    k.e("s_xor_b32 s28, s%d, 1" % S_W)
    k.e("s_mul_i32 s28, s28, 9216")
    k.e("s_add_u32 s28, s28, %d" % XCH)
    k.e("v_add_u32 v13, s28, v10")
    gemm_setup_b(k, g, 1152, True)
    if "k4nog" in sys.argv:
        k.e("s_barrier")
        k.stamp()
    else:
        gemm_main(k, g, 9, 1152, True, True, pre=lambda: k.e("s_barrier"))
    k.wait(vm='*')
    k.e("s_cmp_lg_u32 s%d, 0" % S_W)
    k.e("s_cbranch_scc1 k4_w1")
    T = 88
    for w in (0, 1):
        if w:
            k.label("k4_w1")
        for jj in range(9):
            k.e("ds_write_b128 v13, %s offset:%d" % (vr(g.acc(1 - w, jj), 4), 18432 + jj * 1024))
        k.e("s_waitcnt lgkmcnt(0)")
        k.e("s_barrier")
        for jj in range(9):
            k.e("ds_read_b128 %s, v15 offset:%d" % (vr(g.acc(1 - w, jj), 4), 18432 + jj * 1024))
        for jj in range(9):
            k.e("ds_read_b128 %s, v15 offset:%d" % (vr(T + 4 * jj, 4), jj * 1024))
        for jj in range(9):
            a = g.acc(w, jj)
            b = g.acc(1 - w, jj)
            k.e("s_waitcnt lgkmcnt(%d)" % min(15, 17 - jj))
            k.e("v_pk_add_f32 %s, %s, %s" % (vr(a, 2), vr(a, 2), vr(b, 2)))
            k.e("v_pk_add_f32 %s, %s, %s" % (vr(a + 2, 2), vr(a + 2, 2), vr(b + 2, 2)))
            rnd2(k, a, a + 1)
            rnd2(k, a + 2, a + 3)
            for r in range(4):
                k.e("v_mul_f32 v%d, v14, v%d" % (a + r, a + r))
            rnd2(k, a, a + 1)
            rnd2(k, a + 2, a + 3)
        for jj in range(9):
            a = g.acc(w, jj)
            b = T + 4 * jj
            k.e("s_waitcnt lgkmcnt(%d)" % (8 - jj))
            k.e("v_pk_add_f32 %s, %s, %s" % (vr(a, 2), vr(a, 2), vr(b, 2)))
            k.e("v_pk_add_f32 %s, %s, %s" % (vr(a + 2, 2), vr(a + 2, 2), vr(b + 2, 2)))
            k.e("v_cvt_pk_bf16_f32 v%d, v%d, v%d" % (a, a, a + 1))
            k.e("v_cvt_pk_bf16_f32 v%d, v%d, v%d" % (a + 1, a + 2, a + 3))
            k.e("buffer_store_dwordx2 %s, v11, s[%d:%d], s40 offen offset:%d" % (vr(a, 2), SO, SO + 3, jj * 32))
        k.dump(3)
        k.e("s_endpgm")
    k.label("k4_help")
    k.vm = []
    k.lg = []
    SP = 32
    SL, BIAS = 16, 160
    k.srd(SP, P_WS, WS_P, NSLAB * SLAB)
    k.srd(SX, P_B2, 0, 1152)
    k.e("s_lshl_b32 s42, s41, 2")
    k.e("s_add_u32 s42, s42, s4")
    k.e("s_mul_i32 s42, s42, 9216")
    k.e("s_barrier")
    for n in range(36 if "k4nos" not in sys.argv else 0):
        sl, jj = divmod(n, 9)
        k.e("buffer_load_dwordx4 %s, v10, s[%d:%d], s42 offen offset:%d%s" % (vr(SL + n * 4, 4), SP, SP + 3, (jj % 4) * 1024, pol("pl")))
        if jj % 4 == 3:
            k.e("s_add_u32 s42, s42, 4096")
        if jj == 8:
            k.e("s_add_u32 s42, s42, %d" % (SLAB - 8192))
    for jj in range(9):
        k.e("buffer_load_dwordx2 %s, v12, s[%d:%d], s40 offen offset:%d" % (vr(BIAS + 2 * jj, 2), SX, SX + 3, jj * 32))
    k.e("s_waitcnt vmcnt(0)")
    k.e("v_sub_f32 v6, 1.0, v14")
    bf16_round(k, 6, 6, 6)
    BT = 180
    for jj in range(9):
        b = SL + jj * 4
        k.e("v_lshlrev_b32 v%d, 16, v%d" % (BT, BIAS + 2 * jj))
        k.e("v_and_b32 v%d, 0xffff0000, v%d" % (BT + 1, BIAS + 2 * jj))
        k.e("v_lshlrev_b32 v%d, 16, v%d" % (BT + 2, BIAS + 1 + 2 * jj))
        k.e("v_and_b32 v%d, 0xffff0000, v%d" % (BT + 3, BIAS + 1 + 2 * jj))
        for x, y in ((b, b + 36), (b + 72, b + 108), (b, b + 72)):
            for h in (0, 2):
                k.e("v_pk_add_f32 %s, %s, %s" % (vr(x + h, 2), vr(x + h, 2), vr(y + h, 2)))
        rnd2(k, b, b + 1)
        rnd2(k, b + 2, b + 3)
        for h in (0, 2):
            k.e("v_pk_add_f32 %s, %s, %s" % (vr(b + h, 2), vr(b + h, 2), vr(BT + h, 2)))
        rnd2(k, b, b + 1)
        rnd2(k, b + 2, b + 3)
        for r in range(4):
            k.e("v_mul_f32 v%d, v6, v%d" % (b + r, b + r))
        rnd2(k, b, b + 1)
        rnd2(k, b + 2, b + 3)
        k.e("ds_write_b128 v15, %s offset:%d" % (vr(b, 4), jj * 1024))
    k.e("s_waitcnt lgkmcnt(0)")
    k.e("s_barrier")
    k.label("k4_exit")
    k.e("s_endpgm")
    return k, 184, XCH + 36864, 256


def emit(kernels):
    out = []
    hdr = open("cdna_kernels/%s.s.ref" % NAME).read().split("\n")
    for l in hdr:
        if l.startswith("; @launch") or l.startswith("; Override") or l.startswith("; grid="):
            continue
        if l.startswith(";"):
            out.append(l)
    for k, nv, lds, nwg in kernels:
        out.append("; @launch kernel=%s_kernel grid=(%d,1,1) block=(%d,1,1) lds=%d" % (k.name, nwg, k.block, lds))
    out.append('.amdgcn_target "amdgcn-amd-amdhsa--gfx950"')
    out.append(".text")
    for k, nv, lds, nwg in kernels:
        out.append(".globl %s_kernel" % k.name)
        out.append(".p2align 8")
        out.append(".type %s_kernel,@function" % k.name)
        out.append("%s_kernel:" % k.name)
        out += k.L
    out.append('.section .rodata,"a"')
    for k, nv, lds, nwg in kernels:
        out.append(".p2align 6")
        out.append(".amdhsa_kernel %s_kernel" % k.name)
        out.append("  .amdhsa_next_free_vgpr %d" % nv)
        out.append("  .amdhsa_next_free_sgpr 102")
        out.append("  .amdhsa_accum_offset %d" % ((nv + 3) // 4 * 4))
        out.append("  .amdhsa_group_segment_fixed_size 0")
        out.append("  .amdhsa_kernarg_size 96")
        out.append("  .amdhsa_user_sgpr_count 2")
        out.append("  .amdhsa_user_sgpr_kernarg_segment_ptr 1")
        out.append("  .amdhsa_system_sgpr_workgroup_id_x 1")
        out.append(".end_amdhsa_kernel")
    return "\n".join(out) + "\n"


def k123():
    k = K("k2")
    load_args(k)
    prologue_ids(k)
    k.e("s_cmp_ge_u32 s2, 512")
    k.e("s_cbranch_scc1 k2_exit")
    k.e("s_waitcnt lgkmcnt(0)")
    nonce_write(k)
    k.e("s_cmp_ge_u32 s2, 256")
    k.e("s_cbranch_scc1 k2_g0")
    k.e("s_mov_b32 s3, s2")
    k.e("s_cmp_lt_u32 s2, 192")
    k.e("s_cbranch_scc1 k2_q")
    k.e("s_sub_u32 s3, s2, 192")
    k1_ln(k, True)
    k.label("k2_q")
    if "qp" in sys.argv:
        k.e("s_setprio 3")
    qkv_tile(k)
    k.dump(0)
    if "qp" in sys.argv:
        k.e("s_setprio 0")
    k.label("k2_attn")
    k.vm = []
    k.lg = []
    if "a1" in sys.argv:
        attn(k, 0, 1, "k2_attn2", wait=True)
        k.label("k2_attn2")
        k.e("s_barrier")
        attn(k, 1, 2)
    else:
        attn2(k, 1, wait=True)
    k.label("k2_g0")
    k.e("s_cmp_lg_u32 s%d, 0" % S_W)
    k.e("s_cbranch_scc1 k2_g")
    nonce_get(k)
    k.label("k2_g")
    k.vm = []
    k.lg = []
    k.nstamp = 1
    k.priok = None
    k2_gemm1(k, 2)
    k3_gemm2(k, True)
    k.label("k2_exit")
    k.e("s_endpgm")
    return k, 252, 73728, 512


def klist():
    if "old" in sys.argv:
        return [k1(), k2(), k3(), k4()]
    if "s1" in sys.argv:
        return [k1(), k23(), k4()]
    return [k123(), k4()]


if __name__ == "__main__":
    if "diag" in sys.argv:
        DIAG = True
        open("diag%s.s" % "".join(a.replace("=", "").replace("+", "") for a in sys.argv[1:] if a != "diag"), "w").write(emit(klist()))
        sys.exit(0)
    ks = klist()
    open("cdna_kernels/%s.s" % NAME, "w").write(emit(ks))
    print("written")
```

```python
import math, struct, sys

NAME = "gated_mix__softmax_full_mha__mixer_channel_mlp__prompt"

def f32(x):
    return "0x%08x" % struct.unpack("<I", struct.pack("<f", x))[0]

WS_Y = 0x0
WS_G = 0x240000
WS_Q = 0x400000
WS_KV = 0x800000
WS_H = 0x1000000
WS_O = 0x2400000
WS_P = 0x2800000
WS_F = 0x300000
F_H, F_QKV, F_LN, F_O, F_P = 0x0, 0x1000, 0x2000, 0x3000, 0x4000
WS_DIAG = 0x6000000
DIAG = False
SLAB = 2048 * 576 * 4
SZ_X = 2048 * 576 * 2
SZ_H = 2048 * 4608 * 2


class K:
    def __init__(self, name):
        self.name = name
        self.L = []
        self.vm = []
        self.lg = []
        self.nlabel = 0
        self.nstamp = 0
        self.block = 256

    def e(self, s):
        self.L.append("    " + s)

    def c(self, s):
        self.L.append("    ; " + s)

    def label(self, l):
        self.L.append(l + ":")

    def newlabel(self, p="L"):
        self.nlabel += 1
        return "%s_%s_%d" % (self.name[:6], p, self.nlabel)

    def vmem(self, s, tag=None):
        self.e(s)
        self.vm.append(tag)

    def ds(self, s, tag=None):
        self.e(s)
        self.lg.append(tag)

    def wait(self, vm=None, lg=None):
        parts = []
        if vm is not None:
            if vm == '*':
                n = 0
            else:
                idx = [i for i, t in enumerate(self.vm) if t == vm]
                n = len(self.vm) - 1 - idx[-1] if idx else None
            if n is not None:
                assert n <= 63
                parts.append("vmcnt(%d)" % n)
                self.vm = self.vm[len(self.vm) - n:] if n else []
        if lg is not None:
            if lg == '*':
                n = 0
            else:
                idx = [i for i, t in enumerate(self.lg) if t == lg]
                n = len(self.lg) - 1 - idx[-1] if idx else None
            if n is not None:
                assert n <= 15
                parts.append("lgkmcnt(%d)" % n)
                self.lg = self.lg[len(self.lg) - n:] if n else []
        if parts:
            self.e("s_waitcnt " + " ".join(parts))

    def stamp(self):
        if not DIAG:
            return
        i = self.nstamp
        self.nstamp += 1
        assert i < 8
        self.e("s_waitcnt lgkmcnt(0)")
        self.e("s_memtime s[%d:%d]" % (44 + 2 * i, 45 + 2 * i))
        if i == 0:
            self.e("s_memrealtime s[60:61]")
        self.e("s_waitcnt lgkmcnt(0)")
        self.lg = []

    def dump(self, kidx):
        if not DIAG:
            return
        self.stamp()
        self.e("s_memrealtime s[62:63]")
        self.e("s_waitcnt lgkmcnt(0)")
        l = self.newlabel("nd")
        self.e("s_cmp_lg_u32 s%d, 0" % S_W)
        self.e("s_cbranch_scc1 %s" % l)
        self.srd(88, P_WS, WS_DIAG + kidx * 65536, 65536)
        self.e("s_lshl_b32 s92, s2, 6")
        self.e("v_mov_b32 v2, s92")
        for i in range(self.nstamp):
            self.e("v_mov_b32 v3, s%d" % (44 + 2 * i))
            self.e("buffer_store_dword v3, v2, s[88:91], 0 offen offset:%d" % (4 * i))
        for i in (0, 1):
            self.e("v_mov_b32 v3, s%d" % (60 + 2 * i))
            self.e("buffer_store_dword v3, v2, s[88:91], 0 offen offset:%d" % (56 + 4 * i))
        self.label(l)
        self.nstamp = 1

    def sel(self, d, a, b):
        self.e("s_mov_b32 s%d, %s" % (d, b))
        self.e("s_cmov_b32 s%d, %s" % (d, a))

    def srd(self, d, ptr, off, size):
        if off:
            self.e("s_add_u32 s%d, s%d, 0x%x" % (d, ptr, off))
            self.e("s_addc_u32 s%d, s%d, 0" % (d + 1, ptr + 1))
        else:
            self.e("s_mov_b32 s%d, s%d" % (d, ptr))
            self.e("s_mov_b32 s%d, s%d" % (d + 1, ptr + 1))
        self.e("s_mov_b32 s%d, 0x%x" % (d + 2, size))
        self.e("s_mov_b32 s%d, 0x00020000" % (d + 3))


def pol(tag):
    return "".join(" " + f.split("=")[1].replace("+", " ") for f in sys.argv if f.startswith(tag + "="))


def opt(name, default):
    for f in sys.argv:
        if f.startswith(name + "="):
            return f.split("=")[1]
    return default


def vr(a, n=1):
    return "v%d" % a if n == 1 else "v[%d:%d]" % (a, a + n - 1)


def sr(a, n=1):
    return "s%d" % a if n == 1 else "s[%d:%d]" % (a, a + n - 1)


P_X, P_WQKV, P_WO, P_BX, P_W1, P_B1, P_W2, P_B2, P_GW, P_OUT, P_DBG, P_WS = [64 + 2 * i for i in range(12)]


def load_args(k):
    k.e("s_load_dwordx8 s[64:71], s[0:1], 0")
    k.e("s_load_dwordx8 s[72:79], s[0:1], 32")
    k.e("s_load_dwordx8 s[80:87], s[0:1], 64")


SF, S_NONCE, S_SP = 96, 100, 101
SPIN = 1 << 18


def nonce_write(k):
    l = k.newlabel("nw")
    k.e("s_or_b32 s28, s2, s%d" % S_W)
    k.e("s_cmp_lg_u32 s28, 0")
    k.e("s_cbranch_scc1 %s" % l)
    k.e("s_memrealtime s[28:29]")
    k.srd(SF, P_DBG, 0, 256)
    k.e("s_waitcnt lgkmcnt(0)")
    k.e("s_or_b32 s28, s28, 1")
    k.e("v_mov_b32 v2, s28")
    k.e("v_mov_b32 v3, 0")
    k.e("s_mov_b64 exec, 1")
    k.e("buffer_store_dword v2, v3, s[%d:%d], 0 offen sc1" % (SF, SF + 3))
    k.e("s_mov_b64 exec, -1")
    k.label(l)


def nonce_get(k):
    l = k.newlabel("ng")
    d = k.newlabel("ngd")
    k.srd(SF, P_DBG, 0, 256)
    k.e("v_mov_b32 v3, 0")
    k.e("s_mov_b32 s%d, %d" % (S_SP, SPIN))
    k.label(l)
    k.e("buffer_load_dword v2, v3, s[%d:%d], 0 offen sc1" % (SF, SF + 3))
    k.e("s_waitcnt vmcnt(0)")
    k.e("v_readfirstlane_b32 s%d, v2" % S_NONCE)
    k.e("s_cmp_lg_u32 s%d, 0" % S_NONCE)
    k.e("s_cbranch_scc1 %s" % d)
    k.e("s_sub_u32 s%d, s%d, 1" % (S_SP, S_SP))
    k.e("s_cbranch_scc1 %s" % d)
    k.e("s_sleep 1")
    k.e("s_branch %s" % l)
    k.label(d)
    k.srd(SF, P_WS, WS_F, 0x10000)


def publish(k, base, s_idx, first=False):
    k.e("s_waitcnt vmcnt(0)")
    k.vm = []
    k.e("s_barrier")
    l = k.newlabel("pb")
    k.e("s_cmp_lg_u32 s%d, 0" % S_W)
    k.e("s_cbranch_scc1 %s" % l)
    if first:
        nonce_get(k)
    k.e("s_lshl_b32 s28, s%d, 2" % s_idx)
    k.e("s_add_u32 s28, s28, %d" % base)
    k.e("v_mov_b32 v3, s28")
    k.e("v_mov_b32 v2, s%d" % S_NONCE)
    k.e("s_mov_b64 exec, 1")
    k.e("buffer_store_dword v2, v3, s[%d:%d], 0 offen sc1" % (SF, SF + 3))
    k.e("s_mov_b64 exec, -1")
    k.label(l)


def await_flags(k, base, s_idx, n, first=False, acquire=False, wide=False):
    l = k.newlabel("aw")
    lp = k.newlabel("awl")
    d = k.newlabel("awd")
    k.e("s_cmp_lg_u32 s%d, 0" % S_W)
    k.e("s_cbranch_scc1 %s" % l)
    if first:
        nonce_get(k)
    k.e("s_lshl_b32 s28, s%d, 2" % s_idx)
    k.e("s_add_u32 s28, s28, %d" % base)
    k.e("v_lshlrev_b32 v3, %d, v1" % (3 if wide else 2))
    k.e("v_add_u32 v3, s28, v3")
    if wide:
        n //= 2
    k.e("s_mov_b32 s28, %d" % ((1 << min(n, 32)) - 1))
    k.e("s_mov_b32 s29, %d" % ((1 << max(n - 32, 0)) - 1))
    k.e("s_mov_b64 exec, s[28:29]")
    k.e("s_mov_b32 s%d, %d" % (S_SP, SPIN))
    k.label(lp)
    if wide:
        k.e("buffer_load_dwordx2 v[4:5], v3, s[%d:%d], 0 offen sc1" % (SF, SF + 3))
        k.e("s_waitcnt vmcnt(0)")
        k.e("v_xor_b32 v4, s%d, v4" % S_NONCE)
        k.e("v_xor_b32 v5, s%d, v5" % S_NONCE)
        k.e("v_or_b32 v2, v4, v5")
        k.e("v_cmp_ne_u32 vcc, 0, v2")
    else:
        k.e("buffer_load_dword v2, v3, s[%d:%d], 0 offen sc1" % (SF, SF + 3))
        k.e("s_waitcnt vmcnt(0)")
        k.e("v_cmp_ne_u32 vcc, s%d, v2" % S_NONCE)
    k.e("s_cbranch_vccz %s" % d)
    k.e("s_sub_u32 s%d, s%d, 1" % (S_SP, S_SP))
    k.e("s_cbranch_scc1 %s" % d)
    k.e("s_sleep 1")
    k.e("s_branch %s" % lp)
    k.label(d)
    k.e("s_mov_b64 exec, -1")
    if acquire:
        k.e("buffer_inv sc1")
        k.e("s_waitcnt vmcnt(0)")
    k.label(l)
    k.e("s_barrier")


BUF = 20480
SA, SB, SO, SX = 8, 12, 16, 20
S_WB, S_BOFF, S_AOFF, S_W = 24, 25, 26, 27


class G:
    def __init__(self, MT, LA=2, TW=4, CK=2, NBUF=3, NJ=9, AR=3):
        self.MT = MT
        self.AR = AR
        self.NJ = NJ
        self.LA = LA
        self.TW = TW
        self.CK = CK
        self.NBUF = NBUF
        self.NP = -(-9 * CK // TW)
        self.BUF = 20480 if TW == 4 else 9216 * CK
        self.ACC = 16
        self.A = self.ACC + MT * NJ * 4
        self.B = self.A + AR * MT * 4
        self.VA = self.B + 4 * (LA + 1)
        self.VD = self.VA + MT
        self.VL = self.VD + self.NP
        self.FREE = self.VL + 1

    def acc(self, i, j):
        return self.ACC + (i * self.NJ + j) * 4

    def a(self, ks, i):
        return self.A + ((ks % self.AR) * self.MT + i) * 4

    def b(self, t):
        return self.B + (t % (self.LA + 1)) * 4


def gemm_setup_b(k, g, rsb, bitswap):
    k.c("DMA source offsets")
    if g.TW == 4:
        k.e("s_mul_i32 s%d, s%d, 5120" % (S_WB, S_W))
        k.e("s_mul_i32 s28, s%d, 320" % S_W)
    elif g.TW == 1:
        k.e("s_mul_i32 s31, s%d, %d" % (S_W, g.NBUF * g.BUF))
        k.e("s_mov_b32 s%d, s31" % S_WB)
        k.e("s_mov_b32 s28, 0")
    else:
        P0 = 9 * g.CK - g.NP
        k.e("s_and_b32 s28, s%d, 1" % S_W)
        k.e("s_lshr_b32 s31, s%d, 1" % S_W)
        k.e("s_mul_i32 s31, s31, %d" % (g.NBUF * g.BUF))
        k.e("s_mul_i32 s%d, s28, %d" % (S_WB, P0 * 1024))
        k.e("s_add_u32 s%d, s%d, s31" % (S_WB, S_WB))
        k.e("s_mul_i32 s28, s28, %d" % (P0 * 64))
    for i in range(g.NP):
        k.e("s_add_u32 s29, s28, %d" % (i * 64))
        if i >= 3 and g.TW == 4:
            k.e("s_cmp_ge_u32 s29, 1152")
            k.e("s_cselect_b32 s30, 128, 0")
            k.e("s_sub_u32 s29, s29, s30")
        k.e("v_add_u32 v2, s29, v1")
        k.e("v_mul_u32_u24 v3, 3641, v2")
        k.e("v_lshrrev_b32 v3, 16, v3")
        k.e("v_mul_u32_u24 v4, 18, v3")
        k.e("v_sub_u32 v4, v2, v4")
        if bitswap:
            k.e("v_and_b32 v5, 0x33, v3")
            k.e("v_and_b32 v6, 4, v3")
            k.e("v_lshlrev_b32 v6, 1, v6")
            k.e("v_and_b32 v7, 8, v3")
            k.e("v_lshrrev_b32 v7, 1, v7")
            k.e("v_or3_b32 v3, v5, v6, v7")
        k.e("v_mul_u32_u24 v3, %d, v3" % rsb)
        k.e("v_lshlrev_b32 v4, 4, v4")
        k.e("v_add_u32 v3, v3, v4")
        if i % 4:
            k.e("v_subrev_u32 v%d, %d, v3" % (g.VD + i, (i % 4) * 1024))
        else:
            k.e("v_mov_b32 v%d, v3" % (g.VD + i))
    k.c("LDS tr-read lane address")
    k.e("v_lshrrev_b32 v2, 4, v1")
    k.e("v_and_b32 v3, 15, v1")
    k.e("v_lshrrev_b32 v4, 2, v3")
    if bitswap:
        k.e("v_lshrrev_b32 v5, 1, v2")
        k.e("v_lshlrev_b32 v5, 4, v5")
        k.e("v_and_b32 v6, 1, v2")
        k.e("v_lshlrev_b32 v6, 2, v6")
        k.e("v_add3_u32 v4, v4, v5, v6")
    else:
        k.e("v_lshlrev_b32 v5, 2, v2")
        k.e("v_add_u32 v4, v4, v5")
    k.e("v_mul_u32_u24 v4, 288, v4")
    k.e("v_and_b32 v3, 3, v3")
    k.e("v_lshlrev_b32 v3, 3, v3")
    k.e("v_add_u32 v%d, v4, v3" % g.VL)
    if g.TW != 4:
        k.e("v_add_u32 v%d, s31, v%d" % (g.VL, g.VL))


def gemm_dma_ops(k, g, c, rsb):
    buf = c % g.NBUF
    ops = []
    for i in range(g.NP):
        def op(i=i):
            k.e("s_add_u32 m0, s%d, %d" % (S_WB, buf * g.BUF + (i // 4) * 4096))
            k.e("s_nop 0")
            k.vmem("buffer_load_dwordx4 v%d, s[%d:%d], s%d offen offset:%d lds" % (g.VD + i, SB, SB + 3, S_BOFF, (i % 4) * 1024), ("D", c))
            if i == g.NP - 1:
                k.e("s_add_u32 s%d, s%d, %d" % (S_BOFF, S_BOFF, 32 * g.CK * rsb))
        ops.append(op)
    return ops


def gemm_main(k, g, KS, rsb, bitswap, afrag, extra=None, pre=None, waitfn=None):
    MT = g.MT
    NJ = g.NJ
    NC = KS // g.CK
    HALF = (8 if bitswap else 16) * 288
    SPREAD = "nospread" not in sys.argv

    def aload_ops(ks):
        ops = []
        for i in range(MT):
            def op(i=i):
                if afrag:
                    k.vmem("buffer_load_dwordx4 %s, v%d, s[%d:%d], s%d offen%s" % (vr(g.a(ks, i), 4), g.VA + i, SA, SA + 3, S_AOFF, " sc1" if waitfn else ""), ("A", ks))
                    if i == MT - 1:
                        k.e("s_add_u32 s%d, s%d, 1024" % (S_AOFF, S_AOFF))
                else:
                    k.vmem("buffer_load_dwordx4 %s, v%d, s[%d:%d], s%d offen offset:%d" % (vr(g.a(ks, i), 4), g.VA + i, SA, SA + 3, S_AOFF, ks * 64), ("A", ks))
            ops.append(op)
        return ops

    def bread(t):
        ks, j = divmod(t, NJ)
        off = ((ks // g.CK) % g.NBUF) * g.BUF + (ks % g.CK) * 9216 + j * 32
        b = g.b(t)
        k.ds("ds_read_b64_tr_b16 %s, v%d offset:%d" % (vr(b, 2), g.VL, off), ("B", t))
        k.ds("ds_read_b64_tr_b16 %s, v%d offset:%d" % (vr(b + 2, 2), g.VL, off + HALF), ("B", t))

    k.stamp()
    if waitfn is None:
        ops = gemm_dma_ops(k, g, 0, rsb) + aload_ops(0) + gemm_dma_ops(k, g, 1, rsb) + aload_ops(1)
        for c in range(2, g.NBUF):
            ops += gemm_dma_ops(k, g, c, rsb)
        for ks in range(2, g.AR - 1):
            ops += aload_ops(ks)
    else:
        ops = []
        for c in range(g.NBUF):
            ops += gemm_dma_ops(k, g, c, rsb)
        ops += [waitfn]
        for ks in range(g.AR - 1):
            ops += aload_ops(ks)
    q = []
    for op in ops:
        op()
    if pre is not None:
        pre()
    k.c("zero accumulators")
    for r in range(MT * NJ * 4):
        k.e("v_mov_b32 v%d, 0" % (g.ACC + r))
    k.wait(vm=("D", 0))
    if g.TW > 1:
        k.e("s_barrier")
    k.stamp()
    for t in range(g.LA):
        bread(t)
    NTS = KS * NJ
    for t in range(NTS):
        ks, j = divmod(t, NJ)
        if j == 0 and ks + g.AR - 1 < KS and "xA" not in sys.argv:
            q = aload_ops(ks + g.AR - 1) + q
        if extra is not None:
            extra(ks, j)
        if j == 0 and getattr(k, "priok", None) == ks:
            k.e("s_setprio 0")
        tn = t + g.LA
        if tn < NTS:
            if tn % (NJ * g.CK) == 0:
                c = tn // (NJ * g.CK)
                while any(True for _ in q):
                    q.pop(0)()
                k.wait(vm=("D", c), lg='*')
                if "xB" not in sys.argv and g.TW > 1:
                    k.e("s_barrier")
                if c + g.NBUF - 1 < NC and "xD" not in sys.argv:
                    q += gemm_dma_ops(k, g, c + g.NBUF - 1, rsb)
            bread(tn)
        if q:
            q.pop(0)()
            while q and not SPREAD:
                q.pop(0)()
        k.wait(lg=("B", t), vm=("A", ks) if j == 0 else None)
        for i in range(MT):
            a = g.acc(i, j)
            k.e("v_mfma_f32_16x16x32_bf16 %s, %s, %s, %s" % (vr(a, 4), vr(g.b(t), 4), vr(g.a(ks, i), 4), vr(a, 4)))
    assert not q
    k.e("s_nop 7")
    k.e("s_nop 7")
    k.stamp()


def prologue_ids(k):
    k.stamp()
    k.e("v_and_b32 v1, 63, v0")
    k.e("v_lshrrev_b32 v2, 6, v0")
    k.e("s_nop 0")
    k.e("v_readfirstlane_b32 s%d, v2" % S_W)


def a_offsets_rowmajor(k, g, s_m0, stride):
    k.e("s_mul_i32 s28, s%d, %d" % (S_W, 16 * g.MT))
    k.e("s_add_u32 s28, s28, s%d" % s_m0)
    k.e("v_and_b32 v2, 15, v1")
    k.e("v_add_u32 v2, s28, v2")
    k.e("v_mul_u32_u24 v2, %d, v2" % stride)
    k.e("v_lshrrev_b32 v3, 4, v1")
    k.e("v_lshlrev_b32 v3, 4, v3")
    k.e("v_add_u32 v2, v2, v3")
    for i in range(g.MT):
        k.e("v_add_u32 v%d, %d, v2" % (g.VA + i, i * 16 * stride))


def a_offsets_frag(k, g, s_mt, tile_bytes):
    k.e("s_mul_i32 s28, s%d, %d" % (S_W, g.MT))
    k.e("s_add_u32 s28, s28, s%d" % s_mt)
    k.e("s_mul_i32 s28, s28, %d" % tile_bytes)
    k.e("v_lshlrev_b32 v2, 4, v1")
    k.e("v_add_u32 v2, s28, v2")
    for i in range(g.MT):
        k.e("v_add_u32 v%d, %d, v2" % (g.VA + i, i * tile_bytes))


def bf16_round(k, d, s, t):
    k.e("v_cvt_pk_bf16_f32 v%d, v%d, v%d" % (t, s, s))
    k.e("v_lshlrev_b32 v%d, 16, v%d" % (d, t))


def red8(k, v, t):
    k.e("s_nop 1")
    k.e("v_add_f32_dpp v%d, v%d, v%d quad_perm:[1,0,3,2] row_mask:0xf bank_mask:0xf" % (t, v, v))
    k.e("s_nop 1")
    k.e("v_add_f32_dpp v%d, v%d, v%d quad_perm:[2,3,0,1] row_mask:0xf bank_mask:0xf" % (v, t, t))
    k.e("s_nop 1")
    k.e("v_add_f32_dpp v%d, v%d, v%d row_half_mirror row_mask:0xf bank_mask:0xf" % (t, v, v))
    k.e("v_mov_b32 v%d, v%d" % (v, t))


def k1_ln(k, fused=False):
    k.c("---- LN / gate part")
    k.srd(SA, P_X, 0, SZ_X)
    k.srd(SB, P_GW, 0, 1152)
    k.srd(SO, P_WS, WS_Y, SZ_X)
    k.srd(SX, P_WS, WS_G, 8192)
    X, GW, F = 16, 52, 88
    k.e("s_lshl_b32 s28, s3, 5")
    k.e("s_lshl_b32 s29, s%d, 3" % S_W)
    k.e("s_add_u32 s28, s28, s29")
    k.e("v_lshrrev_b32 v2, 3, v1")
    k.e("v_add_u32 v2, s28, v2")
    k.e("v_and_b32 v3, 7, v1")
    k.e("v_lshlrev_b32 v4, 4, v3")
    k.e("v_mul_u32_u24 v5, 1152, v2")
    k.e("v_add_u32 v5, v5, v4")
    for i in range(9):
        k.vmem("buffer_load_dwordx4 %s, v5, s[%d:%d], 0 offen offset:%d" % (vr(X + 4 * i, 4), SA, SA + 3, i * 128))
    for i in range(9):
        k.vmem("buffer_load_dwordx4 %s, v4, s[%d:%d], 0 offen offset:%d" % (vr(GW + 4 * i, 4), SB, SB + 3, i * 128))
    k.wait(vm='*')
    for i in range(36):
        k.e("v_lshlrev_b32 v%d, 16, v%d" % (F + 2 * i, X + i))
        k.e("v_and_b32 v%d, 0xffff0000, v%d" % (F + 2 * i + 1, X + i))
    k.e("v_add_f32 v6, v%d, v%d" % (F, F + 1))
    k.e("v_add_f32 v7, v%d, v%d" % (F + 2, F + 3))
    for i in range(2, 36):
        k.e("v_add_f32 v%d, v%d, v%d" % (6 + (i & 1), 6 + (i & 1), F + 2 * i))
        k.e("v_add_f32 v%d, v%d, v%d" % (6 + (i & 1), 6 + (i & 1), F + 2 * i + 1))
    k.e("v_add_f32 v6, v6, v7")
    red8(k, 6, 7)
    k.e("v_mul_f32 v6, %s, v6" % f32(1.0 / 576))
    k.e("v_mov_b32 v10, 0")
    k.e("v_mov_b32 v11, 0")
    for i in range(36):
        k.e("v_lshlrev_b32 v8, 16, v%d" % (GW + i))
        k.e("v_and_b32 v9, 0xffff0000, v%d" % (GW + i))
        k.e("v_mul_f32 v8, v8, v%d" % (F + 2 * i))
        k.e("v_mul_f32 v9, v9, v%d" % (F + 2 * i + 1))
        k.e("v_cvt_pk_bf16_f32 v8, v8, v9")
        k.e("v_and_b32 v9, 0xffff0000, v8")
        k.e("v_lshlrev_b32 v8, 16, v8")
        k.e("v_add_f32 v10, v10, v8")
        k.e("v_add_f32 v11, v11, v9")
    k.e("v_add_f32 v10, v10, v11")
    red8(k, 10, 11)
    bf16_round(k, 10, 10, 10)
    k.e("v_mul_f32 v10, %s, v10" % f32(-math.log2(math.e)))
    k.e("v_exp_f32 v10, v10")
    k.e("s_nop 0")
    k.e("v_add_f32 v10, 1.0, v10")
    k.e("v_rcp_f32 v10, v10")
    k.e("s_nop 0")
    bf16_round(k, 10, 10, 10)
    k.e("v_lshlrev_b32 v11, 2, v2")
    k.e("v_cmp_eq_u32 vcc, 0, v3")
    k.e("s_and_saveexec_b64 s[30:31], vcc")
    k.vmem("buffer_store_dword v10, v11, s[%d:%d], 0 offen" % (SX, SX + 3))
    k.e("s_mov_b64 exec, s[30:31]")
    k.e("v_mov_b32 v8, 0")
    k.e("v_mov_b32 v9, 0")
    for i in range(72):
        k.e("v_sub_f32 v12, v%d, v6" % (F + i))
        k.e("v_fma_f32 v%d, v12, v12, v%d" % (8 + (i & 1), 8 + (i & 1)))
    k.e("v_add_f32 v8, v8, v9")
    red8(k, 8, 9)
    k.e("v_mul_f32 v8, %s, v8" % f32(1.0 / 576))
    bf16_round(k, 8, 8, 8)
    k.e("v_add_f32 v8, %s, v8" % f32(1e-5))
    bf16_round(k, 8, 8, 8)
    k.e("v_sqrt_f32 v8, v8")
    k.e("s_nop 0")
    bf16_round(k, 8, 8, 8)
    k.e("v_rcp_f32 v9, v8")
    bf16_round(k, 6, 6, 6)
    for i in range(36):
        a, b = F + 2 * i, F + 2 * i + 1
        k.e("v_sub_f32 v%d, v%d, v6" % (a, a))
        k.e("v_sub_f32 v%d, v%d, v6" % (b, b))
        k.e("v_cvt_pk_bf16_f32 v12, v%d, v%d" % (a, b))
        k.e("v_lshlrev_b32 v%d, 16, v12" % a)
        k.e("v_and_b32 v%d, 0xffff0000, v12" % b)
        for x, q, e in ((a, 12, 13), (b, 14, 15)):
            k.e("v_mul_f32 v%d, v%d, v9" % (q, x))
            k.e("v_fma_f32 v%d, -v%d, v8, v%d" % (e, q, x))
            k.e("v_fma_f32 v%d, v%d, v9, v%d" % (q, e, q))
        k.e("v_cvt_pk_bf16_f32 v%d, v12, v14" % (X + i))
    k.e("v_lshrrev_b32 v5, 4, v2")
    k.e("v_mul_u32_u24 v5, 18432, v5")
    k.e("v_lshrrev_b32 v4, 2, v3")
    k.e("v_lshlrev_b32 v4, 10, v4")
    k.e("v_add_u32 v5, v5, v4")
    k.e("v_and_b32 v4, 3, v3")
    k.e("v_lshlrev_b32 v4, 8, v4")
    k.e("v_add_u32 v5, v5, v4")
    k.e("v_and_b32 v4, 15, v2")
    k.e("v_lshlrev_b32 v4, 4, v4")
    k.e("v_add_u32 v5, v5, v4")
    for i in range(9):
        k.e("s_mov_b32 s28, %d" % ((i >> 1) * 4096))
        k.vmem("buffer_store_dwordx4 %s, v5, s[%d:%d], s28 offen offset:%d%s" % (vr(X + 4 * i, 4), SO, SO + 3, (i & 1) * 2048, " sc1"))
    if "pf1" in sys.argv:
        k.c("---- pull the later kernels' weights towards the chip (read only, results unused)")
        k.e("s_lshl_b32 s28, s3, 2")
        k.e("s_add_u32 s28, s28, s%d" % S_W)
        k.e("s_lshl_b32 s28, s28, 10")
        k.e("v_lshlrev_b32 v4, 4, v1")
        k.e("v_add_u32 v4, s28, v4")
        for ptr, nb in ((P_W1, 4608 * 576 * 2), (P_WO, 576 * 576 * 2), (P_W2, 4608 * 576 * 2)):
            k.srd(SB, ptr, 0, nb)
            for i in range(-(-nb // 262144)):
                k.e("s_mov_b32 s28, %d" % (i * 262144))
                k.e("buffer_load_dwordx4 %s, v4, s[%d:%d], s28 offen" % (vr(88 + 4 * (i % 8), 4), SB, SB + 3))
        k.e("s_waitcnt vmcnt(0)")
        k.vm = []
    if fused:
        k.stamp()
        publish(k, F_LN, 3, first=True)
    k.dump(0)
    if fused:
        k.e("s_branch %s_attn" % k.name)
    else:
        k.e("s_endpgm")


def k1():
    k = K("k1")
    load_args(k)
    prologue_ids(k)
    k.e("s_cmp_ge_u32 s2, 256")
    k.e("s_cbranch_scc1 k1_exit")
    k.e("s_waitcnt lgkmcnt(0)")
    k.e("s_mov_b32 s3, s2")
    k.e("s_cmp_lt_u32 s2, 192")
    k.e("s_cbranch_scc1 k1_q")
    k.e("s_sub_u32 s3, s2, 192")
    k1_ln(k, False)
    k.label("k1_q")
    qkv_tile(k, False)
    k.dump(0)
    k.label("k1_exit")
    k.e("s_endpgm")
    return k, 248, 65536, 256


def k1_body(k, fused):
    g = G(2)
    SC = " sc1" if fused else ""
    k.e("s_cmp_lt_u32 s2, 192")
    k.e("s_cbranch_scc1 k1_gemm")
    k.e("s_sub_u32 s3, s2, 192")
    k1_ln(k, fused)
    k.label("k1_gemm")
    k.vm = []
    k.lg = []
    k.e("s_and_b32 s3, s2, 15")
    k.e("s_lshl_b32 s3, s3, 7")
    k.e("s_lshr_b32 s4, s2, 4")
    k.srd(SA, P_X, 0, SZ_X)
    k.srd(SB, P_WQKV, 0, 576 * 1728 * 2)
    k.e("s_mul_i32 s%d, s4, 288" % S_BOFF)
    k.e("s_mov_b32 s%d, 0" % S_AOFF)
    a_offsets_rowmajor(k, g, 3, 1152)
    gemm_setup_b(k, g, 3456, True)
    gemm_main(k, g, 18, 3456, True, False)
    k.c("---- QKV epilogue")
    k.e("s_lshr_b32 s5, s4, 2")
    k.e("s_and_b32 s6, s4, 3")
    k.e("s_lshl_b32 s6, s6, 3")
    k.e("s_cmp_eq_u32 s5, 0")
    k.sel(28, "0x%x" % WS_Q, "0x%x" % WS_KV)
    k.sel(29, "0x%x" % (4 << 20), "0x%x" % (8 << 20))
    k.sel(32, 131072, 262144)
    k.sel(33, 2048, 4096)
    k.sel(38, f32(18 ** -0.5 * math.log2(math.e)), "1.0")
    k.e("s_add_u32 s%d, s%d, s28" % (SO, P_WS))
    k.e("s_addc_u32 s%d, s%d, 0" % (SO + 1, P_WS + 1))
    k.e("s_mov_b32 s%d, s29" % (SO + 2))
    k.e("s_mov_b32 s%d, 0x00020000" % (SO + 3))
    k.e("s_cmp_eq_u32 s5, 2")
    k.sel(34, 32, 1024)
    k.sel(35, 16, 512)
    k.sel(36, 2048, 0)
    k.sel(37, 64, 16)
    T = g.A
    k.e("s_lshl_b32 s28, s%d, 5" % S_W)
    k.e("s_add_u32 s28, s28, s3")
    k.e("s_lshr_b32 s28, s28, 5")
    k.e("s_mul_i32 s28, s28, s33")
    k.e("s_add_u32 s28, s28, s36")
    k.e("s_mul_i32 s29, s6, s32")
    k.e("s_add_u32 s28, s28, s29")
    k.e("v_and_b32 v2, 15, v1")
    k.e("v_mul_lo_u32 v10, v2, s37")
    k.e("v_add_u32 v10, s28, v10")
    k.e("s_lshl_b32 s29, s37, 4")
    k.e("v_add_u32 v11, s29, v10")
    k.e("v_lshrrev_b32 v3, 4, v1")
    k.e("v_lshlrev_b32 v3, 2, v3")
    for j in range(9):
        for pp in range(2):
            k.e("v_add_u32 v4, %d, v3" % (16 * j + 2 * pp))
            k.e("v_mul_u32_u24 v5, 3641, v4")
            k.e("v_lshrrev_b32 v5, 16, v5")
            k.e("v_mul_u32_u24 v6, 18, v5")
            k.e("v_sub_u32 v6, v4, v6")
            k.e("v_mul_lo_u32 v5, v5, s32")
            k.e("v_lshrrev_b32 v7, 4, v6")
            k.e("v_mul_lo_u32 v7, v7, s34")
            k.e("v_add_u32 v5, v5, v7")
            k.e("v_bfe_u32 v7, v6, 3, 1")
            k.e("v_mul_lo_u32 v7, v7, s35")
            k.e("v_add_u32 v5, v5, v7")
            k.e("v_and_b32 v7, 7, v6")
            k.e("v_lshlrev_b32 v7, 1, v7")
            k.e("v_add_u32 v5, v5, v7")
            for mi in range(2):
                a = g.acc(mi, j) + 2 * pp
                d = T + (j * 4 + pp * 2 + mi) % 16 * 2
                k.e("v_mul_f32 v%d, s38, v%d" % (a, a))
                k.e("v_mul_f32 v%d, s38, v%d" % (a + 1, a + 1))
                k.e("v_cvt_pk_bf16_f32 v%d, v%d, v%d" % (a, a, a + 1))
                k.e("v_add_u32 v%d, v5, v%d" % (a + 1, 10 + mi))
                k.vmem("buffer_store_dword v%d, v%d, s[%d:%d], 0 offen%s" % (a, a + 1, SO, SO + 3, SC))
    if fused:
        k.stamp()
    else:
        k.dump(0)
    k.e("s_cmp_eq_u32 s5, 0")
    k.e("s_cbranch_scc1 k1_done")
    k.e("v_and_b32 v2, 127, v0")
    k.e("v_add_u32 v2, s3, v2")
    k.e("v_lshrrev_b32 v3, 5, v2")
    k.e("v_mul_lo_u32 v3, v3, s33")
    k.e("v_and_b32 v2, 31, v2")
    k.e("v_mul_lo_u32 v2, v2, s37")
    k.e("v_add_u32 v2, v2, v3")
    k.e("v_lshrrev_b32 v3, 7, v0")
    k.e("v_lshlrev_b32 v3, 2, v3")
    k.e("v_add_u32 v3, s6, v3")
    k.e("v_mul_lo_u32 v3, v3, s32")
    k.e("v_add_u32 v2, v2, v3")
    k.e("s_add_u32 s28, s34, s36")
    k.e("v_add_u32 v2, s28, v2")
    k.e("v_add_u32 v3, s35, v2")
    k.e("v_add_u32 v2, 4, v2")
    k.e("v_mov_b32 v4, 0x3f803f80")
    for r in (5, 6, 8, 9, 10, 11):
        k.e("v_mov_b32 v%d, 0" % r)
    k.e("s_mov_b32 s28, 0")
    for h in range(4):
        k.vmem("buffer_store_dwordx3 v[4:6], v2, s[%d:%d], s28 offen%s" % (SO, SO + 3, SC))
        k.vmem("buffer_store_dwordx4 v[8:11], v3, s[%d:%d], s28 offen%s" % (SO, SO + 3, SC))
        k.e("s_add_u32 s28, s28, s32")
    k.label("k1_done")
    if fused:
        k.e("s_and_b32 s6, s4, 3")
        k.e("s_mul_i32 s6, s6, 48")
        k.e("s_lshl_b32 s5, s5, 4")
        k.e("s_add_u32 s6, s6, s5")
        k.e("s_lshr_b32 s3, s3, 7")
        k.e("s_add_u32 s6, s6, s3")
        publish(k, F_QKV, 6, first=True)
        k.dump(0)


def qkv_tile(k, fused=True):
    g = G(2, int(opt("qla", 2)), AR=int(opt("qar", 3)))
    AD = g.FREE
    k.vm = []
    k.lg = []
    k.e("s_lshr_b32 s4, s3, 4")
    k.e("s_and_b32 s3, s3, 15")
    k.srd(SA, P_X, 0, SZ_X)
    k.srd(SB, P_WQKV, 0, 576 * 1728 * 2)
    k.e("s_mul_i32 s%d, s4, 288" % S_BOFF)
    k.e("s_mov_b32 s%d, 0" % S_AOFF)
    k.e("s_lshl_b32 s28, s3, 2")
    k.e("s_add_u32 s33, s28, s%d" % S_W)
    k.e("s_lshl_b32 s28, s33, 5")
    k.e("v_and_b32 v2, 15, v1")
    k.e("v_add_u32 v2, s28, v2")
    k.e("v_mul_u32_u24 v2, 1152, v2")
    k.e("v_lshrrev_b32 v3, 4, v1")
    k.e("v_lshlrev_b32 v3, 4, v3")
    k.e("v_add_u32 v%d, v2, v3" % g.VA)
    k.e("v_add_u32 v%d, %d, v%d" % (g.VA + 1, 16 * 1152, g.VA))
    gemm_setup_b(k, g, 3456, True)

    def pre():
        k.c("epilogue addresses (in the shadow of the first loads)")
        k.e("s_lshr_b32 s5, s4, 2")
        k.e("s_cmp_eq_u32 s5, 2")
        k.sel(34, 32, 1024)
        k.sel(35, 16, 512)
        k.sel(37, 64, 16)
        k.e("s_lshl_b32 s28, s%d, 14" % S_W)
        k.e("v_and_b32 v2, 15, v1")
        k.e("v_mul_lo_u32 v10, v2, s37")
        k.e("v_add_u32 v10, s28, v10")
        k.e("s_lshl_b32 s29, s37, 4")
        k.e("v_lshrrev_b32 v3, 4, v1")
        k.e("v_lshlrev_b32 v3, 2, v3")
        for j in range(9):
            for pp in range(2):
                k.e("v_add_u32 v4, %d, v3" % (16 * j + 2 * pp))
                k.e("v_mul_u32_u24 v5, 3641, v4")
                k.e("v_lshrrev_b32 v5, 16, v5")
                k.e("v_mul_u32_u24 v6, 18, v5")
                k.e("v_sub_u32 v6, v4, v6")
                k.e("v_lshlrev_b32 v5, 11, v5")
                k.e("v_lshrrev_b32 v7, 4, v6")
                k.e("v_mul_lo_u32 v7, v7, s34")
                k.e("v_add_u32 v5, v5, v7")
                k.e("v_bfe_u32 v7, v6, 3, 1")
                k.e("v_mul_lo_u32 v7, v7, s35")
                k.e("v_add_u32 v5, v5, v7")
                k.e("v_and_b32 v7, 7, v6")
                k.e("v_lshlrev_b32 v7, 1, v7")
                k.e("v_add3_u32 v%d, v5, v7, v10" % (AD + (j * 2 + pp) * 2))
                k.e("v_add_u32 v%d, s29, v%d" % (AD + (j * 2 + pp) * 2 + 1, AD + (j * 2 + pp) * 2))
        k.e("v_and_b32 v2, 31, v1")
        k.e("v_mul_lo_u32 v2, v2, s37")
        k.e("v_lshrrev_b32 v3, 5, v1")
        k.e("v_lshlrev_b32 v3, 11, v3")
        k.e("s_add_u32 s29, s28, s34")
        k.e("v_add3_u32 v%d, v2, v3, s29" % (AD + 36))
        k.e("v_add_u32 v%d, s35, v%d" % (AD + 37, AD + 36))
        k.e("v_lshlrev_b32 v2, 4, v1")
        k.e("v_add_u32 v%d, s28, v2" % (AD + 38))
    gemm_main(k, g, 18, 3456, True, False, pre=pre)
    k.c("---- QKV epilogue through LDS")
    k.e("s_cmp_eq_u32 s5, 0")
    k.sel(28, "0x%x" % WS_Q, "0x%x" % WS_KV)
    k.sel(29, "0x%x" % (4 << 20), "0x%x" % (8 << 20))
    k.sel(32, 131072, 262144)
    k.sel(31, 2048, 4096)
    k.sel(38, f32(18 ** -0.5 * math.log2(math.e)), "1.0")
    k.e("s_add_u32 s%d, s%d, s28" % (SO, P_WS))
    k.e("s_addc_u32 s%d, s%d, 0" % (SO + 1, P_WS + 1))
    k.e("s_mov_b32 s%d, s29" % (SO + 2))
    k.e("s_mov_b32 s%d, 0x00020000" % (SO + 3))
    k.e("s_mul_i32 s31, s31, s33")
    k.e("s_and_b32 s28, s4, 3")
    k.e("s_lshl_b32 s28, s28, 3")
    k.e("s_mul_i32 s28, s28, s32")
    k.e("s_add_u32 s31, s31, s28")
    k.e("s_cmp_eq_u32 s5, 2")
    k.sel(28, 2048, 0)
    k.e("s_add_u32 s31, s31, s28")
    k.e("v_mov_b32 v4, 0x3f803f80")
    for r in (6, 7, 8, 9, 10, 11):
        k.e("v_mov_b32 v%d, 0" % r)
    k.e("s_barrier")
    for h in (0, 4096, 8192, 12288):
        k.ds("ds_write_b32 v%d, v4 offset:%d" % (AD + 36, 4 + h))
        k.ds("ds_write_b64 v%d, v[6:7] offset:%d" % (AD + 36, 8 + h))
        k.ds("ds_write_b128 v%d, v[8:11] offset:%d" % (AD + 37, h))
    for j in range(9):
        for pp in range(2):
            for mi in range(2):
                a = g.acc(mi, j) + 2 * pp
                k.e("v_mul_f32 v%d, s38, v%d" % (a, a))
                k.e("v_mul_f32 v%d, s38, v%d" % (a + 1, a + 1))
                k.e("v_cvt_pk_bf16_f32 v%d, v%d, v%d" % (a, a, a + 1))
                k.ds("ds_write_b32 v%d, v%d" % (AD + (j * 2 + pp) * 2 + mi, a))
    k.wait(lg='*')
    k.e("v_lshlrev_b32 v2, 4, v1")
    for i0 in (0, 8):
        for i in range(i0, i0 + 8):
            k.ds("ds_read_b128 %s, v%d offset:%d" % (vr(g.ACC + 4 * i, 4), AD + 38, i * 1024), ("R", i))
        for i in range(i0, i0 + 8):
            k.wait(lg=("R", i))
            k.vmem("buffer_store_dwordx4 %s, v2, s[%d:%d], s31 offen offset:%d sc1" % (vr(g.ACC + 4 * i, 4), SO, SO + 3, (i & 1) * 1024))
            if i & 1:
                k.e("s_add_u32 s31, s31, s32")
    if fused:
        k.stamp()
        k.e("s_and_b32 s6, s4, 3")
        k.e("s_mul_i32 s6, s6, 48")
        k.e("s_lshl_b32 s5, s5, 4")
        k.e("s_add_u32 s6, s6, s5")
        k.e("s_add_u32 s6, s6, s3")
        publish(k, F_QKV, 6, first=True)


def k2_gemm1(k, fused=False):
    g = G(4, 3)
    BIAS = g.FREE
    k.c("---- GEMM1: wg s3 = s2-256 in 0..255")
    k.e("s_and_b32 s3, s2, 255")
    k.e("s_and_b32 s4, s3, 7")
    k.e("s_lshl_b32 s4, s4, 2")
    k.e("s_bfe_u32 s5, s3, 0x20003")
    k.e("s_add_u32 s4, s4, s5")
    k.e("s_lshr_b32 s3, s3, 5")
    k.e("s_lshl_b32 s3, s3, 4")
    k.srd(SA, P_WS, WS_Y, SZ_X)
    k.srd(SB, P_W1, 0, 576 * 4608 * 2)
    k.srd(SO, P_WS, WS_H, SZ_H)
    k.srd(SX, P_B1, 0, 9216)
    k.e("s_mul_i32 s%d, s4, 288" % S_BOFF)
    k.e("s_mov_b32 s%d, 0" % S_AOFF)
    k.e("v_lshrrev_b32 v2, 4, v1")
    k.e("v_lshlrev_b32 v2, 3, v2")
    for j in range(9):
        k.vmem("buffer_load_dwordx2 %s, v2, s[%d:%d], s%d offen offset:%d" % (vr(BIAS + 2 * j, 2), SX, SX + 3, S_BOFF, j * 32), "bias")
    a_offsets_frag(k, g, 3, 18432)
    gemm_setup_b(k, g, 9216, True)
    wf = None
    if fused == 2:
        k.e("s_lshr_b32 s39, s3, 1")
        wf = lambda: (await_flags(k, F_LN, 39, 8), k.stamp())
    gemm_main(k, g, 18, 9216, True, True, waitfn=wf)
    k.c("---- GELU epilogue")
    if "ge" in sys.argv:
        k.e("s_setprio 3")
    c0 = -2.0 * math.log2(math.e) * math.sqrt(2.0 / math.pi)
    c1 = c0 * 0.044715
    T = g.A
    for r, c in ((8, c1), (9, c1), (10, c0), (11, c0), (12, 1.0), (13, 1.0)):
        k.e("v_mov_b32 v%d, %s" % (r, f32(c)))
    k.e("s_lshl_b32 s29, s%d, 2" % S_W)
    k.e("s_add_u32 s28, s3, s29")
    k.e("s_mul_i32 s28, s28, 147456")
    k.e("v_lshlrev_b32 v2, 4, v1")
    k.e("v_add_u32 v2, s28, v2")
    for mi in range(4):
        k.e("v_add_u32 v%d, %d, v2" % (g.VA + mi, mi * 147456))
    k.e("s_mul_i32 s30, s4, 9")
    k.e("s_and_b32 s31, s4, 1")
    k.e("s_cmp_lg_u32 s31, 0")
    k.e("s_cbranch_scc1 %s_gelu1" % k.name)
    for par in (0, 1):
        if par:
            k.label("%s_gelu1" % k.name)
        groups = [(0, 1), (2, 3), (4, 5), (6, 7), (8,)] if par == 0 else [(0,), (1, 2), (3, 4), (5, 6), (7, 8)]
        n = 0
        for grp in groups:
            k.e("s_add_u32 s31, s30, %d" % grp[0])
            k.e("s_lshr_b32 s32, s31, 1")
            k.e("s_lshl_b32 s32, s32, 10")
            if len(grp) == 1 and par == 1:
                k.e("s_add_u32 s32, s32, 8")
            bregs = ((4, 6), (14, 2))
            for j, (b0, b1) in zip(grp, bregs):
                b = BIAS + 2 * j
                k.e("v_lshlrev_b32 v%d, 16, v%d" % (b0, b))
                k.e("v_and_b32 v%d, 0xffff0000, v%d" % (b0 + 1, b))
                k.e("v_lshlrev_b32 v%d, 16, v%d" % (b1, b + 1))
                k.e("v_and_b32 v%d, 0xffff0000, v%d" % (b1 + 1, b + 1))
            for mp in range(2):
                prs = []
                slots = []
                for q in range(2):
                    t = T + ((n % 2) * 2 + q) * 12
                    slots.append(t)
                    for jj, j in enumerate(grp):
                        a = g.acc(2 * mp + q, j)
                        prs += [(a, t + 4 * jj, bregs[jj][0]), (a + 2, t + 4 * jj + 2, bregs[jj][1])]
                n += 1
                for a, t, bb in prs:
                    k.e("v_pk_add_f32 %s, %s, %s" % (vr(a, 2), vr(a, 2), vr(bb, 2)))
                for a, t, bb in prs:
                    k.e("v_pk_mul_f32 %s, %s, %s" % (vr(t, 2), vr(a, 2), vr(a, 2)))
                for a, t, bb in prs:
                    k.e("v_pk_fma_f32 %s, %s, v[8:9], v[10:11]" % (vr(t, 2), vr(t, 2)))
                for a, t, bb in prs:
                    k.e("v_pk_mul_f32 %s, %s, %s" % (vr(t, 2), vr(t, 2), vr(a, 2)))
                for a, t, bb in prs:
                    k.e("v_exp_f32 v%d, v%d" % (t, t))
                    k.e("v_exp_f32 v%d, v%d" % (t + 1, t + 1))
                for a, t, bb in prs:
                    k.e("v_pk_add_f32 %s, %s, v[12:13]" % (vr(t, 2), vr(t, 2)))
                for a, t, bb in prs:
                    k.e("v_rcp_f32 v%d, v%d" % (t, t))
                    k.e("v_rcp_f32 v%d, v%d" % (t + 1, t + 1))
                for a, t, bb in prs:
                    k.e("v_pk_mul_f32 %s, %s, %s" % (vr(t, 2), vr(t, 2), vr(a, 2)))
                for q in range(2):
                    t = slots[q]
                    for jj in range(len(grp)):
                        k.e("v_cvt_pk_bf16_f32 v%d, v%d, v%d" % (t + 8 + 2 * jj, t + 4 * jj, t + 4 * jj + 1))
                        k.e("v_cvt_pk_bf16_f32 v%d, v%d, v%d" % (t + 9 + 2 * jj, t + 4 * jj + 2, t + 4 * jj + 3))
                    k.vmem("buffer_store_dwordx%d %s, v%d, s[%d:%d], s32 offen sc1" % (2 * len(grp), vr(t + 8, 2 * len(grp)), g.VA + 2 * mp + q, SO, SO + 3))
        if par == 0:
            k.e("s_branch %s_gelu_end" % k.name)
    k.label("%s_gelu_end" % k.name)
    k.dump(1)
    if fused:
        k.e("s_lshr_b32 s3, s3, 4")
        k.e("s_lshl_b32 s3, s3, 5")
        k.e("s_add_u32 s3, s3, s4")
        if "ge0" in sys.argv:
            k.e("s_setprio 0")
        publish(k, F_H, 3, first=(fused == 1))
    else:
        k.e("s_endpgm")


def attn(k, half, kidx, nxt=None, wait=False):
    N = k.name + "h%d" % half
    O, S0, S1, P0, P1, Q, KR, VR = 16, 32, 48, 64, 72, 80, 88, 104
    SS, PP = (S0, S1), (P0, P1)
    VKC, VVC, VKN, VVN, VKB, VVB, VDM = 120, 121, 122, 123, 124, 125, 126
    S_NB, S_DOFF, S_CNT, S_FLAG, S_T = 28, 29, 30, 31, 32
    LOMASK = 40
    k.c("---- attention: wg s3 in 0..255")
    k.e("s_and_b32 s3, s2, 255")
    k.e("s_and_b32 s4, s3, 7")
    k.e("s_lshr_b32 s5, s3, 6")
    k.e("s_lshl_b32 s5, s5, 3")
    k.e("s_add_u32 s4, s4, s5")
    k.e("s_bfe_u32 s5, s3, 0x30003")
    k.e("s_lshl_b32 s5, s5, 2")
    k.e("s_add_u32 s5, s5, s%d" % S_W)
    k.e("s_add_u32 s5, s5, %d" % (half * 32))
    if wait:
        k.e("s_lshr_b32 s39, s4, 3")
        k.e("s_mul_i32 s39, s39, 48")
        await_flags(k, F_QKV, 39, 48, acquire=True)
        k.stamp()
    k.srd(SA, P_WS, WS_Q, 4 << 20)
    k.srd(SB, P_WS, WS_KV, 8 << 20)
    k.srd(SO, P_WS, WS_O, SZ_X)
    k.e("s_mov_b32 s%d, -1" % LOMASK)
    k.e("s_mov_b32 s%d, 0" % (LOMASK + 1))
    k.e("s_mov_b32 s%d, 0" % S_FLAG)
    k.e("s_lshl_b32 s%d, s%d, 12" % (S_WB, S_W))
    k.e("s_lshl_b32 s%d, s4, 18" % S_DOFF)
    k.e("s_mov_b32 s33, s%d" % S_DOFF)
    k.e("v_lshlrev_b32 v2, 4, v1")
    k.e("v_add_u32 v%d, s%d, v2" % (VDM, S_WB))

    def dma(m0expr):
        k.e(m0expr)
        k.e("s_nop 0")
        for i in range(4):
            k.e("buffer_load_dwordx4 v%d, s[%d:%d], s%d offen offset:%d lds" % (VDM, SB, SB + 3, S_DOFF, i * 1024))
        k.e("s_add_u32 s%d, s%d, 16384" % (S_DOFF, S_DOFF))
    dma("s_mov_b32 m0, s%d" % S_WB)
    k.e("s_lshl_b32 s34, s4, 6")
    k.e("s_add_u32 s34, s34, s5")
    k.e("s_lshl_b32 s34, s34, 11")
    for u in (0, 1):
        k.e("buffer_load_dwordx4 %s, v2, s[%d:%d], s34 offen offset:%d" % (vr(Q + 4 * u, 4), SA, SA + 3, u * 1024))
    dma("s_add_u32 m0, s%d, 16384" % S_WB)
    k.e("v_mov_b32 v%d, v2" % VKB)
    k.e("v_lshrrev_b32 v3, 5, v1")
    k.e("v_lshlrev_b32 v3, 2, v3")
    k.e("v_bfe_u32 v4, v1, 2, 2")
    k.e("v_add_u32 v3, v3, v4")
    k.e("v_lshlrev_b32 v3, 6, v3")
    k.e("v_bfe_u32 v4, v1, 4, 1")
    k.e("v_lshlrev_b32 v4, 5, v4")
    k.e("v_and_b32 v5, 3, v1")
    k.e("v_lshlrev_b32 v5, 3, v5")
    k.e("v_add3_u32 v3, v3, v4, v5")
    k.e("v_add_u32 v%d, 2048, v3" % VVB)
    k.e("v_mov_b32 v%d, v%d" % (VKC, VKB))
    k.e("v_mov_b32 v%d, v%d" % (VVC, VVB))
    k.e("v_add_u32 v%d, 16384, v%d" % (VKN, VKB))
    k.e("v_add_u32 v%d, 16384, v%d" % (VVN, VVB))
    k.e("s_mov_b32 s%d, 16384" % S_NB)
    for r in list(range(O, O + 16)) + list(range(P1, P1 + 8)) + list(range(VR + 8, VR + 16)):
        k.e("v_mov_b32 v%d, 0" % r)
    k.e("s_waitcnt vmcnt(4)")
    k.e("v_cndmask_b32 v%d, 0, v%d, s[%d:%d]" % (Q + 4, Q + 4, LOMASK, LOMASK + 1))
    for r in (5, 6, 7):
        k.e("v_mov_b32 v%d, 0" % (Q + r))
    k.e("s_barrier")
    k.stamp()

    def ldk(buf, va, tile):
        for u in (0, 1):
            k.e("ds_read_b128 %s, v%d offset:%d" % (vr(KR + 8 * buf + 4 * u, 4), va, tile * 4096 + u * 1024))

    def ldv(buf, va, tile):
        for u in (0, 1):
            for h in (0, 1):
                k.e("ds_read_b64_tr_b16 %s, v%d offset:%d" % (vr(VR + 8 * buf + 4 * u + 2 * h, 2), va, tile * 4096 + u * 1024 + h * 512))

    def qk(S, kb, part):
        if part == 0:
            return "v_mfma_f32_32x32x16_bf16 %s, %s, %s, 0" % (vr(S, 16), vr(KR + 8 * kb, 4), vr(Q, 4))
        return "v_mfma_f32_32x32x16_bf16 %s, %s, %s, %s" % (vr(S, 16), vr(KR + 8 * kb + 4, 4), vr(Q + 4, 4), vr(S, 16))

    def pv(vb, P, u):
        return "v_mfma_f32_32x32x16_bf16 %s, %s, %s, %s" % (vr(O, 16), vr(VR + 8 * vb + 4 * u, 4), vr(P + 4 * u, 4), vr(O, 16))

    def softmax_ops(S, P):
        e = lambda i: "v_exp_f32 v%d, v%d" % (S + i, S + i)
        c = lambda i: "v_cvt_pk_bf16_f32 v%d, v%d, v%d" % (P + i, S + 2 * i, S + 2 * i + 1)
        ops = [e(0), e(1), e(2), e(3), c(0)]
        for i in range(1, 7):
            ops += [e(2 * i + 2), e(2 * i + 3), c(i)]
        ops += [c(7)]
        return ops

    def phase(S, P, mf):
        ops = softmax_ops(S, P)
        for i, o in enumerate(ops):
            if i % 6 == 0 and i // 6 < len(mf):
                k.e(mf[i // 6])
            k.e(o)

    def rowmax(S, first, M):
        k.e("v_max3_f32 v2, v%d, v%d, v%d" % (S, S + 1, S + 2))
        for i in range(3, 15, 2):
            k.e("v_max3_f32 v2, v2, v%d, v%d" % (S + i, S + i + 1))
        if first:
            k.e("v_max_f32 v%d, v2, v%d" % (M, S + 15))
        else:
            k.e("v_max3_f32 v%d, v2, v%d, v%d" % (M, S + 15, M))

    def patch(M):
        k.e("v_mov_b32 v3, v%d" % M)
        k.e("v_mov_b32 v4, v%d" % M)
        k.e("s_nop 1")
        k.e("v_permlane32_swap_b32 v3, v4")
        k.e("s_nop 1")
        k.e("v_max_f32 v3, v3, v4")
        k.e("v_sub_f32 v3, 0, v3")
        k.e("v_cvt_pk_bf16_f32 v4, v3, v3")
        k.e("v_lshlrev_b32 v4, 16, v4")
        k.e("v_sub_f32 v3, v3, v4")
        k.e("v_cvt_pk_bf16_f32 v3, v4, v3")
        k.e("v_cndmask_b32 v%d, 0, v3, s[%d:%d]" % (Q + 5, LOMASK, LOMASK + 1))

    ldk(0, VKC, 0)
    ldk(1, VKC, 1)
    k.e("s_waitcnt lgkmcnt(0)")
    k.e(qk(S0, 0, 0))
    k.e(qk(S0, 0, 1))
    k.e("s_nop 7")
    k.e("s_nop 7")
    rowmax(S0, True, 6)
    patch(6)
    k.e("s_nop 1")
    k.e(qk(S0, 0, 0))
    k.e(qk(S0, 0, 1))
    k.e("s_nop 7")
    k.e("s_nop 7")
    k.stamp()
    k.e("s_mov_b32 s%d, 16" % S_CNT)
    k.label(N + "_aloop")
    for tt in range(4):
        k.e("s_waitcnt lgkmcnt(0)")
        if tt == 2:
            k.e("s_waitcnt vmcnt(0)")
            k.e("s_barrier")
            k.e("s_add_u32 s%d, s%d, 16384" % (S_T, S_NB))
            k.e("s_cmp_eq_u32 s%d, 49152" % S_T)
            k.e("s_cmov_b32 s%d, 0" % S_T)
            dma("s_add_u32 m0, s%d, s%d" % (S_T, S_WB))
        if tt + 2 < 4:
            ldk(tt & 1, VKC, tt + 2)
        else:
            ldk(tt & 1, VKN, tt - 2)
        ldv(tt & 1, VVC, tt)
        o = (tt + 1) & 1
        phase(SS[tt & 1], PP[tt & 1], [qk(SS[o], o, 0), qk(SS[o], o, 1), pv(o, PP[o], 0), pv(o, PP[o], 1)])
    k.e("v_mov_b32 v%d, v%d" % (VKC, VKN))
    k.e("v_mov_b32 v%d, v%d" % (VVC, VVN))
    k.e("s_mov_b32 s%d, s%d" % (S_NB, S_T))
    k.e("v_add_u32 v%d, s%d, v%d" % (VKN, S_NB, VKB))
    k.e("v_add_u32 v%d, s%d, v%d" % (VVN, S_NB, VVB))
    k.e("s_sub_u32 s%d, s%d, 1" % (S_CNT, S_CNT))
    k.e("s_cmp_lg_u32 s%d, 0" % S_CNT)
    k.e("s_cbranch_scc1 %s_aloop" % N)
    k.e("s_waitcnt lgkmcnt(0)")
    k.e(pv(1, P1, 0))
    k.e(pv(1, P1, 1))
    k.stamp()
    k.label(N + "_fin")
    k.e("s_waitcnt vmcnt(0) lgkmcnt(0)")
    k.e("s_nop 7")
    k.e("s_nop 7")
    k.e("v_mov_b32 v8, v%d" % (O + 10))
    k.e("v_mov_b32 v9, v%d" % (O + 10))
    k.e("s_nop 1")
    k.e("v_permlane32_swap_b32 v8, v9")
    k.e("s_nop 1")
    k.e("s_cmp_lg_u32 s%d, 0" % S_FLAG)
    k.e("s_cbranch_scc1 %s_store" % N)
    k.e("v_mov_b32 v3, %s" % f32(2.0 ** 40))
    k.e("v_cmp_nlt_f32 vcc, v8, v3")
    k.e("s_cbranch_vccnz %s_fallback" % N)
    k.label(N + "_store")
    k.e("v_rcp_f32 v8, v8")
    k.e("s_lshl_b32 s34, s5, 5")
    k.e("v_and_b32 v2, 31, v1")
    k.e("v_add_u32 v2, s34, v2")
    k.e("v_lshrrev_b32 v3, 4, v2")
    k.e("v_mul_u32_u24 v3, 18432, v3")
    k.e("v_and_b32 v2, 15, v2")
    k.e("v_lshlrev_b32 v2, 4, v2")
    k.e("v_add_u32 v2, v2, v3")
    k.e("s_mul_i32 s35, s4, 18")
    k.e("v_lshrrev_b32 v3, 5, v1")
    k.e("v_lshlrev_b32 v3, 2, v3")
    k.e("v_add_u32 v3, s35, v3")
    AD = S0
    for r, dd in enumerate((0, 2, 8, 10, 16)):
        k.e("v_add_u32 v4, %d, v3" % dd)
        k.e("v_lshrrev_b32 v5, 5, v4")
        k.e("v_lshlrev_b32 v5, 10, v5")
        k.e("v_bfe_u32 v6, v4, 3, 2")
        k.e("v_lshlrev_b32 v6, 8, v6")
        k.e("v_and_b32 v4, 7, v4")
        k.e("v_lshlrev_b32 v4, 1, v4")
        k.e("v_add3_u32 v4, v4, v5, v6")
        k.e("v_add_u32 v%d, v4, v2" % (AD + r))
    for r in range(10):
        k.e("v_mul_f32 v%d, v%d, v8" % (O + r, O + r))
    for r in range(5):
        k.e("v_cvt_pk_bf16_f32 v%d, v%d, v%d" % (O + r, O + 2 * r, O + 2 * r + 1))
    for r in range(4):
        k.e("buffer_store_dword v%d, v%d, s[%d:%d], 0 offen" % (O + r, AD + r, SO, SO + 3))
    k.e("s_mov_b64 exec, s[%d:%d]" % (LOMASK, LOMASK + 1))
    k.e("buffer_store_dword v%d, v%d, s[%d:%d], 0 offen" % (O + 4, AD + 4, SO, SO + 3))
    k.e("s_mov_b64 exec, -1")
    k.dump(kidx)
    k.e("s_branch %s" % nxt if nxt else "s_endpgm")
    k.label(N + "_fallback")
    k.e("s_mov_b32 s%d, 1" % S_FLAG)
    k.e("v_mov_b32 v%d, 0" % (Q + 5))
    k.e("v_mov_b32 v6, 0xff800000")
    k.e("s_add_u32 s38, s%d, 49152" % S_WB)
    k.e("v_lshlrev_b32 v12, 4, v1")
    k.e("v_add_u32 v13, s38, v%d" % VKB)
    k.e("v_add_u32 v14, s38, v%d" % VVB)
    for ps in (0, 1):
        k.e("s_mov_b32 s%d, s33" % S_DOFF)
        k.e("s_mov_b32 s%d, 64" % S_CNT)
        k.label("%s_fb%d" % (N, ps))
        k.e("s_mov_b32 m0, s38")
        k.e("s_nop 0")
        for i in range(4):
            k.e("buffer_load_dwordx4 v12, s[%d:%d], s%d offen offset:%d lds" % (SB, SB + 3, S_DOFF, i * 1024))
        k.e("s_add_u32 s%d, s%d, 4096" % (S_DOFF, S_DOFF))
        k.e("s_waitcnt vmcnt(0)")
        ldk(0, 13, 0)
        if ps:
            ldv(0, 14, 0)
        k.e("s_waitcnt lgkmcnt(0)")
        k.e(qk(S0, 0, 0))
        k.e(qk(S0, 0, 1))
        k.e("s_nop 7")
        k.e("s_nop 7")
        if ps == 0:
            rowmax(S0, False, 6)
        else:
            for o in softmax_ops(S0, P0):
                k.e(o)
            k.e("s_nop 1")
            k.e(pv(0, P0, 0))
            k.e(pv(0, P0, 1))
        k.e("s_sub_u32 s%d, s%d, 1" % (S_CNT, S_CNT))
        k.e("s_cmp_lg_u32 s%d, 0" % S_CNT)
        k.e("s_cbranch_scc1 %s_fb%d" % (N, ps))
        if ps == 0:
            patch(6)
            for r in range(16):
                k.e("v_mov_b32 v%d, 0" % (O + r))
            k.e("s_nop 1")
    k.e("s_branch %s_fin" % N)


def attn2(k, kidx, nxt=None, wait=False):
    OA, OB, SAq, SBq, PA, PB, QA, QB, KR, VR = 16, 32, 48, 64, 80, 88, 96, 104, 112, 128
    VKC, VVC, VKN, VVN, VKB, VVB, VDM = 144, 145, 146, 147, 148, 149, 150
    S_NB, S_DOFF, S_CNT, S_FLAG, S_T = 28, 29, 30, 31, 32
    LOMASK = 40
    k.c("---- attention: wg s3 = s2-256")
    k.e("s_and_b32 s3, s2, 255")
    k.e("s_and_b32 s4, s3, 7")
    k.e("s_lshr_b32 s5, s3, 6")
    k.e("s_lshl_b32 s5, s5, 3")
    k.e("s_add_u32 s4, s4, s5")
    k.e("s_bfe_u32 s5, s3, 0x30003")
    if wait:
        k.e("s_lshr_b32 s39, s4, 3")
        k.e("s_mul_i32 s39, s39, 48")
        await_flags(k, F_QKV, 39, 48, acquire=True)
        k.stamp()
    k.srd(SA, P_WS, WS_Q, 4 << 20)
    k.srd(SB, P_WS, WS_KV, 8 << 20)
    k.srd(SO, P_WS, WS_O, SZ_X)
    k.e("s_mov_b32 s%d, -1" % LOMASK)
    k.e("s_mov_b32 s%d, 0" % (LOMASK + 1))
    k.e("s_mov_b32 s%d, 0" % S_FLAG)
    k.e("s_lshl_b32 s%d, s%d, 12" % (S_WB, S_W))
    k.e("s_lshl_b32 s%d, s4, 18" % S_DOFF)
    k.e("s_mov_b32 s33, s%d" % S_DOFF)
    k.e("v_lshlrev_b32 v2, 4, v1")
    k.e("v_add_u32 v%d, s%d, v2" % (VDM, S_WB))
    def dma(m0expr):
        k.e(m0expr)
        k.e("s_nop 0")
        for i in range(4):
            k.e("buffer_load_dwordx4 v%d, s[%d:%d], s%d offen offset:%d lds" % (VDM, SB, SB + 3, S_DOFF, i * 1024))
        k.e("s_add_u32 s%d, s%d, 16384" % (S_DOFF, S_DOFF))
    dma("s_mov_b32 m0, s%d" % S_WB)
    dma("s_add_u32 m0, s%d, 16384" % S_WB)
    k.e("s_lshl_b32 s34, s4, 6")
    k.e("s_lshl_b32 s35, s5, 3")
    k.e("s_add_u32 s34, s34, s35")
    k.e("s_lshl_b32 s35, s%d, 1" % S_W)
    k.e("s_add_u32 s34, s34, s35")
    k.e("s_lshl_b32 s34, s34, 11")
    for X in (0, 1):
        for u in (0, 1):
            k.e("buffer_load_dwordx4 %s, v2, s[%d:%d], s34 offen offset:%d" % (vr(QA + 8 * X + 4 * u, 4), SA, SA + 3, X * 2048 + u * 1024))
    k.e("v_mov_b32 v%d, v2" % VKB)
    k.e("v_lshrrev_b32 v3, 5, v1")
    k.e("v_lshlrev_b32 v3, 2, v3")
    k.e("v_bfe_u32 v4, v1, 2, 2")
    k.e("v_add_u32 v3, v3, v4")
    k.e("v_lshlrev_b32 v3, 6, v3")
    k.e("v_bfe_u32 v4, v1, 4, 1")
    k.e("v_lshlrev_b32 v4, 5, v4")
    k.e("v_and_b32 v5, 3, v1")
    k.e("v_lshlrev_b32 v5, 3, v5")
    k.e("v_add3_u32 v3, v3, v4, v5")
    k.e("v_add_u32 v%d, 2048, v3" % VVB)
    k.e("v_mov_b32 v%d, v%d" % (VKC, VKB))
    k.e("v_mov_b32 v%d, v%d" % (VVC, VVB))
    k.e("v_add_u32 v%d, 16384, v%d" % (VKN, VKB))
    k.e("v_add_u32 v%d, 16384, v%d" % (VVN, VVB))
    k.e("s_mov_b32 s%d, 16384" % S_NB)
    for r in range(32):
        k.e("v_mov_b32 v%d, 0" % (OA + r))
    k.e("s_waitcnt vmcnt(0)")
    for X in (0, 1):
        q = QA + 8 * X + 4
        k.e("v_cndmask_b32 v%d, 0, v%d, s[%d:%d]" % (q, q, LOMASK, LOMASK + 1))
        for r in (1, 2, 3):
            k.e("v_mov_b32 v%d, 0" % (q + r))
    k.e("s_barrier")
    k.stamp()

    def ldk(buf, va, tile):
        for u in (0, 1):
            k.e("ds_read_b128 %s, v%d offset:%d" % (vr(KR + 8 * buf + 4 * u, 4), va, tile * 4096 + u * 1024))

    def ldv(buf, va, tile):
        for u in (0, 1):
            for h in (0, 1):
                k.e("ds_read_b64_tr_b16 %s, v%d offset:%d" % (vr(VR + 8 * buf + 4 * u + 2 * h, 2), va, tile * 4096 + u * 1024 + h * 512))

    def qk(S, kb, Q, part):
        if part == 0:
            return "v_mfma_f32_32x32x16_bf16 %s, %s, %s, 0" % (vr(S, 16), vr(KR + 8 * kb, 4), vr(Q, 4))
        return "v_mfma_f32_32x32x16_bf16 %s, %s, %s, %s" % (vr(S, 16), vr(KR + 8 * kb + 4, 4), vr(Q + 4, 4), vr(S, 16))

    def pv(O, vb, P, u):
        return "v_mfma_f32_32x32x16_bf16 %s, %s, %s, %s" % (vr(O, 16), vr(VR + 8 * vb + 4 * u, 4), vr(P + 4 * u, 4), vr(O, 16))

    def softmax_ops(S, P):
        e = lambda i: "v_exp_f32 v%d, v%d" % (S + i, S + i)
        c = lambda i: "v_cvt_pk_bf16_f32 v%d, v%d, v%d" % (P + i, S + 2 * i, S + 2 * i + 1)
        ops = [e(0), e(1), e(2), e(3), c(0)]
        for i in range(1, 7):
            ops += [e(2 * i + 2), e(2 * i + 3), c(i)]
        ops += [c(7)]
        return ops

    def phase(S, P, mf):
        ops = softmax_ops(S, P)
        for i, o in enumerate(ops):
            if i % 6 == 0 and i // 6 < len(mf) and "aXm" not in sys.argv:
                k.e(mf[i // 6])
            if "aXc" in sys.argv and "cvt" in o:
                continue
            if "aXe" in sys.argv and "exp" in o:
                continue
            k.e(o)

    def rowmax_patch(S, Q, first, M):
        k.e("v_max3_f32 v2, v%d, v%d, v%d" % (S, S + 1, S + 2))
        for i in range(3, 15, 2):
            k.e("v_max3_f32 v2, v2, v%d, v%d" % (S + i, S + i + 1))
        if first:
            k.e("v_max_f32 v%d, v2, v%d" % (M, S + 15))
        else:
            k.e("v_max3_f32 v%d, v2, v%d, v%d" % (M, S + 15, M))

    def patch(M, Q):
        k.e("v_mov_b32 v3, v%d" % M)
        k.e("v_mov_b32 v4, v%d" % M)
        k.e("s_nop 1")
        k.e("v_permlane32_swap_b32 v3, v4")
        k.e("s_nop 1")
        k.e("v_max_f32 v3, v3, v4")
        k.e("v_sub_f32 v3, 0, v3")
        k.e("v_cvt_pk_bf16_f32 v4, v3, v3")
        k.e("v_lshlrev_b32 v4, 16, v4")
        k.e("v_sub_f32 v3, v3, v4")
        k.e("v_cvt_pk_bf16_f32 v3, v4, v3")
        k.e("v_cndmask_b32 v%d, 0, v3, s[%d:%d]" % (Q + 5, LOMASK, LOMASK + 1))

    ldk(0, VKC, 0)
    ldk(1, VKC, 1)
    ldv(0, VVC, 0)
    k.e("s_waitcnt lgkmcnt(0)")
    for S, Q in ((SAq, QA), (SBq, QB)):
        k.e(qk(S, 0, Q, 0))
        k.e(qk(S, 0, Q, 1))
    k.e("s_nop 7")
    k.e("s_nop 7")
    rowmax_patch(SAq, QA, True, 6)
    rowmax_patch(SBq, QB, True, 7)
    patch(6, QA)
    patch(7, QB)
    k.e("s_nop 1")
    k.e(qk(SAq, 0, QA, 0))
    k.e(qk(SAq, 0, QA, 1))
    k.e("s_nop 7")
    k.e("s_nop 7")
    phase(SAq, PA, [qk(SBq, 0, QB, 0), qk(SBq, 0, QB, 1)])
    k.stamp()
    k.e("s_mov_b32 s%d, 16" % S_CNT)
    k.label("ka_loop")
    for tt in range(4):
        k.e("s_waitcnt lgkmcnt(0)")
        if tt == 2:
            k.e("s_waitcnt vmcnt(0)")
            if "aXb" not in sys.argv:
                k.e("s_barrier")
            k.e("s_add_u32 s%d, s%d, 16384" % (S_T, S_NB))
            k.e("s_cmp_eq_u32 s%d, 49152" % S_T)
            k.e("s_cmov_b32 s%d, 0" % S_T)
            dma("s_add_u32 m0, s%d, s%d" % (S_T, S_WB))
        if "aXl" in sys.argv:
            pass
        elif tt + 2 < 4:
            ldk(tt & 1, VKC, tt + 2)
        else:
            ldk(tt & 1, VKN, tt - 2)
        if "aXl" in sys.argv:
            pass
        elif tt + 1 < 4:
            ldv((tt + 1) & 1, VVC, tt + 1)
        else:
            ldv((tt + 1) & 1, VVN, 0)
        kb, vb = (tt + 1) & 1, tt & 1
        phase(SBq, PB, [qk(SAq, kb, QA, 0), qk(SAq, kb, QA, 1), pv(OA, vb, PA, 0), pv(OA, vb, PA, 1)])
        phase(SAq, PA, [qk(SBq, kb, QB, 0), qk(SBq, kb, QB, 1), pv(OB, vb, PB, 0), pv(OB, vb, PB, 1)])
    k.e("v_mov_b32 v%d, v%d" % (VKC, VKN))
    k.e("v_mov_b32 v%d, v%d" % (VVC, VVN))
    k.e("s_mov_b32 s%d, s%d" % (S_NB, S_T))
    k.e("v_add_u32 v%d, s%d, v%d" % (VKN, S_NB, VKB))
    k.e("v_add_u32 v%d, s%d, v%d" % (VVN, S_NB, VVB))
    k.e("s_sub_u32 s%d, s%d, 1" % (S_CNT, S_CNT))
    k.e("s_cmp_lg_u32 s%d, 0" % S_CNT)
    k.e("s_cbranch_scc1 ka_loop")
    k.stamp()
    k.label("ka_fin")
    k.e("s_waitcnt vmcnt(0) lgkmcnt(0)")
    k.e("s_nop 7")
    k.e("s_nop 7")
    for X, O in ((0, OA), (1, OB)):
        k.e("v_mov_b32 v%d, v%d" % (8 + 2 * X, O + 10))
        k.e("v_mov_b32 v%d, v%d" % (9 + 2 * X, O + 10))
    k.e("s_nop 1")
    k.e("v_permlane32_swap_b32 v8, v9")
    k.e("v_permlane32_swap_b32 v10, v11")
    k.e("s_nop 1")
    k.e("s_cmp_lg_u32 s%d, 0" % S_FLAG)
    k.e("s_cbranch_scc1 ka_store")
    k.e("v_max_f32 v2, v8, v10")
    k.e("v_mov_b32 v3, %s" % f32(2.0 ** 40))
    k.e("v_cmp_nlt_f32 vcc, v8, v3")
    k.e("s_nop 1")
    k.e("s_mov_b64 s[36:37], vcc")
    k.e("v_cmp_nlt_f32 vcc, v10, v3")
    k.e("s_nop 1")
    k.e("s_or_b64 s[36:37], vcc, s[36:37]")
    k.e("s_cbranch_scc1 ka_fallback")
    k.label("ka_store")
    k.e("v_rcp_f32 v8, v8")
    k.e("v_rcp_f32 v10, v10")
    k.e("s_lshl_b32 s34, s5, 8")
    k.e("s_lshl_b32 s35, s%d, 6" % S_W)
    k.e("s_add_u32 s34, s34, s35")
    k.e("v_and_b32 v2, 31, v1")
    k.e("v_add_u32 v2, s34, v2")
    k.e("v_lshrrev_b32 v3, 4, v2")
    k.e("v_mul_u32_u24 v3, 18432, v3")
    k.e("v_and_b32 v2, 15, v2")
    k.e("v_lshlrev_b32 v2, 4, v2")
    k.e("v_add_u32 v2, v2, v3")
    k.e("s_mul_i32 s35, s4, 18")
    k.e("v_lshrrev_b32 v3, 5, v1")
    k.e("v_lshlrev_b32 v3, 2, v3")
    k.e("v_add_u32 v3, s35, v3")
    AD = 48
    for r, dd in enumerate((0, 2, 8, 10, 16)):
        k.e("v_add_u32 v4, %d, v3" % dd)
        k.e("v_lshrrev_b32 v5, 5, v4")
        k.e("v_lshlrev_b32 v5, 10, v5")
        k.e("v_bfe_u32 v6, v4, 3, 2")
        k.e("v_lshlrev_b32 v6, 8, v6")
        k.e("v_and_b32 v4, 7, v4")
        k.e("v_lshlrev_b32 v4, 1, v4")
        k.e("v_add3_u32 v4, v4, v5, v6")
        k.e("v_add_u32 v%d, v4, v2" % (AD + r))
    k.e("s_mov_b32 s35, 36864")
    for X, O in ((0, OA), (1, OB)):
        so = "0" if X == 0 else "s35"
        for r in range(10):
            k.e("v_mul_f32 v%d, v%d, v%d" % (O + r, O + r, 8 + 2 * X))
        for r in range(5):
            k.e("v_cvt_pk_bf16_f32 v%d, v%d, v%d" % (O + r, O + 2 * r, O + 2 * r + 1))
        for r in range(4):
            k.e("buffer_store_dword v%d, v%d, s[%d:%d], %s offen" % (O + r, AD + r, SO, SO + 3, so))
        k.e("s_mov_b64 exec, s[%d:%d]" % (LOMASK, LOMASK + 1))
        k.e("buffer_store_dword v%d, v%d, s[%d:%d], %s offen" % (O + 4, AD + 4, SO, SO + 3, so))
        k.e("s_mov_b64 exec, -1")
    k.dump(kidx)
    k.e("s_branch %s" % nxt if nxt else "s_endpgm")
    k.label("ka_fallback")
    k.e("s_mov_b32 s%d, 1" % S_FLAG)
    k.e("v_mov_b32 v%d, 0" % (QA + 5))
    k.e("v_mov_b32 v%d, 0" % (QB + 5))
    k.e("v_mov_b32 v6, 0xff800000")
    k.e("v_mov_b32 v7, 0xff800000")
    k.e("s_add_u32 s38, s%d, 49152" % S_WB)
    k.e("v_lshlrev_b32 v12, 4, v1")
    k.e("v_add_u32 v13, s38, v%d" % VKB)
    k.e("v_add_u32 v14, s38, v%d" % VVB)
    for ps in (0, 1):
        k.e("s_mov_b32 s%d, s33" % S_DOFF)
        k.e("s_mov_b32 s%d, 64" % S_CNT)
        k.label("ka_fb%d" % ps)
        k.e("s_mov_b32 m0, s38")
        k.e("s_nop 0")
        for i in range(4):
            k.e("buffer_load_dwordx4 v12, s[%d:%d], s%d offen offset:%d lds" % (SB, SB + 3, S_DOFF, i * 1024))
        k.e("s_add_u32 s%d, s%d, 4096" % (S_DOFF, S_DOFF))
        k.e("s_waitcnt vmcnt(0)")
        ldk(0, 13, 0)
        if ps:
            ldv(0, 14, 0)
        k.e("s_waitcnt lgkmcnt(0)")
        for S, Q in ((SAq, QA), (SBq, QB)):
            k.e(qk(S, 0, Q, 0))
            k.e(qk(S, 0, Q, 1))
        k.e("s_nop 7")
        k.e("s_nop 7")
        if ps == 0:
            rowmax_patch(SAq, QA, False, 6)
            rowmax_patch(SBq, QB, False, 7)
        else:
            for S, P in ((SAq, PA), (SBq, PB)):
                for o in softmax_ops(S, P):
                    k.e(o)
            k.e("s_nop 1")
            for O, P in ((OA, PA), (OB, PB)):
                k.e(pv(O, 0, P, 0))
                k.e(pv(O, 0, P, 1))
        k.e("s_sub_u32 s%d, s%d, 1" % (S_CNT, S_CNT))
        k.e("s_cmp_lg_u32 s%d, 0" % S_CNT)
        k.e("s_cbranch_scc1 ka_fb%d" % ps)
        if ps == 0:
            patch(6, QA)
            patch(7, QB)
            for r in range(32):
                k.e("v_mov_b32 v%d, 0" % (OA + r))
            k.e("s_nop 1")
    k.e("s_branch ka_fin")


def mixed_kernel(name, half, kidx, gemm, nv, lds):
    k = K(name)
    load_args(k)
    prologue_ids(k)
    k.e("s_cmp_ge_u32 s2, 512")
    k.e("s_cbranch_scc1 %s_exit" % name)
    k.e("s_waitcnt lgkmcnt(0)")
    if "noattn" in sys.argv:
        k.e("s_cmp_lt_u32 s2, 256")
        k.e("s_cbranch_scc1 %s_exit" % name)
    k.e("s_cmp_lt_u32 s2, 256")
    k.e("s_cbranch_scc1 %s_attn" % name)
    if "nogemm" in sys.argv:
        k.e("s_branch %s_exit" % name)
    k.priok = None
    for f in sys.argv:
        if f.startswith("prio"):
            k.priok = int(f[4:])
            k.e("s_setprio 3")
    gemm(k)
    k.label(name + "_attn")
    k.vm = []
    k.lg = []
    attn(k, half, kidx)
    k.label(name + "_exit")
    k.e("s_endpgm")
    return k, nv, lds, 512


def k2():
    return mixed_kernel("k2", 0, 1, k2_gemm1, 252, 65536)


NSLAB = 4


def k3_gemm2(k, fused=False):
    g = G(4, 3, 2, 1, 4)
    k.e("s_and_b32 s5, s2, 3")
    k.e("s_bfe_u32 s3, s2, 0x10002")
    k.e("s_lshl_b32 s3, s3, 3")
    k.e("s_bfe_u32 s4, s2, 0x30005")
    k.e("s_add_u32 s3, s3, s4")
    k.e("s_lshl_b32 s3, s3, 3")
    k.e("s_bfe_u32 s4, s2, 0x20003")
    k.e("s_lshr_b32 s6, s%d, 1" % S_W)
    k.e("s_and_b32 s7, s%d, 1" % S_W)
    k.e("s_lshl_b32 s28, s5, 1")
    k.e("s_add_u32 s28, s28, s6")
    k.srd(SA, P_WS, WS_H, SZ_H)
    k.srd(SB, P_W2, 0, 4608 * 576 * 2)
    k.e("s_mul_i32 s%d, s28, %d" % (S_BOFF, 576 * 1152))
    k.e("s_mul_i32 s29, s4, 288")
    k.e("s_add_u32 s%d, s%d, s29" % (S_BOFF, S_BOFF))
    k.e("s_mul_i32 s%d, s28, %d" % (S_AOFF, 18 * 1024))
    k.e("s_lshl_b32 s28, s7, 2")
    k.e("s_add_u32 s3, s3, s28")
    k.e("s_mul_i32 s28, s3, 147456")
    k.e("v_lshlrev_b32 v2, 4, v1")
    k.e("v_add_u32 v2, s28, v2")
    for i in range(4):
        k.e("v_add_u32 v%d, %d, v2" % (g.VA + i, i * 147456))
    gemm_setup_b(k, g, 1152, False)
    wf = None
    if fused:
        k.e("s_lshr_b32 s39, s3, 4")
        k.e("s_lshl_b32 s39, s39, 5")
        k.e("s_lshl_b32 s28, s5, 3")
        k.e("s_add_u32 s39, s39, s28")
        wf = lambda: (await_flags(k, F_H, 39, 8), k.stamp())
    gemm_main(k, g, 18, 1152, False, True, waitfn=wf)
    k.c("---- exchange halves through LDS, add, store f32 partial tile")
    k.srd(SO, P_WS, WS_P, NSLAB * SLAB)
    k.e("v_lshlrev_b32 v2, 4, v1")
    k.e("s_mul_i32 s28, s%d, 18432" % S_W)
    k.e("v_add_u32 v3, s28, v2")
    k.e("s_xor_b32 s29, s%d, 2" % S_W)
    k.e("s_mul_i32 s29, s29, 18432")
    k.e("v_add_u32 v4, s29, v2")
    k.e("s_lshl_b32 s28, s6, 1")
    k.e("s_add_u32 s28, s28, s3")
    k.e("s_lshl_b32 s28, s28, 2")
    k.e("s_add_u32 s28, s28, s4")
    k.e("s_mul_i32 s28, s28, 9216")
    k.e("s_mul_i32 s29, s5, %d" % SLAB)
    k.e("s_add_u32 s28, s28, s29")
    k.e("s_barrier")
    k.e("s_cmp_lg_u32 s6, 0")
    k.e("s_cbranch_scc1 k3_hi")
    for kh in (0, 1):
        if kh:
            k.label("k3_hi")
        give = [g.acc(mi, j) for mi in ((2, 3) if kh == 0 else (0, 1)) for j in range(9)]
        keep = [g.acc(mi, j) for mi in ((0, 1) if kh == 0 else (2, 3)) for j in range(9)]
        for n, a in enumerate(give):
            k.e("ds_write_b128 v3, %s offset:%d" % (vr(a, 4), n * 1024))
        k.e("s_waitcnt lgkmcnt(0)")
        k.e("s_barrier")
        for n, a in enumerate(give):
            k.e("ds_read_b128 %s, v4 offset:%d" % (vr(a, 4), n * 1024))
            if n >= 8:
                m = n - 8
                k.e("s_waitcnt lgkmcnt(8)")
                k3_fin(k, keep, give, m)
        for m in range(10, 18):
            k.e("s_waitcnt lgkmcnt(%d)" % (17 - m))
            k3_fin(k, keep, give, m)
        k.dump(2)
        k.e("s_endpgm")


def k3():
    return mixed_kernel("k3", 1, 2, k3_gemm2, 236, 73728)


def k23():
    k = K("k2")
    load_args(k)
    prologue_ids(k)
    k.e("s_cmp_ge_u32 s2, 512")
    k.e("s_cbranch_scc1 k2_exit")
    k.e("s_waitcnt lgkmcnt(0)")
    nonce_write(k)
    k.e("s_cmp_lt_u32 s2, 256")
    k.e("s_cbranch_scc1 k2_attn")
    k.priok = None
    if "gp" in sys.argv:
        k.e("s_setprio 3")
    k2_gemm1(k, True)
    k.priok = int(opt("g2p", -1))
    k3_gemm2(k, True)
    k.label("k2_attn")
    k.vm = []
    k.lg = []
    if "a1" in sys.argv:
        attn(k, 0, 1, "k2_attn2")
        k.label("k2_attn2")
        k.e("s_barrier")
        attn(k, 1, 2)
    else:
        attn2(k, 1)
    k.label("k2_exit")
    k.e("s_endpgm")
    return k, 252, 73728, 512


def k3_fin(k, keep, give, m):
    a, b = keep[m], give[m]
    k.e("v_pk_add_f32 %s, %s, %s" % (vr(a, 2), vr(a, 2), vr(b, 2)))
    k.e("v_pk_add_f32 %s, %s, %s" % (vr(a + 2, 2), vr(a + 2, 2), vr(b + 2, 2)))
    j = m % 9
    k.e("buffer_store_dwordx4 %s, v2, s[%d:%d], s28 offen offset:%d%s" % (vr(a, 4), SO, SO + 3, (j % 4) * 1024, " sc1"))
    if j % 4 == 3:
        k.e("s_add_u32 s28, s28, 4096")
    if j == 8:
        k.e("s_add_u32 s28, s28, %d" % (36864 - 8192))


def rnd2(k, x, y):
    k.e("v_cvt_pk_bf16_f32 v7, v%d, v%d" % (x, y))
    k.e("v_lshlrev_b32 v%d, 16, v7" % x)
    k.e("v_and_b32 v%d, 0xffff0000, v7" % y)


def k4():
    k = K("k4")
    load_args(k)
    prologue_ids(k)
    k.e("s_cmp_ge_u32 s2, 256")
    k.e("s_cbranch_scc1 k4_exit")
    k.e("s_waitcnt lgkmcnt(0)")
    g = G(2, 4, 1, 1, 4, AR=int(opt("oar", 3)))
    XCH = 8 * g.BUF
    SG = 36
    k.e("s_and_b32 s4, s2, 3")
    k.e("s_lshr_b32 s3, s2, 2")
    k.e("s_lshl_b32 s3, s3, 1")
    k.srd(SG, P_WS, WS_G, 8192)
    k.e("s_mul_i32 s40, s4, 288")
    k.e("s_and_b32 s41, s%d, 1" % S_W)
    k.e("s_mul_i32 s43, s41, 9216")
    k.e("s_add_u32 s41, s41, s3")
    k.e("v_lshlrev_b32 v10, 4, v1")
    k.e("s_add_u32 s43, s43, %d" % XCH)
    k.e("v_add_u32 v15, s43, v10")
    k.e("s_lshl_b32 s42, s41, 4")
    k.e("v_and_b32 v11, 15, v1")
    k.e("v_add_u32 v11, s42, v11")
    k.e("v_lshrrev_b32 v12, 4, v1")
    k.e("v_lshlrev_b32 v12, 3, v12")
    k.e("v_lshlrev_b32 v13, 2, v11")
    k.vmem("buffer_load_dword v14, v13, s[%d:%d], 0 offen" % (SG, SG + 3), "g")
    k.e("s_cmp_ge_u32 s%d, 2" % S_W)
    k.e("s_cbranch_scc1 k4_help")
    k.srd(SA, P_WS, WS_O, SZ_X)
    k.srd(SB, P_WO, 0, 576 * 576 * 2)
    k.srd(SO, P_OUT, 0, SZ_X)
    k.e("s_mul_i32 s%d, s%d, %d" % (S_BOFF, S_W, 288 * 1152))
    k.e("s_add_u32 s%d, s%d, s40" % (S_BOFF, S_BOFF))
    k.e("s_mul_i32 s%d, s%d, %d" % (S_AOFF, S_W, 9 * 1024))
    k.e("v_mul_u32_u24 v11, 1152, v11")
    k.e("v_add_u32 v11, v11, v12")
    k.e("s_mul_i32 s28, s3, 18432")
    k.e("v_add_u32 v%d, s28, v10" % g.VA)
    k.e("v_add_u32 v%d, 18432, v%d" % (g.VA + 1, g.VA))
    k.e("s_xor_b32 s28, s%d, 1" % S_W)
    k.e("s_mul_i32 s28, s28, 9216")
    k.e("s_add_u32 s28, s28, %d" % XCH)
    k.e("v_add_u32 v13, s28, v10")
    gemm_setup_b(k, g, 1152, True)
    if "k4nog" in sys.argv:
        k.e("s_barrier")
        k.stamp()
    else:
        gemm_main(k, g, 9, 1152, True, True, pre=lambda: k.e("s_barrier"))
    k.wait(vm='*')
    k.e("s_cmp_lg_u32 s%d, 0" % S_W)
    k.e("s_cbranch_scc1 k4_w1")
    T = 88
    for w in (0, 1):
        if w:
            k.label("k4_w1")
        for jj in range(9):
            k.e("ds_write_b128 v13, %s offset:%d" % (vr(g.acc(1 - w, jj), 4), 18432 + jj * 1024))
        k.e("s_waitcnt lgkmcnt(0)")
        k.e("s_barrier")
        for jj in range(9):
            k.e("ds_read_b128 %s, v15 offset:%d" % (vr(g.acc(1 - w, jj), 4), 18432 + jj * 1024))
        for jj in range(9):
            k.e("ds_read_b128 %s, v15 offset:%d" % (vr(T + 4 * jj, 4), jj * 1024))
        for jj in range(9):
            a = g.acc(w, jj)
            b = g.acc(1 - w, jj)
            k.e("s_waitcnt lgkmcnt(%d)" % min(15, 17 - jj))
            k.e("v_pk_add_f32 %s, %s, %s" % (vr(a, 2), vr(a, 2), vr(b, 2)))
            k.e("v_pk_add_f32 %s, %s, %s" % (vr(a + 2, 2), vr(a + 2, 2), vr(b + 2, 2)))
            rnd2(k, a, a + 1)
            rnd2(k, a + 2, a + 3)
            for r in range(4):
                k.e("v_mul_f32 v%d, v14, v%d" % (a + r, a + r))
            rnd2(k, a, a + 1)
            rnd2(k, a + 2, a + 3)
        for jj in range(9):
            a = g.acc(w, jj)
            b = T + 4 * jj
            k.e("s_waitcnt lgkmcnt(%d)" % (8 - jj))
            k.e("v_pk_add_f32 %s, %s, %s" % (vr(a, 2), vr(a, 2), vr(b, 2)))
            k.e("v_pk_add_f32 %s, %s, %s" % (vr(a + 2, 2), vr(a + 2, 2), vr(b + 2, 2)))
            k.e("v_cvt_pk_bf16_f32 v%d, v%d, v%d" % (a, a, a + 1))
            k.e("v_cvt_pk_bf16_f32 v%d, v%d, v%d" % (a + 1, a + 2, a + 3))
            k.e("buffer_store_dwordx2 %s, v11, s[%d:%d], s40 offen offset:%d" % (vr(a, 2), SO, SO + 3, jj * 32))
        k.dump(3)
        k.e("s_endpgm")
    k.label("k4_help")
    k.vm = []
    k.lg = []
    SP = 32
    SL, BIAS = 16, 160
    k.srd(SP, P_WS, WS_P, NSLAB * SLAB)
    k.srd(SX, P_B2, 0, 1152)
    k.e("s_lshl_b32 s42, s41, 2")
    k.e("s_add_u32 s42, s42, s4")
    k.e("s_mul_i32 s42, s42, 9216")
    k.e("s_barrier")
    for n in range(36 if "k4nos" not in sys.argv else 0):
        sl, jj = divmod(n, 9)
        k.e("buffer_load_dwordx4 %s, v10, s[%d:%d], s42 offen offset:%d%s" % (vr(SL + n * 4, 4), SP, SP + 3, (jj % 4) * 1024, pol("pl")))
        if jj % 4 == 3:
            k.e("s_add_u32 s42, s42, 4096")
        if jj == 8:
            k.e("s_add_u32 s42, s42, %d" % (SLAB - 8192))
    for jj in range(9):
        k.e("buffer_load_dwordx2 %s, v12, s[%d:%d], s40 offen offset:%d" % (vr(BIAS + 2 * jj, 2), SX, SX + 3, jj * 32))
    k.e("s_waitcnt vmcnt(0)")
    k.e("v_sub_f32 v6, 1.0, v14")
    bf16_round(k, 6, 6, 6)
    BT = 180
    for jj in range(9):
        b = SL + jj * 4
        k.e("v_lshlrev_b32 v%d, 16, v%d" % (BT, BIAS + 2 * jj))
        k.e("v_and_b32 v%d, 0xffff0000, v%d" % (BT + 1, BIAS + 2 * jj))
        k.e("v_lshlrev_b32 v%d, 16, v%d" % (BT + 2, BIAS + 1 + 2 * jj))
        k.e("v_and_b32 v%d, 0xffff0000, v%d" % (BT + 3, BIAS + 1 + 2 * jj))
        for x, y in ((b, b + 36), (b + 72, b + 108), (b, b + 72)):
            for h in (0, 2):
                k.e("v_pk_add_f32 %s, %s, %s" % (vr(x + h, 2), vr(x + h, 2), vr(y + h, 2)))
        rnd2(k, b, b + 1)
        rnd2(k, b + 2, b + 3)
        for h in (0, 2):
            k.e("v_pk_add_f32 %s, %s, %s" % (vr(b + h, 2), vr(b + h, 2), vr(BT + h, 2)))
        rnd2(k, b, b + 1)
        rnd2(k, b + 2, b + 3)
        for r in range(4):
            k.e("v_mul_f32 v%d, v6, v%d" % (b + r, b + r))
        rnd2(k, b, b + 1)
        rnd2(k, b + 2, b + 3)
        k.e("ds_write_b128 v15, %s offset:%d" % (vr(b, 4), jj * 1024))
    k.e("s_waitcnt lgkmcnt(0)")
    k.e("s_barrier")
    k.label("k4_exit")
    k.e("s_endpgm")
    return k, 184, XCH + 36864, 256


def emit(kernels):
    out = []
    hdr = open("cdna_kernels/%s.s.ref" % NAME).read().split("\n")
    for l in hdr:
        if l.startswith("; @launch") or l.startswith("; Override") or l.startswith("; grid="):
            continue
        if l.startswith(";"):
            out.append(l)
    for k, nv, lds, nwg in kernels:
        out.append("; @launch kernel=%s_kernel grid=(%d,1,1) block=(%d,1,1) lds=%d" % (k.name, nwg, k.block, lds))
    out.append('.amdgcn_target "amdgcn-amd-amdhsa--gfx950"')
    out.append(".text")
    for k, nv, lds, nwg in kernels:
        out.append(".globl %s_kernel" % k.name)
        out.append(".p2align 8")
        out.append(".type %s_kernel,@function" % k.name)
        out.append("%s_kernel:" % k.name)
        out += k.L
    out.append('.section .rodata,"a"')
    for k, nv, lds, nwg in kernels:
        out.append(".p2align 6")
        out.append(".amdhsa_kernel %s_kernel" % k.name)
        out.append("  .amdhsa_next_free_vgpr %d" % nv)
        out.append("  .amdhsa_next_free_sgpr 102")
        out.append("  .amdhsa_accum_offset %d" % ((nv + 3) // 4 * 4))
        out.append("  .amdhsa_group_segment_fixed_size 0")
        out.append("  .amdhsa_kernarg_size 96")
        out.append("  .amdhsa_user_sgpr_count 2")
        out.append("  .amdhsa_user_sgpr_kernarg_segment_ptr 1")
        out.append("  .amdhsa_system_sgpr_workgroup_id_x 1")
        out.append(".end_amdhsa_kernel")
    return "\n".join(out) + "\n"


def k123():
    k = K("k2")
    load_args(k)
    prologue_ids(k)
    k.e("s_cmp_ge_u32 s2, 512")
    k.e("s_cbranch_scc1 k2_exit")
    k.e("s_waitcnt lgkmcnt(0)")
    nonce_write(k)
    k.e("s_cmp_ge_u32 s2, 256")
    k.e("s_cbranch_scc1 k2_g0")
    k.e("s_mov_b32 s3, s2")
    k.e("s_cmp_lt_u32 s2, 192")
    k.e("s_cbranch_scc1 k2_q")
    k.e("s_sub_u32 s3, s2, 192")
    k1_ln(k, True)
    k.label("k2_q")
    if "qp" in sys.argv:
        k.e("s_setprio 3")
    qkv_tile(k)
    k.dump(0)
    if "qp" in sys.argv:
        k.e("s_setprio 0")
    k.label("k2_attn")
    k.vm = []
    k.lg = []
    if "a1" in sys.argv:
        attn(k, 0, 1, "k2_attn2", wait=True)
        k.label("k2_attn2")
        k.e("s_barrier")
        attn(k, 1, 2)
    else:
        attn2(k, 1, wait=True)
    k.label("k2_g0")
    k.e("s_cmp_lg_u32 s%d, 0" % S_W)
    k.e("s_cbranch_scc1 k2_g")
    nonce_get(k)
    k.label("k2_g")
    k.vm = []
    k.lg = []
    k.nstamp = 1
    k.priok = None
    k2_gemm1(k, 2)
    k3_gemm2(k, True)
    k.label("k2_exit")
    k.e("s_endpgm")
    return k, 252, 73728, 512


def klist():
    if "old" in sys.argv:
        return [k1(), k2(), k3(), k4()]
    if "s1" in sys.argv:
        return [k1(), k23(), k4()]
    return [k123(), k4()]


if __name__ == "__main__":
    if "diag" in sys.argv:
        DIAG = True
        open("diag%s.s" % "".join(a.replace("=", "").replace("+", "") for a in sys.argv[1:] if a != "diag"), "w").write(emit(klist()))
        sys.exit(0)
    ks = klist()
    open("cdna_kernels/%s.s" % NAME, "w").write(emit(ks))
    print("written")
```

```python
import math, struct, sys

NAME = "gated_mix__softmax_full_mha__mixer_channel_mlp__prompt"

def f32(x):
    return "0x%08x" % struct.unpack("<I", struct.pack("<f", x))[0]

WS_Y = 0x0
WS_G = 0x240000
WS_Q = 0x400000
WS_KV = 0x800000
WS_H = 0x1000000
WS_O = 0x2400000
WS_P = 0x2800000
WS_F = 0x300000
F_H, F_QKV, F_LN, F_O, F_P = 0x0, 0x1000, 0x2000, 0x3000, 0x4000
WS_DIAG = 0x6000000
DIAG = False
SLAB = 2048 * 576 * 4
SZ_X = 2048 * 576 * 2
SZ_H = 2048 * 4608 * 2


class K:
    def __init__(self, name):
        self.name = name
        self.L = []
        self.vm = []
        self.lg = []
        self.nlabel = 0
        self.nstamp = 0
        self.block = 256

    def e(self, s):
        self.L.append("    " + s)

    def c(self, s):
        self.L.append("    ; " + s)

    def label(self, l):
        self.L.append(l + ":")

    def newlabel(self, p="L"):
        self.nlabel += 1
        return "%s_%s_%d" % (self.name[:6], p, self.nlabel)

    def vmem(self, s, tag=None):
        self.e(s)
        self.vm.append(tag)

    def ds(self, s, tag=None):
        self.e(s)
        self.lg.append(tag)

    def wait(self, vm=None, lg=None):
        parts = []
        if vm is not None:
            if vm == '*':
                n = 0
            else:
                idx = [i for i, t in enumerate(self.vm) if t == vm]
                n = len(self.vm) - 1 - idx[-1] if idx else None
            if n is not None:
                assert n <= 63
                parts.append("vmcnt(%d)" % n)
                self.vm = self.vm[len(self.vm) - n:] if n else []
        if lg is not None:
            if lg == '*':
                n = 0
            else:
                idx = [i for i, t in enumerate(self.lg) if t == lg]
                n = len(self.lg) - 1 - idx[-1] if idx else None
            if n is not None:
                assert n <= 15
                parts.append("lgkmcnt(%d)" % n)
                self.lg = self.lg[len(self.lg) - n:] if n else []
        if parts:
            self.e("s_waitcnt " + " ".join(parts))

    def stamp(self):
        if not DIAG:
            return
        i = self.nstamp
        self.nstamp += 1
        assert i < 8
        self.e("s_waitcnt lgkmcnt(0)")
        self.e("s_memtime s[%d:%d]" % (44 + 2 * i, 45 + 2 * i))
        if i == 0:
            self.e("s_memrealtime s[60:61]")
        self.e("s_waitcnt lgkmcnt(0)")
        self.lg = []

    def dump(self, kidx):
        if not DIAG:
            return
        self.stamp()
        self.e("s_memrealtime s[62:63]")
        self.e("s_waitcnt lgkmcnt(0)")
        l = self.newlabel("nd")
        self.e("s_cmp_lg_u32 s%d, 0" % S_W)
        self.e("s_cbranch_scc1 %s" % l)
        self.srd(88, P_WS, WS_DIAG + kidx * 65536, 65536)
        self.e("s_lshl_b32 s92, s2, 6")
        self.e("v_mov_b32 v2, s92")
        for i in range(self.nstamp):
            self.e("v_mov_b32 v3, s%d" % (44 + 2 * i))
            self.e("buffer_store_dword v3, v2, s[88:91], 0 offen offset:%d" % (4 * i))
        for i in (0, 1):
            self.e("v_mov_b32 v3, s%d" % (60 + 2 * i))
            self.e("buffer_store_dword v3, v2, s[88:91], 0 offen offset:%d" % (56 + 4 * i))
        self.label(l)
        self.nstamp = 1

    def sel(self, d, a, b):
        self.e("s_mov_b32 s%d, %s" % (d, b))
        self.e("s_cmov_b32 s%d, %s" % (d, a))

    def srd(self, d, ptr, off, size):
        if off:
            self.e("s_add_u32 s%d, s%d, 0x%x" % (d, ptr, off))
            self.e("s_addc_u32 s%d, s%d, 0" % (d + 1, ptr + 1))
        else:
            self.e("s_mov_b32 s%d, s%d" % (d, ptr))
            self.e("s_mov_b32 s%d, s%d" % (d + 1, ptr + 1))
        self.e("s_mov_b32 s%d, 0x%x" % (d + 2, size))
        self.e("s_mov_b32 s%d, 0x00020000" % (d + 3))


def pol(tag):
    return "".join(" " + f.split("=")[1].replace("+", " ") for f in sys.argv if f.startswith(tag + "="))


def opt(name, default):
    for f in sys.argv:
        if f.startswith(name + "="):
            return f.split("=")[1]
    return default


def vr(a, n=1):
    return "v%d" % a if n == 1 else "v[%d:%d]" % (a, a + n - 1)


def sr(a, n=1):
    return "s%d" % a if n == 1 else "s[%d:%d]" % (a, a + n - 1)


P_X, P_WQKV, P_WO, P_BX, P_W1, P_B1, P_W2, P_B2, P_GW, P_OUT, P_DBG, P_WS = [64 + 2 * i for i in range(12)]


def load_args(k):
    k.e("s_load_dwordx8 s[64:71], s[0:1], 0")
    k.e("s_load_dwordx8 s[72:79], s[0:1], 32")
    k.e("s_load_dwordx8 s[80:87], s[0:1], 64")


SF, S_NONCE, S_SP = 96, 100, 101
SPIN = 1 << 18


def nonce_write(k):
    l = k.newlabel("nw")
    k.e("s_or_b32 s28, s2, s%d" % S_W)
    k.e("s_cmp_lg_u32 s28, 0")
    k.e("s_cbranch_scc1 %s" % l)
    k.e("s_memrealtime s[28:29]")
    k.srd(SF, P_DBG, 0, 256)
    k.e("s_waitcnt lgkmcnt(0)")
    k.e("s_or_b32 s28, s28, 1")
    k.e("v_mov_b32 v2, s28")
    k.e("v_mov_b32 v3, 0")
    k.e("s_mov_b64 exec, 1")
    k.e("buffer_store_dword v2, v3, s[%d:%d], 0 offen sc1" % (SF, SF + 3))
    k.e("s_mov_b64 exec, -1")
    k.label(l)


def nonce_get(k):
    l = k.newlabel("ng")
    d = k.newlabel("ngd")
    k.srd(SF, P_DBG, 0, 256)
    k.e("v_mov_b32 v3, 0")
    k.e("s_mov_b32 s%d, %d" % (S_SP, SPIN))
    k.label(l)
    k.e("buffer_load_dword v2, v3, s[%d:%d], 0 offen sc1" % (SF, SF + 3))
    k.e("s_waitcnt vmcnt(0)")
    k.e("v_readfirstlane_b32 s%d, v2" % S_NONCE)
    k.e("s_cmp_lg_u32 s%d, 0" % S_NONCE)
    k.e("s_cbranch_scc1 %s" % d)
    k.e("s_sub_u32 s%d, s%d, 1" % (S_SP, S_SP))
    k.e("s_cbranch_scc1 %s" % d)
    k.e("s_sleep 1")
    k.e("s_branch %s" % l)
    k.label(d)
    k.srd(SF, P_WS, WS_F, 0x10000)


def nonce_fast(k):
    sl = k.newlabel("nfs")
    d = k.newlabel("nfd")
    k.e("s_waitcnt vmcnt(39)")
    k.e("v_readfirstlane_b32 s95, v0")
    k.e("s_nop 3")
    k.e("s_cmp_eq_u32 s95, 0")
    k.e("s_cbranch_scc1 %s" % sl)
    k.e("s_mov_b32 s%d, s95" % S_NONCE)
    k.srd(SF, P_WS, WS_F, 0x10000)
    k.e("s_branch %s" % d)
    k.label(sl)
    nonce_get(k)
    k.label(d)


def publish(k, base, s_idx, first=False):
    k.e("s_waitcnt vmcnt(0)")
    k.vm = []
    k.e("s_barrier")
    l = k.newlabel("pb")
    k.e("s_cmp_lg_u32 s%d, 0" % S_W)
    k.e("s_cbranch_scc1 %s" % l)
    if first:
        nonce_get(k)
    k.e("s_lshl_b32 s28, s%d, 2" % s_idx)
    k.e("s_add_u32 s28, s28, %d" % base)
    k.e("v_mov_b32 v3, s28")
    k.e("v_mov_b32 v2, s%d" % S_NONCE)
    k.e("s_mov_b64 exec, 1")
    k.e("buffer_store_dword v2, v3, s[%d:%d], 0 offen sc1" % (SF, SF + 3))
    k.e("s_mov_b64 exec, -1")
    k.label(l)


def await_flags(k, base, s_idx, n, first=False, acquire=False, wide=False):
    l = k.newlabel("aw")
    lp = k.newlabel("awl")
    d = k.newlabel("awd")
    k.e("s_cmp_lg_u32 s%d, 0" % S_W)
    k.e("s_cbranch_scc1 %s" % l)
    if first:
        nonce_get(k)
    k.e("s_lshl_b32 s28, s%d, 2" % s_idx)
    k.e("s_add_u32 s28, s28, %d" % base)
    k.e("v_lshlrev_b32 v3, %d, v1" % (3 if wide else 2))
    k.e("v_add_u32 v3, s28, v3")
    if wide:
        n //= 2
    k.e("s_mov_b32 s28, %d" % ((1 << min(n, 32)) - 1))
    k.e("s_mov_b32 s29, %d" % ((1 << max(n - 32, 0)) - 1))
    k.e("s_mov_b64 exec, s[28:29]")
    k.e("s_mov_b32 s%d, %d" % (S_SP, SPIN))
    k.label(lp)
    if wide:
        k.e("buffer_load_dwordx2 v[4:5], v3, s[%d:%d], 0 offen sc1" % (SF, SF + 3))
        k.e("s_waitcnt vmcnt(0)")
        k.e("v_xor_b32 v4, s%d, v4" % S_NONCE)
        k.e("v_xor_b32 v5, s%d, v5" % S_NONCE)
        k.e("v_or_b32 v2, v4, v5")
        k.e("v_cmp_ne_u32 vcc, 0, v2")
    else:
        k.e("buffer_load_dword v2, v3, s[%d:%d], 0 offen sc1" % (SF, SF + 3))
        k.e("s_waitcnt vmcnt(0)")
        k.e("v_cmp_ne_u32 vcc, s%d, v2" % S_NONCE)
    k.e("s_cbranch_vccz %s" % d)
    k.e("s_sub_u32 s%d, s%d, 1" % (S_SP, S_SP))
    k.e("s_cbranch_scc1 %s" % d)
    k.e("s_sleep 1")
    k.e("s_branch %s" % lp)
    k.label(d)
    k.e("s_mov_b64 exec, -1")
    if acquire:
        k.e("buffer_inv sc1")
        k.e("s_waitcnt vmcnt(0)")
    k.label(l)
    k.e("s_barrier")


def await_solo(k, base, s_idx, n, fast=False):
    lp = k.newlabel("asl")
    d = k.newlabel("asd")
    (nonce_fast if fast else nonce_get)(k)
    k.e("s_lshl_b32 s28, s%d, 2" % s_idx)
    k.e("s_add_u32 s28, s28, %d" % base)
    k.e("v_lshlrev_b32 v3, 2, v1")
    k.e("v_add_u32 v3, s28, v3")
    k.e("s_mov_b32 s28, %d" % ((1 << min(n, 32)) - 1))
    k.e("s_mov_b32 s29, %d" % ((1 << max(n - 32, 0)) - 1))
    k.e("s_mov_b64 exec, s[28:29]")
    k.e("s_mov_b32 s%d, %d" % (S_SP, SPIN))
    k.label(lp)
    k.e("buffer_load_dword v2, v3, s[%d:%d], 0 offen sc1" % (SF, SF + 3))
    k.e("s_waitcnt vmcnt(0)")
    k.e("v_cmp_ne_u32 vcc, s%d, v2" % S_NONCE)
    k.e("s_cbranch_vccz %s" % d)
    k.e("s_sub_u32 s%d, s%d, 1" % (S_SP, S_SP))
    k.e("s_cbranch_scc1 %s" % d)
    k.e("s_sleep %d" % int(opt("slp", 1)))
    k.e("s_branch %s" % lp)
    k.label(d)
    k.e("s_mov_b64 exec, -1")


BUF = 20480
SA, SB, SO, SX = 8, 12, 16, 20
S_WB, S_BOFF, S_AOFF, S_W = 24, 25, 26, 27


class G:
    def __init__(self, MT, LA=2, TW=4, CK=2, NBUF=3, NJ=9, AR=3, PAD=False):
        self.PAD = PAD
        self.MT = MT
        self.AR = AR
        self.NJ = NJ
        self.LA = LA
        self.TW = TW
        self.CK = CK
        self.NBUF = NBUF
        self.NP = -(-9 * CK // TW)
        self.BUF = 20480 if TW == 4 else 9216 * CK
        self.ACC = 16
        self.A = self.ACC + MT * NJ * 4
        self.B = self.A + AR * MT * 4
        self.VA = self.B + 4 * (LA + 1)
        self.VD = self.VA + MT
        self.VL = self.VD + self.NP * (3 if PAD else 1)
        self.FREE = self.VL + 1

    def acc(self, i, j):
        return self.ACC + (i * self.NJ + j) * 4

    def a(self, ks, i):
        return self.A + ((ks % self.AR) * self.MT + i) * 4

    def b(self, t):
        return self.B + (t % (self.LA + 1)) * 4


def gemm_setup_b(k, g, rsb, bitswap):
    k.c("DMA source offsets")
    if g.TW == 4:
        k.e("s_mul_i32 s%d, s%d, 5120" % (S_WB, S_W))
        k.e("s_mul_i32 s28, s%d, 320" % S_W)
    elif g.TW == 1:
        k.e("s_mul_i32 s31, s%d, %d" % (S_W, g.NBUF * g.BUF))
        k.e("s_mov_b32 s%d, s31" % S_WB)
        k.e("s_mov_b32 s28, 0")
    else:
        P0 = 9 * g.CK - g.NP
        k.e("s_and_b32 s28, s%d, 1" % S_W)
        k.e("s_lshr_b32 s31, s%d, 1" % S_W)
        k.e("s_mul_i32 s31, s31, %d" % (g.NBUF * g.BUF))
        k.e("s_mul_i32 s%d, s28, %d" % (S_WB, P0 * 1024))
        k.e("s_add_u32 s%d, s%d, s31" % (S_WB, S_WB))
        k.e("s_mul_i32 s28, s28, %d" % (P0 * 64))
    for i in range(g.NP):
        k.e("s_add_u32 s29, s28, %d" % (i * 64))
        if i >= 3 and g.TW == 4:
            k.e("s_cmp_ge_u32 s29, 1152")
            k.e("s_cselect_b32 s30, 128, 0")
            k.e("s_sub_u32 s29, s29, s30")
        k.e("v_add_u32 v2, s29, v1")
        k.e("v_mul_u32_u24 v3, 3641, v2")
        k.e("v_lshrrev_b32 v3, 16, v3")
        k.e("v_mul_u32_u24 v4, 18, v3")
        k.e("v_sub_u32 v4, v2, v4")
        if bitswap:
            k.e("v_and_b32 v5, 0x33, v3")
            k.e("v_and_b32 v6, 4, v3")
            k.e("v_lshlrev_b32 v6, 1, v6")
            k.e("v_and_b32 v7, 8, v3")
            k.e("v_lshrrev_b32 v7, 1, v7")
            k.e("v_or3_b32 v3, v5, v6, v7")
        k.e("v_lshlrev_b32 v4, 4, v4")
        if g.PAD:
            for b in range(3):
                k.e("v_add_u32 v5, %d, v3" % (32 * b))
                k.e("v_mul_u32_u24 v6, 2731, v5")
                k.e("v_lshrrev_b32 v6, 16, v6")
                k.e("v_mul_u32_u24 v7, 24, v6")
                k.e("v_sub_u32 v5, v5, v7")
                k.e("v_min_u32 v5, 17, v5")
                k.e("v_mul_u32_u24 v6, 18, v6")
                k.e("v_add_u32 v5, v5, v6")
                k.e("v_mul_u32_u24 v5, %d, v5" % rsb)
                k.e("v_add_u32 v5, v5, v4")
                k.e("v_subrev_u32 v%d, %d, v5" % (g.VD + b * g.NP + i, (i % 4) * 1024))
            continue
        k.e("v_mul_u32_u24 v3, %d, v3" % rsb)
        k.e("v_add_u32 v3, v3, v4")
        if i % 4:
            k.e("v_subrev_u32 v%d, %d, v3" % (g.VD + i, (i % 4) * 1024))
        else:
            k.e("v_mov_b32 v%d, v3" % (g.VD + i))
    k.c("LDS tr-read lane address")
    k.e("v_lshrrev_b32 v2, 4, v1")
    k.e("v_and_b32 v3, 15, v1")
    k.e("v_lshrrev_b32 v4, 2, v3")
    if bitswap:
        k.e("v_lshrrev_b32 v5, 1, v2")
        k.e("v_lshlrev_b32 v5, 4, v5")
        k.e("v_and_b32 v6, 1, v2")
        k.e("v_lshlrev_b32 v6, 2, v6")
        k.e("v_add3_u32 v4, v4, v5, v6")
    else:
        k.e("v_lshlrev_b32 v5, 2, v2")
        k.e("v_add_u32 v4, v4, v5")
    k.e("v_mul_u32_u24 v4, 288, v4")
    k.e("v_and_b32 v3, 3, v3")
    k.e("v_lshlrev_b32 v3, 3, v3")
    k.e("v_add_u32 v%d, v4, v3" % g.VL)
    if g.TW != 4:
        k.e("v_add_u32 v%d, s31, v%d" % (g.VL, g.VL))


def gemm_dma_ops(k, g, c, rsb):
    buf = c % g.NBUF
    ops = []
    for i in range(g.NP):
        def op(i=i):
            k.e("s_add_u32 m0, s%d, %d" % (S_WB, buf * g.BUF + (i // 4) * 4096))
            k.e("s_nop 0")
            vd = g.VD + i + (c % 3) * g.NP * g.PAD
            k.vmem("buffer_load_dwordx4 v%d, s[%d:%d], s%d offen offset:%d lds" % (vd, SB, SB + 3, S_BOFF, (i % 4) * 1024), ("D", c))
            if i == g.NP - 1 and g.PAD:
                if c % 3 == 2:
                    k.e("s_add_u32 s%d, s%d, %d" % (S_BOFF, S_BOFF, 72 * rsb))
            elif i == g.NP - 1:
                k.e("s_add_u32 s%d, s%d, %d" % (S_BOFF, S_BOFF, 32 * g.CK * rsb))
        ops.append(op)
    return ops


def gemm_main(k, g, KS, rsb, bitswap, afrag, extra=None, pre=None, waitfn=None, zero=True, atchunk=None, aext=False):
    MT = g.MT
    NJ = g.NJ
    NC = KS // g.CK
    HALF = (8 if bitswap else 16) * 288
    SPREAD = "nospread" not in sys.argv

    def aload_ops(ks):
        ops = []
        for i in range(0 if aext else MT):
            def op(i=i):
                if afrag:
                    k.vmem("buffer_load_dwordx4 %s, v%d, s[%d:%d], s%d offen%s" % (vr(g.a(ks, i), 4), g.VA + i, SA, SA + 3, S_AOFF, " sc1" if waitfn else ""), ("A", ks))
                    if i == MT - 1:
                        k.e("s_add_u32 s%d, s%d, 1024" % (S_AOFF, S_AOFF))
                else:
                    k.vmem("buffer_load_dwordx4 %s, v%d, s[%d:%d], s%d offen offset:%d" % (vr(g.a(ks, i), 4), g.VA + i, SA, SA + 3, S_AOFF, ks * 64), ("A", ks))
            ops.append(op)
        return ops

    def bread(t):
        ks, j = divmod(t, NJ)
        off = ((ks // g.CK) % g.NBUF) * g.BUF + (ks % g.CK) * 9216 + j * 32
        b = g.b(t)
        k.ds("ds_read_b64_tr_b16 %s, v%d offset:%d" % (vr(b, 2), g.VL, off), ("B", t))
        k.ds("ds_read_b64_tr_b16 %s, v%d offset:%d" % (vr(b + 2, 2), g.VL, off + HALF), ("B", t))

    k.stamp()
    if waitfn is None:
        ops = gemm_dma_ops(k, g, 0, rsb) + aload_ops(0) + gemm_dma_ops(k, g, 1, rsb) + aload_ops(1)
        for c in range(2, g.NBUF):
            ops += gemm_dma_ops(k, g, c, rsb)
        for ks in range(2, g.AR - 1):
            ops += aload_ops(ks)
    else:
        ops = []
        for c in range(g.NBUF):
            ops += gemm_dma_ops(k, g, c, rsb)
        ops += [waitfn]
        for ks in range(g.AR - 1):
            ops += aload_ops(ks)
    q = []
    for op in ops:
        op()
    if pre is not None:
        pre()
    k.c("zero accumulators")
    for r in range(MT * NJ * 4 if zero else 0):
        k.e("v_mov_b32 v%d, 0" % (g.ACC + r))
    k.wait(vm=("D", 0))
    if g.TW > 1:
        k.e("s_barrier")
    k.stamp()
    for t in range(g.LA):
        bread(t)
    NTS = KS * NJ
    for t in range(NTS):
        ks, j = divmod(t, NJ)
        if j == 0 and ks + g.AR - 1 < KS and "xA" not in sys.argv:
            q = aload_ops(ks + g.AR - 1) + q
        if extra is not None:
            extra(ks, j)
        if j == 0 and getattr(k, "priok", None) == ks:
            k.e("s_setprio 0")
        tn = t + g.LA
        if tn < NTS:
            if tn % (NJ * g.CK) == 0:
                c = tn // (NJ * g.CK)
                while any(True for _ in q):
                    q.pop(0)()
                k.wait(vm=("D", c), lg='*')
                if "xB" not in sys.argv and g.TW > 1:
                    k.e("s_barrier")
                if atchunk is not None:
                    atchunk(c)
                if c + g.NBUF - 1 < NC and "xD" not in sys.argv:
                    q += gemm_dma_ops(k, g, c + g.NBUF - 1, rsb)
            bread(tn)
        if q:
            q.pop(0)()
            while q and not SPREAD:
                q.pop(0)()
        k.wait(lg=("B", t), vm=("A", ks) if j == 0 else None)
        for i in range(MT):
            a = g.acc(i, j)
            k.e("v_mfma_f32_16x16x32_bf16 %s, %s, %s, %s" % (vr(a, 4), vr(g.b(t), 4), vr(g.a(ks, i), 4), vr(a, 4)))
    assert not q
    k.e("s_nop 7")
    k.e("s_nop 7")
    k.stamp()


def prologue_ids(k):
    k.stamp()
    k.e("v_and_b32 v1, 63, v0")
    k.e("v_lshrrev_b32 v2, 6, v0")
    k.e("s_nop 0")
    k.e("v_readfirstlane_b32 s%d, v2" % S_W)


def a_offsets_rowmajor(k, g, s_m0, stride):
    k.e("s_mul_i32 s28, s%d, %d" % (S_W, 16 * g.MT))
    k.e("s_add_u32 s28, s28, s%d" % s_m0)
    k.e("v_and_b32 v2, 15, v1")
    k.e("v_add_u32 v2, s28, v2")
    k.e("v_mul_u32_u24 v2, %d, v2" % stride)
    k.e("v_lshrrev_b32 v3, 4, v1")
    k.e("v_lshlrev_b32 v3, 4, v3")
    k.e("v_add_u32 v2, v2, v3")
    for i in range(g.MT):
        k.e("v_add_u32 v%d, %d, v2" % (g.VA + i, i * 16 * stride))


def a_offsets_frag(k, g, s_mt, tile_bytes):
    k.e("s_mul_i32 s28, s%d, %d" % (S_W, g.MT))
    k.e("s_add_u32 s28, s28, s%d" % s_mt)
    k.e("s_mul_i32 s28, s28, %d" % tile_bytes)
    k.e("v_lshlrev_b32 v2, 4, v1")
    k.e("v_add_u32 v2, s28, v2")
    for i in range(g.MT):
        k.e("v_add_u32 v%d, %d, v2" % (g.VA + i, i * tile_bytes))


def bf16_round(k, d, s, t):
    k.e("v_cvt_pk_bf16_f32 v%d, v%d, v%d" % (t, s, s))
    k.e("v_lshlrev_b32 v%d, 16, v%d" % (d, t))


def red8(k, v, t):
    k.e("s_nop 1")
    k.e("v_add_f32_dpp v%d, v%d, v%d quad_perm:[1,0,3,2] row_mask:0xf bank_mask:0xf" % (t, v, v))
    k.e("s_nop 1")
    k.e("v_add_f32_dpp v%d, v%d, v%d quad_perm:[2,3,0,1] row_mask:0xf bank_mask:0xf" % (v, t, t))
    k.e("s_nop 1")
    k.e("v_add_f32_dpp v%d, v%d, v%d row_half_mirror row_mask:0xf bank_mask:0xf" % (t, v, v))
    k.e("v_mov_b32 v%d, v%d" % (v, t))


def k1_ln(k, fused=False):
    k.c("---- LN / gate part")
    k.srd(SA, P_X, 0, SZ_X)
    k.srd(SB, P_GW, 0, 1152)
    k.srd(SO, P_WS, WS_Y, SZ_X)
    k.srd(SX, P_WS, WS_G, 8192)
    X, GW, F = 16, 52, 88
    if "pf0" in sys.argv:
        k.e("s_and_b32 s28, s3, 7")
        k.e("s_lshl_b32 s28, s28, 7")
        k.e("s_bfe_u32 s29, s3, 0x10005")
        k.e("s_lshl_b32 s29, s29, 10")
        k.e("s_add_u32 s28, s28, s29")
        k.e("s_bfe_u32 s29, s3, 0x20003")
        k.e("s_lshl_b32 s29, s29, 5")
        k.e("s_add_u32 s28, s28, s29")
    else:
        k.e("s_lshl_b32 s28, s3, 5")
    k.e("s_lshl_b32 s29, s%d, 3" % S_W)
    k.e("s_add_u32 s28, s28, s29")
    k.e("v_lshrrev_b32 v2, 3, v1")
    k.e("v_add_u32 v2, s28, v2")
    k.e("v_and_b32 v3, 7, v1")
    k.e("v_lshlrev_b32 v4, 4, v3")
    k.e("v_mul_u32_u24 v5, 1152, v2")
    k.e("v_add_u32 v5, v5, v4")
    for i in range(9):
        k.vmem("buffer_load_dwordx4 %s, v5, s[%d:%d], 0 offen offset:%d" % (vr(X + 4 * i, 4), SA, SA + 3, i * 128))
    for i in range(9):
        k.vmem("buffer_load_dwordx4 %s, v4, s[%d:%d], 0 offen offset:%d" % (vr(GW + 4 * i, 4), SB, SB + 3, i * 128), "ln")
    if "pf0" in sys.argv:
        k.srd(32, P_WQKV, 0, 576 * 1728 * 2)
        k.e("s_lshr_b32 s28, s3, 3")
        k.e("s_lshl_b32 s28, s28, 2")
        k.e("s_add_u32 s28, s28, s%d" % S_W)
        k.e("s_lshl_b32 s28, s28, 10")
        k.e("v_lshlrev_b32 v6, 4, v1")
        k.e("v_add_u32 v6, s28, v6")
        for i in range(61):
            k.e("s_mov_b32 s28, %d" % (i * 32768))
            k.vmem("buffer_load_dwordx4 %s, v6, s[32:35], s28 offen" % vr(160 + 4 * (i % 8), 4))
    k.wait(vm="ln")
    for i in range(36):
        k.e("v_lshlrev_b32 v%d, 16, v%d" % (F + 2 * i, X + i))
        k.e("v_and_b32 v%d, 0xffff0000, v%d" % (F + 2 * i + 1, X + i))
    k.e("v_add_f32 v6, v%d, v%d" % (F, F + 1))
    k.e("v_add_f32 v7, v%d, v%d" % (F + 2, F + 3))
    for i in range(2, 36):
        k.e("v_add_f32 v%d, v%d, v%d" % (6 + (i & 1), 6 + (i & 1), F + 2 * i))
        k.e("v_add_f32 v%d, v%d, v%d" % (6 + (i & 1), 6 + (i & 1), F + 2 * i + 1))
    k.e("v_add_f32 v6, v6, v7")
    red8(k, 6, 7)
    k.e("v_mul_f32 v6, %s, v6" % f32(1.0 / 576))
    k.e("v_mov_b32 v10, 0")
    k.e("v_mov_b32 v11, 0")
    for i in range(36):
        k.e("v_lshlrev_b32 v8, 16, v%d" % (GW + i))
        k.e("v_and_b32 v9, 0xffff0000, v%d" % (GW + i))
        k.e("v_mul_f32 v8, v8, v%d" % (F + 2 * i))
        k.e("v_mul_f32 v9, v9, v%d" % (F + 2 * i + 1))
        k.e("v_cvt_pk_bf16_f32 v8, v8, v9")
        k.e("v_and_b32 v9, 0xffff0000, v8")
        k.e("v_lshlrev_b32 v8, 16, v8")
        k.e("v_add_f32 v10, v10, v8")
        k.e("v_add_f32 v11, v11, v9")
    k.e("v_add_f32 v10, v10, v11")
    red8(k, 10, 11)
    bf16_round(k, 10, 10, 10)
    k.e("v_mul_f32 v10, %s, v10" % f32(-math.log2(math.e)))
    k.e("v_exp_f32 v10, v10")
    k.e("s_nop 0")
    k.e("v_add_f32 v10, 1.0, v10")
    k.e("v_rcp_f32 v10, v10")
    k.e("s_nop 0")
    bf16_round(k, 10, 10, 10)
    k.e("v_lshlrev_b32 v11, 2, v2")
    k.e("v_cmp_eq_u32 vcc, 0, v3")
    k.e("s_and_saveexec_b64 s[30:31], vcc")
    k.vmem("buffer_store_dword v10, v11, s[%d:%d], 0 offen" % (SX, SX + 3))
    k.e("s_mov_b64 exec, s[30:31]")
    if "pf5" in sys.argv:
        k.e("s_lshl_b32 s6, s3, 2")
        k.e("s_add_u32 s6, s6, s%d" % S_W)
        k.e("s_lshl_b32 s6, s6, 10")
        k.e("v_lshlrev_b32 v200, 4, v1")
        k.e("v_add_u32 v200, s6, v200")
        k.srd(36, P_W1, 0, 4608 * 576 * 2)
        k.srd(40, P_WO, 0, 576 * 576 * 2)
        k.srd(32, P_W2, 0, 4608 * 576 * 2)
    mark0 = len(k.L)
    k.e("v_mov_b32 v8, 0")
    k.e("v_mov_b32 v9, 0")
    for i in range(72):
        k.e("v_sub_f32 v12, v%d, v6" % (F + i))
        k.e("v_fma_f32 v%d, v12, v12, v%d" % (8 + (i & 1), 8 + (i & 1)))
    k.e("v_add_f32 v8, v8, v9")
    red8(k, 8, 9)
    k.e("v_mul_f32 v8, %s, v8" % f32(1.0 / 576))
    bf16_round(k, 8, 8, 8)
    k.e("v_add_f32 v8, %s, v8" % f32(1e-5))
    bf16_round(k, 8, 8, 8)
    k.e("v_sqrt_f32 v8, v8")
    k.e("s_nop 0")
    bf16_round(k, 8, 8, 8)
    k.e("v_rcp_f32 v9, v8")
    bf16_round(k, 6, 6, 6)
    for i in range(36):
        a, b = F + 2 * i, F + 2 * i + 1
        k.e("v_sub_f32 v%d, v%d, v6" % (a, a))
        k.e("v_sub_f32 v%d, v%d, v6" % (b, b))
        k.e("v_cvt_pk_bf16_f32 v12, v%d, v%d" % (a, b))
        k.e("v_lshlrev_b32 v%d, 16, v12" % a)
        k.e("v_and_b32 v%d, 0xffff0000, v12" % b)
        for x, q, e in ((a, 12, 13), (b, 14, 15)):
            k.e("v_mul_f32 v%d, v%d, v9" % (q, x))
            k.e("v_fma_f32 v%d, -v%d, v8, v%d" % (e, q, x))
            k.e("v_fma_f32 v%d, v%d, v9, v%d" % (q, e, q))
        k.e("v_cvt_pk_bf16_f32 v%d, v12, v14" % (X + i))
    if "pf5" in sys.argv:
        body = k.L[mark0:]
        del k.L[mark0:]
        pf = [(36, i) for i in range(21)] + [(40, i) for i in range(3)]
        if "pf2" not in sys.argv:
            pf += [(32, i) for i in range(21)]
        step = len(body) // len(pf)
        for n, l in enumerate(body):
            if n % step == 0 and n // step < len(pf) and "s_nop" not in l and "s_nop" not in body[n - 1]:
                srd, i = pf[n // step]
                k.e("s_mov_b32 s6, %d" % (i * 262144))
                k.vmem("buffer_load_dwordx4 %s, v200, s[%d:%d], s6 offen" % (vr(160 + 4 * (i % 8), 4), srd, srd + 3))
            k.L.append(l)
    k.e("v_lshrrev_b32 v5, 4, v2")
    k.e("v_mul_u32_u24 v5, 18432, v5")
    k.e("v_lshrrev_b32 v4, 2, v3")
    k.e("v_lshlrev_b32 v4, 10, v4")
    k.e("v_add_u32 v5, v5, v4")
    k.e("v_and_b32 v4, 3, v3")
    k.e("v_lshlrev_b32 v4, 8, v4")
    k.e("v_add_u32 v5, v5, v4")
    k.e("v_and_b32 v4, 15, v2")
    k.e("v_lshlrev_b32 v4, 4, v4")
    k.e("v_add_u32 v5, v5, v4")
    for i in range(9):
        k.e("s_mov_b32 s28, %d" % ((i >> 1) * 4096))
        k.vmem("buffer_store_dwordx4 %s, v5, s[%d:%d], s28 offen offset:%d%s" % (vr(X + 4 * i, 4), SO, SO + 3, (i & 1) * 2048, " sc1"))
    if "pf1" in sys.argv:
        k.c("---- pull the later kernels' weights towards the chip (read only, results unused)")
        k.e("s_lshl_b32 s28, s3, 2")
        k.e("s_add_u32 s28, s28, s%d" % S_W)
        k.e("s_lshl_b32 s28, s28, 10")
        k.e("v_lshlrev_b32 v4, 4, v1")
        k.e("v_add_u32 v4, s28, v4")
        for ptr, nb in ((P_W1, 4608 * 576 * 2), (P_WO, 576 * 576 * 2), (P_W2, 4608 * 576 * 2))[:1 if "pf4" in sys.argv else 2 if "pf2" in sys.argv else 3]:
            k.srd(SB, ptr, 0, nb)
            for i in range(-(-nb // 262144)):
                k.e("s_mov_b32 s28, %d" % (i * 262144))
                k.e("buffer_load_dwordx4 %s, v4, s[%d:%d], s28 offen" % (vr(88 + 4 * (i % 8), 4), SB, SB + 3))
        k.e("s_waitcnt vmcnt(0)")
        k.vm = []
    if fused:
        k.stamp()
        publish(k, F_LN, 3, first=True)
    k.dump(0)
    if fused:
        k.e("s_branch %s_attn" % k.name)
    else:
        k.e("s_endpgm")


def k1():
    k = K("k1")
    load_args(k)
    prologue_ids(k)
    NPF = int(opt("npf", 64)) if "pf4" in sys.argv else 0
    k.e("s_cmp_ge_u32 s2, %d" % (256 + NPF))
    k.e("s_cbranch_scc1 k1_exit")
    k.e("s_waitcnt lgkmcnt(0)")
    k.e("s_mov_b32 s3, s2")
    k.e("s_cmp_lt_u32 s2, 192")
    k.e("s_cbranch_scc1 k1_q")
    if NPF:
        k.e("s_cmp_lt_u32 s2, 256")
        k.e("s_cbranch_scc1 k1_ln")
        k.c("---- pull the later kernels' weights towards the chip (read only, results unused)")
        k.e("s_sub_u32 s3, s2, 256")
        k.e("s_lshl_b32 s28, s3, 2")
        k.e("s_add_u32 s28, s28, s%d" % S_W)
        k.e("s_lshl_b32 s28, s28, 10")
        k.e("v_lshlrev_b32 v4, 4, v1")
        k.e("v_add_u32 v4, s28, v4")
        for ptr, nb in ((P_W2, 4608 * 576 * 2), (P_WO, 576 * 576 * 2)):
            k.srd(SB, ptr, 0, nb)
            for i in range(-(-nb // (NPF * 4096))):
                k.e("s_mov_b32 s28, %d" % (i * NPF * 4096))
                k.e("buffer_load_dwordx4 %s, v4, s[%d:%d], s28 offen" % (vr(16 + 4 * (i % 8), 4), SB, SB + 3))
        k.e("s_waitcnt vmcnt(0)")
        k.e("s_endpgm")
        k.label("k1_ln")
    k.e("s_sub_u32 s3, s2, 192")
    k1_ln(k, False)
    k.label("k1_q")
    qkv_tile(k, False)
    k.dump(0)
    k.label("k1_exit")
    k.e("s_endpgm")
    return k, 248, 65536, 256 + NPF


def k1_body(k, fused):
    g = G(2)
    SC = " sc1" if fused else ""
    k.e("s_cmp_lt_u32 s2, 192")
    k.e("s_cbranch_scc1 k1_gemm")
    k.e("s_sub_u32 s3, s2, 192")
    k1_ln(k, fused)
    k.label("k1_gemm")
    k.vm = []
    k.lg = []
    k.e("s_and_b32 s3, s2, 15")
    k.e("s_lshl_b32 s3, s3, 7")
    k.e("s_lshr_b32 s4, s2, 4")
    k.srd(SA, P_X, 0, SZ_X)
    k.srd(SB, P_WQKV, 0, 576 * 1728 * 2)
    k.e("s_mul_i32 s%d, s4, 288" % S_BOFF)
    k.e("s_mov_b32 s%d, 0" % S_AOFF)
    a_offsets_rowmajor(k, g, 3, 1152)
    gemm_setup_b(k, g, 3456, True)
    gemm_main(k, g, 18, 3456, True, False)
    k.c("---- QKV epilogue")
    k.e("s_lshr_b32 s5, s4, 2")
    k.e("s_and_b32 s6, s4, 3")
    k.e("s_lshl_b32 s6, s6, 3")
    k.e("s_cmp_eq_u32 s5, 0")
    k.sel(28, "0x%x" % WS_Q, "0x%x" % WS_KV)
    k.sel(29, "0x%x" % (4 << 20), "0x%x" % (8 << 20))
    k.sel(32, 131072, 262144)
    k.sel(33, 2048, 4096)
    k.sel(38, f32(18 ** -0.5 * math.log2(math.e)), "1.0")
    k.e("s_add_u32 s%d, s%d, s28" % (SO, P_WS))
    k.e("s_addc_u32 s%d, s%d, 0" % (SO + 1, P_WS + 1))
    k.e("s_mov_b32 s%d, s29" % (SO + 2))
    k.e("s_mov_b32 s%d, 0x00020000" % (SO + 3))
    k.e("s_cmp_eq_u32 s5, 2")
    k.sel(34, 32, 1024)
    k.sel(35, 16, 512)
    k.sel(36, 2048, 0)
    k.sel(37, 64, 16)
    T = g.A
    k.e("s_lshl_b32 s28, s%d, 5" % S_W)
    k.e("s_add_u32 s28, s28, s3")
    k.e("s_lshr_b32 s28, s28, 5")
    k.e("s_mul_i32 s28, s28, s33")
    k.e("s_add_u32 s28, s28, s36")
    k.e("s_mul_i32 s29, s6, s32")
    k.e("s_add_u32 s28, s28, s29")
    k.e("v_and_b32 v2, 15, v1")
    k.e("v_mul_lo_u32 v10, v2, s37")
    k.e("v_add_u32 v10, s28, v10")
    k.e("s_lshl_b32 s29, s37, 4")
    k.e("v_add_u32 v11, s29, v10")
    k.e("v_lshrrev_b32 v3, 4, v1")
    k.e("v_lshlrev_b32 v3, 2, v3")
    for j in range(9):
        for pp in range(2):
            k.e("v_add_u32 v4, %d, v3" % (16 * j + 2 * pp))
            k.e("v_mul_u32_u24 v5, 3641, v4")
            k.e("v_lshrrev_b32 v5, 16, v5")
            k.e("v_mul_u32_u24 v6, 18, v5")
            k.e("v_sub_u32 v6, v4, v6")
            k.e("v_mul_lo_u32 v5, v5, s32")
            k.e("v_lshrrev_b32 v7, 4, v6")
            k.e("v_mul_lo_u32 v7, v7, s34")
            k.e("v_add_u32 v5, v5, v7")
            k.e("v_bfe_u32 v7, v6, 3, 1")
            k.e("v_mul_lo_u32 v7, v7, s35")
            k.e("v_add_u32 v5, v5, v7")
            k.e("v_and_b32 v7, 7, v6")
            k.e("v_lshlrev_b32 v7, 1, v7")
            k.e("v_add_u32 v5, v5, v7")
            for mi in range(2):
                a = g.acc(mi, j) + 2 * pp
                d = T + (j * 4 + pp * 2 + mi) % 16 * 2
                k.e("v_mul_f32 v%d, s38, v%d" % (a, a))
                k.e("v_mul_f32 v%d, s38, v%d" % (a + 1, a + 1))
                k.e("v_cvt_pk_bf16_f32 v%d, v%d, v%d" % (a, a, a + 1))
                k.e("v_add_u32 v%d, v5, v%d" % (a + 1, 10 + mi))
                k.vmem("buffer_store_dword v%d, v%d, s[%d:%d], 0 offen%s" % (a, a + 1, SO, SO + 3, SC))
    if fused:
        k.stamp()
    else:
        k.dump(0)
    k.e("s_cmp_eq_u32 s5, 0")
    k.e("s_cbranch_scc1 k1_done")
    k.e("v_and_b32 v2, 127, v0")
    k.e("v_add_u32 v2, s3, v2")
    k.e("v_lshrrev_b32 v3, 5, v2")
    k.e("v_mul_lo_u32 v3, v3, s33")
    k.e("v_and_b32 v2, 31, v2")
    k.e("v_mul_lo_u32 v2, v2, s37")
    k.e("v_add_u32 v2, v2, v3")
    k.e("v_lshrrev_b32 v3, 7, v0")
    k.e("v_lshlrev_b32 v3, 2, v3")
    k.e("v_add_u32 v3, s6, v3")
    k.e("v_mul_lo_u32 v3, v3, s32")
    k.e("v_add_u32 v2, v2, v3")
    k.e("s_add_u32 s28, s34, s36")
    k.e("v_add_u32 v2, s28, v2")
    k.e("v_add_u32 v3, s35, v2")
    k.e("v_add_u32 v2, 4, v2")
    k.e("v_mov_b32 v4, 0x3f803f80")
    for r in (5, 6, 8, 9, 10, 11):
        k.e("v_mov_b32 v%d, 0" % r)
    k.e("s_mov_b32 s28, 0")
    for h in range(4):
        k.vmem("buffer_store_dwordx3 v[4:6], v2, s[%d:%d], s28 offen%s" % (SO, SO + 3, SC))
        k.vmem("buffer_store_dwordx4 v[8:11], v3, s[%d:%d], s28 offen%s" % (SO, SO + 3, SC))
        k.e("s_add_u32 s28, s28, s32")
    k.label("k1_done")
    if fused:
        k.e("s_and_b32 s6, s4, 3")
        k.e("s_mul_i32 s6, s6, 48")
        k.e("s_lshl_b32 s5, s5, 4")
        k.e("s_add_u32 s6, s6, s5")
        k.e("s_lshr_b32 s3, s3, 7")
        k.e("s_add_u32 s6, s6, s3")
        publish(k, F_QKV, 6, first=True)
        k.dump(0)


def qkv_tile(k, fused=True):
    g = G(2, int(opt("qla", 2)), AR=int(opt("qar", 3)))
    AD = g.FREE
    k.vm = []
    k.lg = []
    k.e("s_lshr_b32 s4, s3, 4")
    k.e("s_and_b32 s3, s3, 15")
    k.srd(SA, P_X, 0, SZ_X)
    k.srd(SB, P_WQKV, 0, 576 * 1728 * 2)
    k.e("s_mul_i32 s%d, s4, 288" % S_BOFF)
    k.e("s_mov_b32 s%d, 0" % S_AOFF)
    k.e("s_lshl_b32 s28, s3, 2")
    k.e("s_add_u32 s33, s28, s%d" % S_W)
    k.e("s_lshl_b32 s28, s33, 5")
    k.e("v_and_b32 v2, 15, v1")
    k.e("v_add_u32 v2, s28, v2")
    k.e("v_mul_u32_u24 v2, 1152, v2")
    k.e("v_lshrrev_b32 v3, 4, v1")
    k.e("v_lshlrev_b32 v3, 4, v3")
    k.e("v_add_u32 v%d, v2, v3" % g.VA)
    k.e("v_add_u32 v%d, %d, v%d" % (g.VA + 1, 16 * 1152, g.VA))
    gemm_setup_b(k, g, 3456, True)

    def pre():
        k.c("epilogue addresses (in the shadow of the first loads)")
        k.e("s_lshr_b32 s5, s4, 2")
        k.e("s_cmp_eq_u32 s5, 2")
        k.sel(34, 32, 1024)
        k.sel(35, 16, 512)
        k.sel(37, 64, 16)
        k.e("s_lshl_b32 s28, s%d, 14" % S_W)
        k.e("v_and_b32 v2, 15, v1")
        k.e("v_mul_lo_u32 v10, v2, s37")
        k.e("v_add_u32 v10, s28, v10")
        k.e("s_lshl_b32 s29, s37, 4")
        k.e("v_lshrrev_b32 v3, 4, v1")
        k.e("v_lshlrev_b32 v3, 2, v3")
        for j in range(9):
            for pp in range(2):
                k.e("v_add_u32 v4, %d, v3" % (16 * j + 2 * pp))
                k.e("v_mul_u32_u24 v5, 3641, v4")
                k.e("v_lshrrev_b32 v5, 16, v5")
                k.e("v_mul_u32_u24 v6, 18, v5")
                k.e("v_sub_u32 v6, v4, v6")
                k.e("v_lshlrev_b32 v5, 11, v5")
                k.e("v_lshrrev_b32 v7, 4, v6")
                k.e("v_mul_lo_u32 v7, v7, s34")
                k.e("v_add_u32 v5, v5, v7")
                k.e("v_bfe_u32 v7, v6, 3, 1")
                k.e("v_mul_lo_u32 v7, v7, s35")
                k.e("v_add_u32 v5, v5, v7")
                k.e("v_and_b32 v7, 7, v6")
                k.e("v_lshlrev_b32 v7, 1, v7")
                k.e("v_add3_u32 v%d, v5, v7, v10" % (AD + (j * 2 + pp) * 2))
                k.e("v_add_u32 v%d, s29, v%d" % (AD + (j * 2 + pp) * 2 + 1, AD + (j * 2 + pp) * 2))
        k.e("v_and_b32 v2, 31, v1")
        k.e("v_mul_lo_u32 v2, v2, s37")
        k.e("v_lshrrev_b32 v3, 5, v1")
        k.e("v_lshlrev_b32 v3, 11, v3")
        k.e("s_add_u32 s29, s28, s34")
        k.e("v_add3_u32 v%d, v2, v3, s29" % (AD + 36))
        k.e("v_add_u32 v%d, s35, v%d" % (AD + 37, AD + 36))
        k.e("v_lshlrev_b32 v2, 4, v1")
        k.e("v_add_u32 v%d, s28, v2" % (AD + 38))
    gemm_main(k, g, 18, 3456, True, False, pre=pre)
    if "pf3" in sys.argv:
        k.c("---- pull the later kernels' weights towards the chip (read only, results unused)")
        k.e("s_lshl_b32 s28, s2, 2")
        k.e("s_add_u32 s28, s28, s%d" % S_W)
        k.e("s_lshl_b32 s28, s28, 10")
        k.e("v_lshlrev_b32 v%d, 4, v1" % g.VD)
        k.e("v_add_u32 v%d, s28, v%d" % (g.VD, g.VD))
        for ptr, nb in ((P_W1, 4608 * 576 * 2), (P_WO, 576 * 576 * 2), (P_W2, 4608 * 576 * 2)):
            k.srd(SB, ptr, 0, nb)
            for i in range(-(-nb // 786432)):
                k.e("s_mov_b32 s28, %d" % (i * 786432))
                k.vmem("buffer_load_dwordx4 %s, v%d, s[%d:%d], s28 offen" % (vr(g.B, 4), g.VD, SB, SB + 3))
    k.c("---- QKV epilogue through LDS")
    k.e("s_cmp_eq_u32 s5, 0")
    k.sel(28, "0x%x" % WS_Q, "0x%x" % WS_KV)
    k.sel(29, "0x%x" % (4 << 20), "0x%x" % (8 << 20))
    k.sel(32, 131072, 262144)
    k.sel(31, 2048, 4096)
    k.sel(38, f32(18 ** -0.5 * math.log2(math.e)), "1.0")
    k.e("s_add_u32 s%d, s%d, s28" % (SO, P_WS))
    k.e("s_addc_u32 s%d, s%d, 0" % (SO + 1, P_WS + 1))
    k.e("s_mov_b32 s%d, s29" % (SO + 2))
    k.e("s_mov_b32 s%d, 0x00020000" % (SO + 3))
    k.e("s_mul_i32 s31, s31, s33")
    k.e("s_and_b32 s28, s4, 3")
    k.e("s_lshl_b32 s28, s28, 3")
    k.e("s_mul_i32 s28, s28, s32")
    k.e("s_add_u32 s31, s31, s28")
    k.e("s_cmp_eq_u32 s5, 2")
    k.sel(28, 2048, 0)
    k.e("s_add_u32 s31, s31, s28")
    k.e("v_mov_b32 v4, 0x3f803f80")
    for r in (6, 7, 8, 9, 10, 11):
        k.e("v_mov_b32 v%d, 0" % r)
    k.e("s_barrier")
    for h in (0, 4096, 8192, 12288):
        k.ds("ds_write_b32 v%d, v4 offset:%d" % (AD + 36, 4 + h))
        k.ds("ds_write_b64 v%d, v[6:7] offset:%d" % (AD + 36, 8 + h))
        k.ds("ds_write_b128 v%d, v[8:11] offset:%d" % (AD + 37, h))
    for j in range(9):
        for pp in range(2):
            for mi in range(2):
                a = g.acc(mi, j) + 2 * pp
                k.e("v_mul_f32 v%d, s38, v%d" % (a, a))
                k.e("v_mul_f32 v%d, s38, v%d" % (a + 1, a + 1))
                k.e("v_cvt_pk_bf16_f32 v%d, v%d, v%d" % (a, a, a + 1))
                k.ds("ds_write_b32 v%d, v%d" % (AD + (j * 2 + pp) * 2 + mi, a))
    k.wait(lg='*')
    k.e("v_lshlrev_b32 v2, 4, v1")
    for i0 in (0, 8):
        for i in range(i0, i0 + 8):
            k.ds("ds_read_b128 %s, v%d offset:%d" % (vr(g.ACC + 4 * i, 4), AD + 38, i * 1024), ("R", i))
        for i in range(i0, i0 + 8):
            k.wait(lg=("R", i))
            k.vmem("buffer_store_dwordx4 %s, v2, s[%d:%d], s31 offen offset:%d sc1" % (vr(g.ACC + 4 * i, 4), SO, SO + 3, (i & 1) * 1024))
            if i & 1:
                k.e("s_add_u32 s31, s31, s32")
    if fused:
        k.stamp()
        k.e("s_and_b32 s6, s4, 3")
        k.e("s_mul_i32 s6, s6, 48")
        k.e("s_lshl_b32 s5, s5, 4")
        k.e("s_add_u32 s6, s6, s5")
        k.e("s_add_u32 s6, s6, s3")
        publish(k, F_QKV, 6, first=True)


def k2_gemm1(k, fused=False):
    g = G(4, 3)
    BIAS = g.FREE
    k.c("---- GEMM1: wg s3 = s2-256 in 0..255")
    k.e("s_and_b32 s3, s2, 255")
    k.e("s_and_b32 s4, s3, 7")
    k.e("s_lshl_b32 s4, s4, 2")
    k.e("s_bfe_u32 s5, s3, 0x20003")
    k.e("s_add_u32 s4, s4, s5")
    k.e("s_lshr_b32 s3, s3, 5")
    k.e("s_lshl_b32 s3, s3, 4")
    k.srd(SA, P_WS, WS_Y, SZ_X)
    k.srd(SB, P_W1, 0, 576 * 4608 * 2)
    k.srd(SO, P_WS, WS_H, SZ_H)
    k.srd(SX, P_B1, 0, 9216)
    k.e("s_mul_i32 s%d, s4, 288" % S_BOFF)
    k.e("s_mov_b32 s%d, 0" % S_AOFF)
    k.e("v_lshrrev_b32 v2, 4, v1")
    k.e("v_lshlrev_b32 v2, 3, v2")
    for j in range(9):
        k.vmem("buffer_load_dwordx2 %s, v2, s[%d:%d], s%d offen offset:%d" % (vr(BIAS + 2 * j, 2), SX, SX + 3, S_BOFF, j * 32), "bias")
    a_offsets_frag(k, g, 3, 18432)
    gemm_setup_b(k, g, 9216, True)
    wf = None
    if fused == 2:
        k.e("s_lshr_b32 s39, s3, 1")
        wf = lambda: (await_flags(k, F_LN, 39, 8), k.stamp())
    gemm_main(k, g, 18, 9216, True, True, waitfn=wf)
    if "pf2" in sys.argv:
        k.c("---- pull this die's share of W2 into its L2 (read only, results unused)")
        k.srd(SB, P_W2, 0, 4608 * 576 * 2)
        k.e("s_and_b32 s28, s2, 3")
        k.e("s_mul_i32 s28, s28, %d" % (1152 * 1152))
        k.e("s_bfe_u32 s29, s2, 0x50003")
        k.e("s_lshl_b32 s29, s29, 2")
        k.e("s_add_u32 s29, s29, s%d" % S_W)
        k.e("s_lshl_b32 s29, s29, 10")
        k.e("s_add_u32 s28, s28, s29")
        k.e("v_lshlrev_b32 v%d, 4, v1" % g.VD)
        for i in range(11):
            k.vmem("buffer_load_dwordx4 %s, v%d, s[%d:%d], s28 offen" % (vr(g.B, 4), g.VD, SB, SB + 3))
            if i < 10:
                k.e("s_add_u32 s28, s28, 131072")
    k.c("---- GELU epilogue")
    if "ge" in sys.argv:
        k.e("s_setprio 3")
    c0 = -2.0 * math.log2(math.e) * math.sqrt(2.0 / math.pi)
    c1 = c0 * 0.044715
    T = g.A
    for r, c in ((8, c1), (9, c1), (10, c0), (11, c0), (12, 1.0), (13, 1.0)):
        k.e("v_mov_b32 v%d, %s" % (r, f32(c)))
    k.e("s_lshl_b32 s29, s%d, 2" % S_W)
    k.e("s_add_u32 s28, s3, s29")
    k.e("s_mul_i32 s28, s28, 147456")
    k.e("v_lshlrev_b32 v2, 4, v1")
    k.e("v_add_u32 v2, s28, v2")
    for mi in range(4):
        k.e("v_add_u32 v%d, %d, v2" % (g.VA + mi, mi * 147456))
    k.e("s_mul_i32 s30, s4, 9")
    k.e("s_and_b32 s31, s4, 1")
    k.e("s_cmp_lg_u32 s31, 0")
    k.e("s_cbranch_scc1 %s_gelu1" % k.name)
    for par in (0, 1):
        if par:
            k.label("%s_gelu1" % k.name)
        groups = [(0, 1), (2, 3), (4, 5), (6, 7), (8,)] if par == 0 else [(0,), (1, 2), (3, 4), (5, 6), (7, 8)]
        n = 0
        for grp in groups:
            k.e("s_add_u32 s31, s30, %d" % grp[0])
            k.e("s_lshr_b32 s32, s31, 1")
            k.e("s_lshl_b32 s32, s32, 10")
            if len(grp) == 1 and par == 1:
                k.e("s_add_u32 s32, s32, 8")
            bregs = ((4, 6), (14, 2))
            for j, (b0, b1) in zip(grp, bregs):
                b = BIAS + 2 * j
                k.e("v_lshlrev_b32 v%d, 16, v%d" % (b0, b))
                k.e("v_and_b32 v%d, 0xffff0000, v%d" % (b0 + 1, b))
                k.e("v_lshlrev_b32 v%d, 16, v%d" % (b1, b + 1))
                k.e("v_and_b32 v%d, 0xffff0000, v%d" % (b1 + 1, b + 1))
            for mp in range(2):
                prs = []
                slots = []
                for q in range(2):
                    t = T + ((n % 2) * 2 + q) * 12
                    slots.append(t)
                    for jj, j in enumerate(grp):
                        a = g.acc(2 * mp + q, j)
                        prs += [(a, t + 4 * jj, bregs[jj][0]), (a + 2, t + 4 * jj + 2, bregs[jj][1])]
                n += 1
                for a, t, bb in prs:
                    k.e("v_pk_add_f32 %s, %s, %s" % (vr(a, 2), vr(a, 2), vr(bb, 2)))
                for a, t, bb in prs:
                    k.e("v_pk_mul_f32 %s, %s, %s" % (vr(t, 2), vr(a, 2), vr(a, 2)))
                for a, t, bb in prs:
                    k.e("v_pk_fma_f32 %s, %s, v[8:9], v[10:11]" % (vr(t, 2), vr(t, 2)))
                for a, t, bb in prs:
                    k.e("v_pk_mul_f32 %s, %s, %s" % (vr(t, 2), vr(t, 2), vr(a, 2)))
                for a, t, bb in prs:
                    k.e("v_exp_f32 v%d, v%d" % (t, t))
                    k.e("v_exp_f32 v%d, v%d" % (t + 1, t + 1))
                for a, t, bb in prs:
                    k.e("v_pk_add_f32 %s, %s, v[12:13]" % (vr(t, 2), vr(t, 2)))
                for a, t, bb in prs:
                    k.e("v_rcp_f32 v%d, v%d" % (t, t))
                    k.e("v_rcp_f32 v%d, v%d" % (t + 1, t + 1))
                for a, t, bb in prs:
                    k.e("v_pk_mul_f32 %s, %s, %s" % (vr(t, 2), vr(t, 2), vr(a, 2)))
                for q in range(2):
                    t = slots[q]
                    for jj in range(len(grp)):
                        k.e("v_cvt_pk_bf16_f32 v%d, v%d, v%d" % (t + 8 + 2 * jj, t + 4 * jj, t + 4 * jj + 1))
                        k.e("v_cvt_pk_bf16_f32 v%d, v%d, v%d" % (t + 9 + 2 * jj, t + 4 * jj + 2, t + 4 * jj + 3))
                    k.vmem("buffer_store_dwordx%d %s, v%d, s[%d:%d], s32 offen sc1" % (2 * len(grp), vr(t + 8, 2 * len(grp)), g.VA + 2 * mp + q, SO, SO + 3))
        if par == 0:
            k.e("s_branch %s_gelu_end" % k.name)
    k.label("%s_gelu_end" % k.name)
    k.dump(1)
    if fused:
        k.e("s_lshr_b32 s3, s3, 4")
        k.e("s_lshl_b32 s3, s3, 5")
        k.e("s_add_u32 s3, s3, s4")
        if "ge0" in sys.argv:
            k.e("s_setprio 0")
        publish(k, F_H, 3, first=(fused == 1))
    else:
        k.e("s_endpgm")


def attn(k, half, kidx, nxt=None, wait=False):
    N = k.name + "h%d" % half
    O, S0, S1, P0, P1, Q, KR, VR = 16, 32, 48, 64, 72, 80, 88, 104
    SS, PP = (S0, S1), (P0, P1)
    VKC, VVC, VKN, VVN, VKB, VVB, VDM = 120, 121, 122, 123, 124, 125, 126
    S_NB, S_DOFF, S_CNT, S_FLAG, S_T = 28, 29, 30, 31, 32
    LOMASK = 40
    k.c("---- attention: wg s3 in 0..255")
    k.e("s_and_b32 s3, s2, 255")
    k.e("s_and_b32 s4, s3, 7")
    k.e("s_lshr_b32 s5, s3, 6")
    k.e("s_lshl_b32 s5, s5, 3")
    k.e("s_add_u32 s4, s4, s5")
    k.e("s_bfe_u32 s5, s3, 0x30003")
    k.e("s_lshl_b32 s5, s5, 2")
    k.e("s_add_u32 s5, s5, s%d" % S_W)
    k.e("s_add_u32 s5, s5, %d" % (half * 32))
    if wait:
        k.e("s_lshr_b32 s39, s4, 3")
        k.e("s_mul_i32 s39, s39, 48")
        await_flags(k, F_QKV, 39, 48, acquire=True)
        k.stamp()
    k.srd(SA, P_WS, WS_Q, 4 << 20)
    k.srd(SB, P_WS, WS_KV, 8 << 20)
    k.srd(SO, P_WS, WS_O, SZ_X)
    k.e("s_mov_b32 s%d, -1" % LOMASK)
    k.e("s_mov_b32 s%d, 0" % (LOMASK + 1))
    k.e("s_mov_b32 s%d, 0" % S_FLAG)
    k.e("s_lshl_b32 s%d, s%d, 12" % (S_WB, S_W))
    k.e("s_lshl_b32 s%d, s4, 18" % S_DOFF)
    k.e("s_mov_b32 s33, s%d" % S_DOFF)
    k.e("v_lshlrev_b32 v2, 4, v1")
    k.e("v_add_u32 v%d, s%d, v2" % (VDM, S_WB))

    def dma(m0expr):
        k.e(m0expr)
        k.e("s_nop 0")
        for i in range(4):
            k.e("buffer_load_dwordx4 v%d, s[%d:%d], s%d offen offset:%d lds" % (VDM, SB, SB + 3, S_DOFF, i * 1024))
        k.e("s_add_u32 s%d, s%d, 16384" % (S_DOFF, S_DOFF))
    dma("s_mov_b32 m0, s%d" % S_WB)
    k.e("s_lshl_b32 s34, s4, 6")
    k.e("s_add_u32 s34, s34, s5")
    k.e("s_lshl_b32 s34, s34, 11")
    for u in (0, 1):
        k.e("buffer_load_dwordx4 %s, v2, s[%d:%d], s34 offen offset:%d" % (vr(Q + 4 * u, 4), SA, SA + 3, u * 1024))
    dma("s_add_u32 m0, s%d, 16384" % S_WB)
    k.e("v_mov_b32 v%d, v2" % VKB)
    k.e("v_lshrrev_b32 v3, 5, v1")
    k.e("v_lshlrev_b32 v3, 2, v3")
    k.e("v_bfe_u32 v4, v1, 2, 2")
    k.e("v_add_u32 v3, v3, v4")
    k.e("v_lshlrev_b32 v3, 6, v3")
    k.e("v_bfe_u32 v4, v1, 4, 1")
    k.e("v_lshlrev_b32 v4, 5, v4")
    k.e("v_and_b32 v5, 3, v1")
    k.e("v_lshlrev_b32 v5, 3, v5")
    k.e("v_add3_u32 v3, v3, v4, v5")
    k.e("v_add_u32 v%d, 2048, v3" % VVB)
    k.e("v_mov_b32 v%d, v%d" % (VKC, VKB))
    k.e("v_mov_b32 v%d, v%d" % (VVC, VVB))
    k.e("v_add_u32 v%d, 16384, v%d" % (VKN, VKB))
    k.e("v_add_u32 v%d, 16384, v%d" % (VVN, VVB))
    k.e("s_mov_b32 s%d, 16384" % S_NB)
    for r in list(range(O, O + 16)) + list(range(P1, P1 + 8)) + list(range(VR + 8, VR + 16)):
        k.e("v_mov_b32 v%d, 0" % r)
    k.e("s_waitcnt vmcnt(4)")
    k.e("v_cndmask_b32 v%d, 0, v%d, s[%d:%d]" % (Q + 4, Q + 4, LOMASK, LOMASK + 1))
    for r in (5, 6, 7):
        k.e("v_mov_b32 v%d, 0" % (Q + r))
    k.e("s_barrier")
    k.stamp()

    def ldk(buf, va, tile):
        for u in (0, 1):
            k.e("ds_read_b128 %s, v%d offset:%d" % (vr(KR + 8 * buf + 4 * u, 4), va, tile * 4096 + u * 1024))

    def ldv(buf, va, tile):
        for u in (0, 1):
            for h in (0, 1):
                k.e("ds_read_b64_tr_b16 %s, v%d offset:%d" % (vr(VR + 8 * buf + 4 * u + 2 * h, 2), va, tile * 4096 + u * 1024 + h * 512))

    def qk(S, kb, part):
        if part == 0:
            return "v_mfma_f32_32x32x16_bf16 %s, %s, %s, 0" % (vr(S, 16), vr(KR + 8 * kb, 4), vr(Q, 4))
        return "v_mfma_f32_32x32x16_bf16 %s, %s, %s, %s" % (vr(S, 16), vr(KR + 8 * kb + 4, 4), vr(Q + 4, 4), vr(S, 16))

    def pv(vb, P, u):
        return "v_mfma_f32_32x32x16_bf16 %s, %s, %s, %s" % (vr(O, 16), vr(VR + 8 * vb + 4 * u, 4), vr(P + 4 * u, 4), vr(O, 16))

    def softmax_ops(S, P):
        e = lambda i: "v_exp_f32 v%d, v%d" % (S + i, S + i)
        c = lambda i: "v_cvt_pk_bf16_f32 v%d, v%d, v%d" % (P + i, S + 2 * i, S + 2 * i + 1)
        ops = [e(0), e(1), e(2), e(3), c(0)]
        for i in range(1, 7):
            ops += [e(2 * i + 2), e(2 * i + 3), c(i)]
        ops += [c(7)]
        return ops

    def phase(S, P, mf):
        ops = softmax_ops(S, P)
        for i, o in enumerate(ops):
            if i % 6 == 0 and i // 6 < len(mf):
                k.e(mf[i // 6])
            k.e(o)

    def rowmax(S, first, M):
        k.e("v_max3_f32 v2, v%d, v%d, v%d" % (S, S + 1, S + 2))
        for i in range(3, 15, 2):
            k.e("v_max3_f32 v2, v2, v%d, v%d" % (S + i, S + i + 1))
        if first:
            k.e("v_max_f32 v%d, v2, v%d" % (M, S + 15))
        else:
            k.e("v_max3_f32 v%d, v2, v%d, v%d" % (M, S + 15, M))

    def patch(M):
        k.e("v_mov_b32 v3, v%d" % M)
        k.e("v_mov_b32 v4, v%d" % M)
        k.e("s_nop 1")
        k.e("v_permlane32_swap_b32 v3, v4")
        k.e("s_nop 1")
        k.e("v_max_f32 v3, v3, v4")
        k.e("v_sub_f32 v3, 0, v3")
        k.e("v_cvt_pk_bf16_f32 v4, v3, v3")
        k.e("v_lshlrev_b32 v4, 16, v4")
        k.e("v_sub_f32 v3, v3, v4")
        k.e("v_cvt_pk_bf16_f32 v3, v4, v3")
        k.e("v_cndmask_b32 v%d, 0, v3, s[%d:%d]" % (Q + 5, LOMASK, LOMASK + 1))

    ldk(0, VKC, 0)
    ldk(1, VKC, 1)
    k.e("s_waitcnt lgkmcnt(0)")
    k.e(qk(S0, 0, 0))
    k.e(qk(S0, 0, 1))
    k.e("s_nop 7")
    k.e("s_nop 7")
    rowmax(S0, True, 6)
    patch(6)
    k.e("s_nop 1")
    k.e(qk(S0, 0, 0))
    k.e(qk(S0, 0, 1))
    k.e("s_nop 7")
    k.e("s_nop 7")
    k.stamp()
    k.e("s_mov_b32 s%d, 16" % S_CNT)
    k.label(N + "_aloop")
    for tt in range(4):
        k.e("s_waitcnt lgkmcnt(0)")
        if tt == 2:
            k.e("s_waitcnt vmcnt(0)")
            k.e("s_barrier")
            k.e("s_add_u32 s%d, s%d, 16384" % (S_T, S_NB))
            k.e("s_cmp_eq_u32 s%d, 49152" % S_T)
            k.e("s_cmov_b32 s%d, 0" % S_T)
            dma("s_add_u32 m0, s%d, s%d" % (S_T, S_WB))
        if tt + 2 < 4:
            ldk(tt & 1, VKC, tt + 2)
        else:
            ldk(tt & 1, VKN, tt - 2)
        ldv(tt & 1, VVC, tt)
        o = (tt + 1) & 1
        phase(SS[tt & 1], PP[tt & 1], [qk(SS[o], o, 0), qk(SS[o], o, 1), pv(o, PP[o], 0), pv(o, PP[o], 1)])
    k.e("v_mov_b32 v%d, v%d" % (VKC, VKN))
    k.e("v_mov_b32 v%d, v%d" % (VVC, VVN))
    k.e("s_mov_b32 s%d, s%d" % (S_NB, S_T))
    k.e("v_add_u32 v%d, s%d, v%d" % (VKN, S_NB, VKB))
    k.e("v_add_u32 v%d, s%d, v%d" % (VVN, S_NB, VVB))
    k.e("s_sub_u32 s%d, s%d, 1" % (S_CNT, S_CNT))
    k.e("s_cmp_lg_u32 s%d, 0" % S_CNT)
    k.e("s_cbranch_scc1 %s_aloop" % N)
    k.e("s_waitcnt lgkmcnt(0)")
    k.e(pv(1, P1, 0))
    k.e(pv(1, P1, 1))
    k.stamp()
    k.label(N + "_fin")
    k.e("s_waitcnt vmcnt(0) lgkmcnt(0)")
    k.e("s_nop 7")
    k.e("s_nop 7")
    k.e("v_mov_b32 v8, v%d" % (O + 10))
    k.e("v_mov_b32 v9, v%d" % (O + 10))
    k.e("s_nop 1")
    k.e("v_permlane32_swap_b32 v8, v9")
    k.e("s_nop 1")
    k.e("s_cmp_lg_u32 s%d, 0" % S_FLAG)
    k.e("s_cbranch_scc1 %s_store" % N)
    k.e("v_mov_b32 v3, %s" % f32(2.0 ** 40))
    k.e("v_cmp_nlt_f32 vcc, v8, v3")
    k.e("s_cbranch_vccnz %s_fallback" % N)
    k.label(N + "_store")
    k.e("v_rcp_f32 v8, v8")
    k.e("s_lshl_b32 s34, s5, 5")
    k.e("v_and_b32 v2, 31, v1")
    k.e("v_add_u32 v2, s34, v2")
    k.e("v_lshrrev_b32 v3, 4, v2")
    k.e("v_mul_u32_u24 v3, 18432, v3")
    k.e("v_and_b32 v2, 15, v2")
    k.e("v_lshlrev_b32 v2, 4, v2")
    k.e("v_add_u32 v2, v2, v3")
    k.e("s_mul_i32 s35, s4, 18")
    k.e("v_lshrrev_b32 v3, 5, v1")
    k.e("v_lshlrev_b32 v3, 2, v3")
    k.e("v_add_u32 v3, s35, v3")
    AD = S0
    for r, dd in enumerate((0, 2, 8, 10, 16)):
        k.e("v_add_u32 v4, %d, v3" % dd)
        k.e("v_lshrrev_b32 v5, 5, v4")
        k.e("v_lshlrev_b32 v5, 10, v5")
        k.e("v_bfe_u32 v6, v4, 3, 2")
        k.e("v_lshlrev_b32 v6, 8, v6")
        k.e("v_and_b32 v4, 7, v4")
        k.e("v_lshlrev_b32 v4, 1, v4")
        k.e("v_add3_u32 v4, v4, v5, v6")
        k.e("v_add_u32 v%d, v4, v2" % (AD + r))
    for r in range(10):
        k.e("v_mul_f32 v%d, v%d, v8" % (O + r, O + r))
    for r in range(5):
        k.e("v_cvt_pk_bf16_f32 v%d, v%d, v%d" % (O + r, O + 2 * r, O + 2 * r + 1))
    for r in range(4):
        k.e("buffer_store_dword v%d, v%d, s[%d:%d], 0 offen" % (O + r, AD + r, SO, SO + 3))
    k.e("s_mov_b64 exec, s[%d:%d]" % (LOMASK, LOMASK + 1))
    k.e("buffer_store_dword v%d, v%d, s[%d:%d], 0 offen" % (O + 4, AD + 4, SO, SO + 3))
    k.e("s_mov_b64 exec, -1")
    k.dump(kidx)
    k.e("s_branch %s" % nxt if nxt else "s_endpgm")
    k.label(N + "_fallback")
    k.e("s_mov_b32 s%d, 1" % S_FLAG)
    k.e("v_mov_b32 v%d, 0" % (Q + 5))
    k.e("v_mov_b32 v6, 0xff800000")
    k.e("s_add_u32 s38, s%d, 49152" % S_WB)
    k.e("v_lshlrev_b32 v12, 4, v1")
    k.e("v_add_u32 v13, s38, v%d" % VKB)
    k.e("v_add_u32 v14, s38, v%d" % VVB)
    for ps in (0, 1):
        k.e("s_mov_b32 s%d, s33" % S_DOFF)
        k.e("s_mov_b32 s%d, 64" % S_CNT)
        k.label("%s_fb%d" % (N, ps))
        k.e("s_mov_b32 m0, s38")
        k.e("s_nop 0")
        for i in range(4):
            k.e("buffer_load_dwordx4 v12, s[%d:%d], s%d offen offset:%d lds" % (SB, SB + 3, S_DOFF, i * 1024))
        k.e("s_add_u32 s%d, s%d, 4096" % (S_DOFF, S_DOFF))
        k.e("s_waitcnt vmcnt(0)")
        ldk(0, 13, 0)
        if ps:
            ldv(0, 14, 0)
        k.e("s_waitcnt lgkmcnt(0)")
        k.e(qk(S0, 0, 0))
        k.e(qk(S0, 0, 1))
        k.e("s_nop 7")
        k.e("s_nop 7")
        if ps == 0:
            rowmax(S0, False, 6)
        else:
            for o in softmax_ops(S0, P0):
                k.e(o)
            k.e("s_nop 1")
            k.e(pv(0, P0, 0))
            k.e(pv(0, P0, 1))
        k.e("s_sub_u32 s%d, s%d, 1" % (S_CNT, S_CNT))
        k.e("s_cmp_lg_u32 s%d, 0" % S_CNT)
        k.e("s_cbranch_scc1 %s_fb%d" % (N, ps))
        if ps == 0:
            patch(6)
            for r in range(16):
                k.e("v_mov_b32 v%d, 0" % (O + r))
            k.e("s_nop 1")
    k.e("s_branch %s_fin" % N)


def attn2(k, kidx, nxt=None, wait=False):
    OA, OB, SAq, SBq, PA, PB, QA, QB, KR, VR = 16, 32, 48, 64, 80, 88, 96, 104, 112, 128
    VKC, VVC, VKN, VVN, VKB, VVB, VDM = 144, 145, 146, 147, 148, 149, 150
    S_NB, S_DOFF, S_CNT, S_FLAG, S_T = 28, 29, 30, 31, 32
    LOMASK = 40
    k.c("---- attention: wg s3 = s2-256")
    k.e("s_and_b32 s3, s2, 255")
    k.e("s_and_b32 s4, s3, 7")
    k.e("s_lshr_b32 s5, s3, 6")
    k.e("s_lshl_b32 s5, s5, 3")
    k.e("s_add_u32 s4, s4, s5")
    k.e("s_bfe_u32 s5, s3, 0x30003")
    if wait:
        k.e("s_lshr_b32 s39, s4, 3")
        k.e("s_mul_i32 s39, s39, 48")
        await_flags(k, F_QKV, 39, 48, acquire=True)
        k.stamp()
    k.srd(SA, P_WS, WS_Q, 4 << 20)
    k.srd(SB, P_WS, WS_KV, 8 << 20)
    k.srd(SO, P_WS, WS_O, 128 * 24576)
    k.e("s_mov_b32 s%d, -1" % LOMASK)
    k.e("s_mov_b32 s%d, 0" % (LOMASK + 1))
    k.e("s_mov_b32 s%d, 0" % S_FLAG)
    k.e("s_lshl_b32 s%d, s%d, 12" % (S_WB, S_W))
    k.e("s_lshl_b32 s%d, s4, 18" % S_DOFF)
    k.e("s_mov_b32 s33, s%d" % S_DOFF)
    k.e("v_lshlrev_b32 v2, 4, v1")
    k.e("v_add_u32 v%d, s%d, v2" % (VDM, S_WB))
    def dma(m0expr):
        k.e(m0expr)
        k.e("s_nop 0")
        for i in range(4):
            k.e("buffer_load_dwordx4 v%d, s[%d:%d], s%d offen offset:%d lds" % (VDM, SB, SB + 3, S_DOFF, i * 1024))
        k.e("s_add_u32 s%d, s%d, 16384" % (S_DOFF, S_DOFF))
    dma("s_mov_b32 m0, s%d" % S_WB)
    dma("s_add_u32 m0, s%d, 16384" % S_WB)
    k.e("s_lshl_b32 s34, s4, 6")
    k.e("s_lshl_b32 s35, s5, 3")
    k.e("s_add_u32 s34, s34, s35")
    k.e("s_lshl_b32 s35, s%d, 1" % S_W)
    k.e("s_add_u32 s34, s34, s35")
    k.e("s_lshl_b32 s34, s34, 11")
    for X in (0, 1):
        for u in (0, 1):
            k.e("buffer_load_dwordx4 %s, v2, s[%d:%d], s34 offen offset:%d" % (vr(QA + 8 * X + 4 * u, 4), SA, SA + 3, X * 2048 + u * 1024))
    k.e("v_mov_b32 v%d, v2" % VKB)
    k.e("v_lshrrev_b32 v3, 5, v1")
    k.e("v_lshlrev_b32 v3, 2, v3")
    k.e("v_bfe_u32 v4, v1, 2, 2")
    k.e("v_add_u32 v3, v3, v4")
    k.e("v_lshlrev_b32 v3, 6, v3")
    k.e("v_bfe_u32 v4, v1, 4, 1")
    k.e("v_lshlrev_b32 v4, 5, v4")
    k.e("v_and_b32 v5, 3, v1")
    k.e("v_lshlrev_b32 v5, 3, v5")
    k.e("v_add3_u32 v3, v3, v4, v5")
    k.e("v_add_u32 v%d, 2048, v3" % VVB)
    k.e("v_mov_b32 v%d, v%d" % (VKC, VKB))
    k.e("v_mov_b32 v%d, v%d" % (VVC, VVB))
    k.e("v_add_u32 v%d, 16384, v%d" % (VKN, VKB))
    k.e("v_add_u32 v%d, 16384, v%d" % (VVN, VVB))
    k.e("s_mov_b32 s%d, 16384" % S_NB)
    for r in range(32):
        k.e("v_mov_b32 v%d, 0" % (OA + r))
    if "t4" in sys.argv:
        l = k.newlabel("an")
        k.e("s_cmp_lg_u32 s%d, 0" % S_W)
        k.e("s_cbranch_scc1 %s" % l)
        nonce_get(k)
        k.label(l)
    k.e("s_waitcnt vmcnt(0)")
    for X in (0, 1):
        q = QA + 8 * X + 4
        k.e("v_cndmask_b32 v%d, 0, v%d, s[%d:%d]" % (q, q, LOMASK, LOMASK + 1))
        for r in (1, 2, 3):
            k.e("v_mov_b32 v%d, 0" % (q + r))
    k.e("s_barrier")
    k.stamp()

    def ldk(buf, va, tile):
        for u in (0, 1):
            k.e("ds_read_b128 %s, v%d offset:%d" % (vr(KR + 8 * buf + 4 * u, 4), va, tile * 4096 + u * 1024))

    def ldv(buf, va, tile):
        for u in (0, 1):
            for h in (0, 1):
                k.e("ds_read_b64_tr_b16 %s, v%d offset:%d" % (vr(VR + 8 * buf + 4 * u + 2 * h, 2), va, tile * 4096 + u * 1024 + h * 512))

    def qk(S, kb, Q, part):
        if part == 0:
            return "v_mfma_f32_32x32x16_bf16 %s, %s, %s, 0" % (vr(S, 16), vr(KR + 8 * kb, 4), vr(Q, 4))
        return "v_mfma_f32_32x32x16_bf16 %s, %s, %s, %s" % (vr(S, 16), vr(KR + 8 * kb + 4, 4), vr(Q + 4, 4), vr(S, 16))

    def pv(O, vb, P, u):
        return "v_mfma_f32_32x32x16_bf16 %s, %s, %s, %s" % (vr(O, 16), vr(VR + 8 * vb + 4 * u, 4), vr(P + 4 * u, 4), vr(O, 16))

    def softmax_ops(S, P):
        e = lambda i: "v_exp_f32 v%d, v%d" % (S + i, S + i)
        c = lambda i: "v_cvt_pk_bf16_f32 v%d, v%d, v%d" % (P + i, S + 2 * i, S + 2 * i + 1)
        ops = [e(0), e(1), e(2), e(3), c(0)]
        for i in range(1, 7):
            ops += [e(2 * i + 2), e(2 * i + 3), c(i)]
        ops += [c(7)]
        return ops

    def phase(S, P, mf):
        ops = softmax_ops(S, P)
        for i, o in enumerate(ops):
            if i % 6 == 0 and i // 6 < len(mf) and "aXm" not in sys.argv:
                k.e(mf[i // 6])
            if "aXc" in sys.argv and "cvt" in o:
                continue
            if "aXe" in sys.argv and "exp" in o:
                continue
            k.e(o)

    def rowmax_patch(S, Q, first, M):
        k.e("v_max3_f32 v2, v%d, v%d, v%d" % (S, S + 1, S + 2))
        for i in range(3, 15, 2):
            k.e("v_max3_f32 v2, v2, v%d, v%d" % (S + i, S + i + 1))
        if first:
            k.e("v_max_f32 v%d, v2, v%d" % (M, S + 15))
        else:
            k.e("v_max3_f32 v%d, v2, v%d, v%d" % (M, S + 15, M))

    def patch(M, Q):
        k.e("v_mov_b32 v3, v%d" % M)
        k.e("v_mov_b32 v4, v%d" % M)
        k.e("s_nop 1")
        k.e("v_permlane32_swap_b32 v3, v4")
        k.e("s_nop 1")
        k.e("v_max_f32 v3, v3, v4")
        k.e("v_sub_f32 v3, 0, v3")
        k.e("v_cvt_pk_bf16_f32 v4, v3, v3")
        k.e("v_lshlrev_b32 v4, 16, v4")
        k.e("v_sub_f32 v3, v3, v4")
        k.e("v_cvt_pk_bf16_f32 v3, v4, v3")
        k.e("v_cndmask_b32 v%d, 0, v3, s[%d:%d]" % (Q + 5, LOMASK, LOMASK + 1))

    ldk(0, VKC, 0)
    ldk(1, VKC, 1)
    ldv(0, VVC, 0)
    k.e("s_waitcnt lgkmcnt(0)")
    for S, Q in ((SAq, QA), (SBq, QB)):
        k.e(qk(S, 0, Q, 0))
        k.e(qk(S, 0, Q, 1))
    k.e("s_nop 7")
    k.e("s_nop 7")
    rowmax_patch(SAq, QA, True, 6)
    rowmax_patch(SBq, QB, True, 7)
    patch(6, QA)
    patch(7, QB)
    k.e("s_nop 1")
    k.e(qk(SAq, 0, QA, 0))
    k.e(qk(SAq, 0, QA, 1))
    k.e("s_nop 7")
    k.e("s_nop 7")
    phase(SAq, PA, [qk(SBq, 0, QB, 0), qk(SBq, 0, QB, 1)])
    k.stamp()
    k.e("s_mov_b32 s%d, 16" % S_CNT)
    k.label("ka_loop")
    for tt in range(4):
        k.e("s_waitcnt lgkmcnt(0)")
        if tt == 2:
            k.e("s_waitcnt vmcnt(0)")
            if "aXb" not in sys.argv:
                k.e("s_barrier")
            k.e("s_add_u32 s%d, s%d, 16384" % (S_T, S_NB))
            k.e("s_cmp_eq_u32 s%d, 49152" % S_T)
            k.e("s_cmov_b32 s%d, 0" % S_T)
            dma("s_add_u32 m0, s%d, s%d" % (S_T, S_WB))
        if "aXl" in sys.argv:
            pass
        elif tt + 2 < 4:
            ldk(tt & 1, VKC, tt + 2)
        else:
            ldk(tt & 1, VKN, tt - 2)
        if "aXl" in sys.argv:
            pass
        elif tt + 1 < 4:
            ldv((tt + 1) & 1, VVC, tt + 1)
        else:
            ldv((tt + 1) & 1, VVN, 0)
        kb, vb = (tt + 1) & 1, tt & 1
        phase(SBq, PB, [qk(SAq, kb, QA, 0), qk(SAq, kb, QA, 1), pv(OA, vb, PA, 0), pv(OA, vb, PA, 1)])
        phase(SAq, PA, [qk(SBq, kb, QB, 0), qk(SBq, kb, QB, 1), pv(OB, vb, PB, 0), pv(OB, vb, PB, 1)])
    k.e("v_mov_b32 v%d, v%d" % (VKC, VKN))
    k.e("v_mov_b32 v%d, v%d" % (VVC, VVN))
    k.e("s_mov_b32 s%d, s%d" % (S_NB, S_T))
    k.e("v_add_u32 v%d, s%d, v%d" % (VKN, S_NB, VKB))
    k.e("v_add_u32 v%d, s%d, v%d" % (VVN, S_NB, VVB))
    k.e("s_sub_u32 s%d, s%d, 1" % (S_CNT, S_CNT))
    k.e("s_cmp_lg_u32 s%d, 0" % S_CNT)
    k.e("s_cbranch_scc1 ka_loop")
    k.stamp()
    k.label("ka_fin")
    k.e("s_waitcnt vmcnt(0) lgkmcnt(0)")
    k.e("s_nop 7")
    k.e("s_nop 7")
    for X, O in ((0, OA), (1, OB)):
        k.e("v_mov_b32 v%d, v%d" % (8 + 2 * X, O + 10))
        k.e("v_mov_b32 v%d, v%d" % (9 + 2 * X, O + 10))
    k.e("s_nop 1")
    k.e("v_permlane32_swap_b32 v8, v9")
    k.e("v_permlane32_swap_b32 v10, v11")
    k.e("s_nop 1")
    k.e("s_cmp_lg_u32 s%d, 0" % S_FLAG)
    k.e("s_cbranch_scc1 ka_store")
    k.e("v_max_f32 v2, v8, v10")
    k.e("v_mov_b32 v3, %s" % f32(2.0 ** 40))
    k.e("v_cmp_nlt_f32 vcc, v8, v3")
    k.e("s_nop 1")
    k.e("s_mov_b64 s[36:37], vcc")
    k.e("v_cmp_nlt_f32 vcc, v10, v3")
    k.e("s_nop 1")
    k.e("s_or_b64 s[36:37], vcc, s[36:37]")
    k.e("s_cbranch_scc1 ka_fallback")
    k.label("ka_store")
    k.e("v_rcp_f32 v8, v8")
    k.e("v_rcp_f32 v10, v10")
    if "t4" in sys.argv:
        k.e("s_lshl_b32 s34, s5, 8")
        k.e("s_lshl_b32 s35, s%d, 6" % S_W)
        k.e("s_add_u32 s34, s34, s35")
        k.e("s_mul_i32 s35, s4, 3")
        for r in (0, 1):
            if r == 0:
                k.e("v_and_b32 v2, 31, v1")
                k.e("v_add_u32 v2, s34, v2")
                k.e("v_lshrrev_b32 v3, 5, v1")
                k.e("v_add_u32 v3, s35, v3")
            else:
                k.e("v_add_u32 v2, s34, v1")
                k.e("v_mov_b32 v3, s35")
                k.e("v_add_u32 v3, 2, v3")
            k.e("v_lshrrev_b32 v4, 4, v2")
            k.e("v_mul_u32_u24 v4, 24576, v4")
            k.e("v_and_b32 v2, 15, v2")
            k.e("v_lshlrev_b32 v2, 4, v2")
            k.e("v_lshrrev_b32 v5, 2, v3")
            k.e("v_lshlrev_b32 v5, 10, v5")
            k.e("v_and_b32 v3, 3, v3")
            k.e("v_lshlrev_b32 v3, 8, v3")
            k.e("v_add3_u32 v2, v2, v4, v5")
            k.e("v_add_u32 v%d, v2, v3" % (52 + r))
        for X, O in ((0, OA), (1, OB)):
            for r in range(10):
                k.e("v_mul_f32 v%d, v%d, v%d" % (O + r, O + r, 8 + 2 * X))
            for r in range(5):
                k.e("v_cvt_pk_bf16_f32 v%d, v%d, v%d" % (O + r, O + 2 * r, O + 2 * r + 1))
        k.e("v_mov_b32 v48, v%d" % (OA + 4))
        for r in (49, 50, 51):
            k.e("v_mov_b32 v%d, 0" % r)
        k.e("s_nop 1")
        for O in (OA, OB):
            k.e("v_permlane32_swap_b32 v%d, v%d" % (O, O + 2))
            k.e("v_permlane32_swap_b32 v%d, v%d" % (O + 1, O + 3))
        k.e("v_permlane32_swap_b32 v48, v%d" % (OB + 4))
        k.e("s_mov_b32 s35, 49152")
        k.e("s_nop 1")
        k.e("buffer_store_dwordx4 %s, v52, s[%d:%d], 0 offen sc1" % (vr(OA, 4), SO, SO + 3))
        k.e("buffer_store_dwordx4 %s, v52, s[%d:%d], s35 offen sc1" % (vr(OB, 4), SO, SO + 3))
        k.e("buffer_store_dwordx4 v[48:51], v53, s[%d:%d], 0 offen sc1" % (SO, SO + 3))
        k.e("s_lshl_b32 s6, s5, 5")
        k.e("s_add_u32 s6, s6, s4")
        k.stamp()
        publish(k, F_O, 6)
    else:
        k.e("s_lshl_b32 s34, s5, 8")
        k.e("s_lshl_b32 s35, s%d, 6" % S_W)
        k.e("s_add_u32 s34, s34, s35")
        k.e("v_and_b32 v2, 31, v1")
        k.e("v_add_u32 v2, s34, v2")
        k.e("v_lshrrev_b32 v3, 4, v2")
        k.e("v_mul_u32_u24 v3, 18432, v3")
        k.e("v_and_b32 v2, 15, v2")
        k.e("v_lshlrev_b32 v2, 4, v2")
        k.e("v_add_u32 v2, v2, v3")
        k.e("s_mul_i32 s35, s4, 18")
        k.e("v_lshrrev_b32 v3, 5, v1")
        k.e("v_lshlrev_b32 v3, 2, v3")
        k.e("v_add_u32 v3, s35, v3")
        AD = 48
        for r, dd in enumerate((0, 2, 8, 10, 16)):
            k.e("v_add_u32 v4, %d, v3" % dd)
            k.e("v_lshrrev_b32 v5, 5, v4")
            k.e("v_lshlrev_b32 v5, 10, v5")
            k.e("v_bfe_u32 v6, v4, 3, 2")
            k.e("v_lshlrev_b32 v6, 8, v6")
            k.e("v_and_b32 v4, 7, v4")
            k.e("v_lshlrev_b32 v4, 1, v4")
            k.e("v_add3_u32 v4, v4, v5, v6")
            k.e("v_add_u32 v%d, v4, v2" % (AD + r))
        k.e("s_mov_b32 s35, 36864")
        for X, O in ((0, OA), (1, OB)):
            so = "0" if X == 0 else "s35"
            for r in range(10):
                k.e("v_mul_f32 v%d, v%d, v%d" % (O + r, O + r, 8 + 2 * X))
            for r in range(5):
                k.e("v_cvt_pk_bf16_f32 v%d, v%d, v%d" % (O + r, O + 2 * r, O + 2 * r + 1))
            for r in range(4):
                k.e("buffer_store_dword v%d, v%d, s[%d:%d], %s offen" % (O + r, AD + r, SO, SO + 3, so))
            k.e("s_mov_b64 exec, s[%d:%d]" % (LOMASK, LOMASK + 1))
            k.e("buffer_store_dword v%d, v%d, s[%d:%d], %s offen" % (O + 4, AD + 4, SO, SO + 3, so))
            k.e("s_mov_b64 exec, -1")
    k.dump(kidx)
    k.e("s_branch %s" % nxt if nxt else "s_endpgm")
    k.label("ka_fallback")
    k.e("s_mov_b32 s%d, 1" % S_FLAG)
    k.e("v_mov_b32 v%d, 0" % (QA + 5))
    k.e("v_mov_b32 v%d, 0" % (QB + 5))
    k.e("v_mov_b32 v6, 0xff800000")
    k.e("v_mov_b32 v7, 0xff800000")
    k.e("s_add_u32 s38, s%d, 49152" % S_WB)
    k.e("v_lshlrev_b32 v12, 4, v1")
    k.e("v_add_u32 v13, s38, v%d" % VKB)
    k.e("v_add_u32 v14, s38, v%d" % VVB)
    for ps in (0, 1):
        k.e("s_mov_b32 s%d, s33" % S_DOFF)
        k.e("s_mov_b32 s%d, 64" % S_CNT)
        k.label("ka_fb%d" % ps)
        k.e("s_mov_b32 m0, s38")
        k.e("s_nop 0")
        for i in range(4):
            k.e("buffer_load_dwordx4 v12, s[%d:%d], s%d offen offset:%d lds" % (SB, SB + 3, S_DOFF, i * 1024))
        k.e("s_add_u32 s%d, s%d, 4096" % (S_DOFF, S_DOFF))
        k.e("s_waitcnt vmcnt(0)")
        ldk(0, 13, 0)
        if ps:
            ldv(0, 14, 0)
        k.e("s_waitcnt lgkmcnt(0)")
        for S, Q in ((SAq, QA), (SBq, QB)):
            k.e(qk(S, 0, Q, 0))
            k.e(qk(S, 0, Q, 1))
        k.e("s_nop 7")
        k.e("s_nop 7")
        if ps == 0:
            rowmax_patch(SAq, QA, False, 6)
            rowmax_patch(SBq, QB, False, 7)
        else:
            for S, P in ((SAq, PA), (SBq, PB)):
                for o in softmax_ops(S, P):
                    k.e(o)
            k.e("s_nop 1")
            for O, P in ((OA, PA), (OB, PB)):
                k.e(pv(O, 0, P, 0))
                k.e(pv(O, 0, P, 1))
        k.e("s_sub_u32 s%d, s%d, 1" % (S_CNT, S_CNT))
        k.e("s_cmp_lg_u32 s%d, 0" % S_CNT)
        k.e("s_cbranch_scc1 ka_fb%d" % ps)
        if ps == 0:
            patch(6, QA)
            patch(7, QB)
            for r in range(32):
                k.e("v_mov_b32 v%d, 0" % (OA + r))
            k.e("s_nop 1")
    k.e("s_branch ka_fin")


def mixed_kernel(name, half, kidx, gemm, nv, lds):
    k = K(name)
    load_args(k)
    prologue_ids(k)
    k.e("s_cmp_ge_u32 s2, 512")
    k.e("s_cbranch_scc1 %s_exit" % name)
    k.e("s_waitcnt lgkmcnt(0)")
    if "noattn" in sys.argv:
        k.e("s_cmp_lt_u32 s2, 256")
        k.e("s_cbranch_scc1 %s_exit" % name)
    k.e("s_cmp_lt_u32 s2, 256")
    k.e("s_cbranch_scc1 %s_attn" % name)
    if "nogemm" in sys.argv:
        k.e("s_branch %s_exit" % name)
    k.priok = None
    for f in sys.argv:
        if f.startswith("prio"):
            k.priok = int(f[4:])
            k.e("s_setprio 3")
    gemm(k)
    k.label(name + "_attn")
    k.vm = []
    k.lg = []
    attn(k, half, kidx)
    k.label(name + "_exit")
    k.e("s_endpgm")
    return k, nv, lds, 512


def k2():
    return mixed_kernel("k2", 0, 1, k2_gemm1, 252, 65536)


NSLAB = 4


def k3_gemm2(k, fused=False):
    g = G(4, 3, 2, 1, 4)
    k.e("s_and_b32 s5, s2, 3")
    k.e("s_bfe_u32 s3, s2, 0x10002")
    k.e("s_lshl_b32 s3, s3, 3")
    k.e("s_bfe_u32 s4, s2, 0x30005")
    k.e("s_add_u32 s3, s3, s4")
    k.e("s_lshl_b32 s3, s3, 3")
    k.e("s_bfe_u32 s4, s2, 0x20003")
    k.e("s_lshr_b32 s6, s%d, 1" % S_W)
    k.e("s_and_b32 s7, s%d, 1" % S_W)
    k.e("s_lshl_b32 s28, s5, 1")
    k.e("s_add_u32 s28, s28, s6")
    k.srd(SA, P_WS, WS_H, SZ_H)
    k.srd(SB, P_W2, 0, 4608 * 576 * 2)
    k.e("s_mul_i32 s%d, s28, %d" % (S_BOFF, 576 * 1152))
    k.e("s_mul_i32 s29, s4, 288")
    k.e("s_add_u32 s%d, s%d, s29" % (S_BOFF, S_BOFF))
    k.e("s_mul_i32 s%d, s28, %d" % (S_AOFF, 18 * 1024))
    k.e("s_lshl_b32 s28, s7, 2")
    k.e("s_add_u32 s3, s3, s28")
    k.e("s_mul_i32 s28, s3, 147456")
    k.e("v_lshlrev_b32 v2, 4, v1")
    k.e("v_add_u32 v2, s28, v2")
    for i in range(4):
        k.e("v_add_u32 v%d, %d, v2" % (g.VA + i, i * 147456))
    gemm_setup_b(k, g, 1152, False)
    wf = None
    if fused:
        k.e("s_lshr_b32 s39, s3, 4")
        k.e("s_lshl_b32 s39, s39, 5")
        k.e("s_lshl_b32 s28, s5, 3")
        k.e("s_add_u32 s39, s39, s28")
        wf = lambda: (await_flags(k, F_H, 39, 8), k.stamp())
    gemm_main(k, g, 18, 1152, False, True, waitfn=wf)
    k.c("---- exchange halves through LDS, add, store f32 partial tile")
    k.srd(SO, P_WS, WS_P, NSLAB * SLAB)
    k.e("v_lshlrev_b32 v2, 4, v1")
    k.e("s_mul_i32 s28, s%d, 18432" % S_W)
    k.e("v_add_u32 v3, s28, v2")
    k.e("s_xor_b32 s29, s%d, 2" % S_W)
    k.e("s_mul_i32 s29, s29, 18432")
    k.e("v_add_u32 v4, s29, v2")
    k.e("s_lshl_b32 s28, s6, 1")
    k.e("s_add_u32 s28, s28, s3")
    k.e("s_lshl_b32 s28, s28, 2")
    k.e("s_add_u32 s28, s28, s4")
    k.e("s_mul_i32 s28, s28, 9216")
    k.e("s_mul_i32 s29, s5, %d" % SLAB)
    k.e("s_add_u32 s28, s28, s29")
    k.e("s_barrier")
    k.e("s_cmp_lg_u32 s6, 0")
    k.e("s_cbranch_scc1 k3_hi")
    for kh in (0, 1):
        if kh:
            k.label("k3_hi")
        give = [g.acc(mi, j) for mi in ((2, 3) if kh == 0 else (0, 1)) for j in range(9)]
        keep = [g.acc(mi, j) for mi in ((0, 1) if kh == 0 else (2, 3)) for j in range(9)]
        for n, a in enumerate(give):
            k.e("ds_write_b128 v3, %s offset:%d" % (vr(a, 4), n * 1024))
        k.e("s_waitcnt lgkmcnt(0)")
        k.e("s_barrier")
        for n, a in enumerate(give):
            k.e("ds_read_b128 %s, v4 offset:%d" % (vr(a, 4), n * 1024))
            if n >= 8:
                m = n - 8
                k.e("s_waitcnt lgkmcnt(8)")
                k3_fin(k, keep, give, m)
        for m in range(10, 18):
            k.e("s_waitcnt lgkmcnt(%d)" % (17 - m))
            k3_fin(k, keep, give, m)
        k.dump(2)
        if "t8" in sys.argv:
            k3_tail4(k, kh)
        elif "t4" in sys.argv:
            k3_tail(k, kh)
        else:
            k.e("s_endpgm")


def k3_tail(k, kh):
    k.vm = []
    k.lg = []
    k.e("s_lshr_b32 s3, s3, 3")
    k.e("s_lshl_b32 s39, s3, 2")
    k.e("s_add_u32 s39, s39, s4")
    k.e("s_lshl_b32 s39, s39, 2")
    k.e("s_add_u32 s38, s39, s5")
    if "tp0" in sys.argv:
        k.e("s_setprio 0")
    publish(k, F_P, 38)
    k.stamp()
    DYN = "td" in sys.argv
    T5 = "t5" in sys.argv
    g = G(2, 4, 1, 1, 4 if T5 else 3, AR=4 if DYN else 13, PAD=True)
    STR = g.NBUF * g.BUF
    XT = 0 if T5 else 2 * STR
    XO = g.BUF if T5 else 0
    SG = 32
    k.e("s_lshl_b32 s3, s3, 3")
    k.e("s_lshl_b32 s28, s5, 1")
    k.e("s_add_u32 s3, s3, s28")
    k.srd(SG, P_WS, WS_G, 8192)
    k.e("s_mul_i32 s40, s4, 288")
    k.e("s_and_b32 s41, s%d, 1" % S_W)
    k.e("s_mul_i32 s43, s41, %d" % (STR if T5 else 9216))
    k.e("s_add_u32 s41, s41, s3")
    k.e("v_lshlrev_b32 v10, 4, v1")
    k.e("s_add_u32 s43, s43, %d" % XT)
    k.e("v_add_u32 v15, s43, v10")
    k.e("s_lshl_b32 s42, s41, 4")
    k.e("v_and_b32 v11, 15, v1")
    k.e("v_add_u32 v11, s42, v11")
    k.e("v_lshrrev_b32 v12, 4, v1")
    k.e("v_lshlrev_b32 v12, 3, v12")
    k.e("v_lshlrev_b32 v13, 2, v11")
    k.vmem("buffer_load_dword v14, v13, s[%d:%d], 0 offen" % (SG, SG + 3), "g")
    if kh == 0:
        k.srd(SA, P_WS, WS_O, 128 * 24576)
        k.srd(SB, P_WO, 0, 576 * 576 * 2)
        k.srd(SO, P_OUT, 0, SZ_X)
        k.e("s_mul_i32 s%d, s%d, %d" % (S_BOFF, S_W, 288 * 1152))
        k.e("s_add_u32 s%d, s%d, s40" % (S_BOFF, S_BOFF))
        k.e("s_mul_i32 s%d, s%d, %d" % (S_AOFF, S_W, 12 * 1024))
        k.e("v_mul_u32_u24 v11, 1152, v11")
        k.e("v_add_u32 v11, v11, v12")
        k.e("s_mul_i32 s28, s3, 24576")
        k.e("v_add_u32 v%d, s28, v10" % g.VA)
        k.e("v_add_u32 v%d, 24576, v%d" % (g.VA + 1, g.VA))
        k.e("s_mul_i32 s28, s%d, %d" % (S_W, STR))
        k.e("s_add_u32 s28, s28, %d" % XO)
        k.e("v_add_u32 v13, s28, v10")
        k.e("s_xor_b32 s28, s%d, 1" % S_W)
        k.e("s_mul_i32 s28, s28, %d" % STR)
        k.e("s_add_u32 s28, s28, %d" % XO)
        k.e("v_add_u32 v12, s28, v10")
        gemm_setup_b(k, g, 1152, True)
        k.e("s_lshr_b32 s38, s3, 4")
        k.e("s_lshl_b32 s38, s38, 5")
        if DYN:
            S_REM, S_SEL, S_RDY, S_B0, S_A0 = 36, 37, 39, 93, 94
            k.e("s_mov_b32 s%d, s%d" % (S_B0, S_BOFF))
            k.e("s_mov_b32 s%d, s%d" % (S_A0, S_AOFF))
            k.e("s_mov_b32 s%d, 0x1111" % S_REM)
            nonce_get(k)
            k.e("s_lshl_b32 s28, s%d, 4" % S_W)
            k.e("s_add_u32 s28, s28, s38")
            k.e("s_lshl_b32 s28, s28, 2")
            k.e("s_add_u32 s28, s28, %d" % F_O)
            k.e("v_lshlrev_b32 v9, 2, v1")
            k.e("v_add_u32 v9, s28, v9")
            for r in range(72):
                k.e("v_mov_b32 v%d, 0" % (g.ACC + r))
            k.e("s_mov_b32 s%d, %d" % (S_SP, SPIN))

            def poll(mask, out):
                lp = k.newlabel("tp")
                d = k.newlabel("tpd")
                k.e("s_mov_b64 exec, 0xffff")
                k.e("s_mov_b32 s%d, %d" % (S_SP, SPIN))
                k.label(lp)
                k.e("buffer_load_dword v2, v9, s[%d:%d], 0 offen sc1" % (SF, SF + 3))
                k.e("s_waitcnt vmcnt(0)")
                k.e("v_cmp_eq_u32 vcc, s%d, v2" % S_NONCE)
                k.e("s_nop 1")
                k.e("s_mov_b32 s28, vcc_lo")
                k.e("s_lshr_b32 s29, s28, 1")
                k.e("s_and_b32 s28, s28, s29")
                k.e("s_lshr_b32 s29, s28, 2")
                k.e("s_and_b32 s28, s28, s29")
                k.e("s_and_b32 s%d, s28, s%d" % (out, mask))
                k.e("s_cbranch_scc1 %s" % d)
                k.e("s_mov_b32 s%d, s%d" % (out, mask))
                k.e("s_sub_u32 s%d, s%d, 1" % (S_SP, S_SP))
                k.e("s_cbranch_scc1 %s" % d)
                k.e("s_sleep %d" % int(opt("slp", 1)))
                k.e("s_branch %s" % lp)
                k.label(d)
                k.e("s_mov_b64 exec, -1")
            k.label("kt_loop")
            k.vm = []
            k.lg = []
            k.e("s_mov_b32 s%d, s%d" % (S_RDY, S_REM))
            k.e("s_bcnt1_i32_b32 s28, s%d" % S_REM)
            k.e("s_cmp_eq_u32 s28, 1")
            k.e("s_cbranch_scc1 kt_have")
            poll(S_REM, S_RDY)
            k.label("kt_have")
            k.e("s_ff1_i32_b32 s28, s%d" % S_RDY)
            k.e("s_lshl_b32 s%d, 1, s28" % S_SEL)
            k.e("s_mul_i32 s29, s28, %d" % (18 * 1152))
            k.e("s_add_u32 s%d, s%d, s29" % (S_BOFF, S_B0))
            k.e("s_mul_i32 s29, s28, 768")
            k.e("s_add_u32 s%d, s%d, s29" % (S_AOFF, S_A0))
            gemm_main(k, g, 3, 1152, True, True, waitfn=lambda: (poll(S_SEL, S_RDY), k.stamp()), zero=False)
            k.e("s_andn2_b32 s%d, s%d, s%d" % (S_REM, S_REM, S_SEL))
            k.e("s_cbranch_scc1 kt_loop")
        elif "t6" in sys.argv:
            S_REM = 36

            def loader():
                lp = k.newlabel("tl")
                go = k.newlabel("tlg")
                nonce_get(k)
                k.e("s_lshl_b32 s28, s%d, 4" % S_W)
                k.e("s_add_u32 s28, s28, s38")
                k.e("s_lshl_b32 s28, s28, 2")
                k.e("s_add_u32 s28, s28, %d" % F_O)
                k.e("v_lshlrev_b32 v3, 2, v1")
                k.e("v_add_u32 v3, s28, v3")
                k.e("s_mov_b32 s%d, 0x1111" % S_REM)
                k.e("s_mov_b32 s%d, %d" % (S_SP, SPIN))
                k.label(lp)
                k.e("s_mov_b64 exec, 0xffff")
                k.e("buffer_load_dword v2, v3, s[%d:%d], 0 offen sc1" % (SF, SF + 3))
                k.e("s_waitcnt vmcnt(0)")
                k.e("v_cmp_eq_u32 vcc, s%d, v2" % S_NONCE)
                k.e("s_mov_b64 exec, -1")
                k.e("s_nop 0")
                k.e("s_mov_b32 s28, vcc_lo")
                k.e("s_lshr_b32 s29, s28, 1")
                k.e("s_and_b32 s28, s28, s29")
                k.e("s_lshr_b32 s29, s28, 2")
                k.e("s_and_b32 s28, s28, s29")
                k.e("s_and_b32 s29, s28, s%d" % S_REM)
                k.e("s_cbranch_scc1 %s" % go)
                k.e("s_mov_b32 s29, s%d" % S_REM)
                k.e("s_sub_u32 s%d, s%d, 1" % (S_SP, S_SP))
                k.e("s_cbranch_scc1 %s" % go)
                k.e("s_sleep %d" % int(opt("slp", 1)))
                k.e("s_branch %s" % lp)
                k.label(go)
                for gr in range(4):
                    sk = k.newlabel("tls")
                    k.e("s_bitcmp1_b32 s29, %d" % (4 * gr))
                    k.e("s_cbranch_scc0 %s" % sk)
                    k.e("s_add_u32 s30, s%d, %d" % (S_AOFF, gr * 3072))
                    for ks in range(3):
                        for i in range(2):
                            k.e("buffer_load_dwordx4 %s, v%d, s[%d:%d], s30 offen offset:%d sc1" % (vr(g.a(3 * gr + ks, i), 4), g.VA + i, SA, SA + 3, ks * 1024))
                    k.label(sk)
                k.e("s_andn2_b32 s%d, s%d, s29" % (S_REM, S_REM))
                k.e("s_cbranch_scc1 %s" % lp)
                k.stamp()
                k.e("s_waitcnt vmcnt(0)")
                k.vm = []
            for r in range(72):
                k.e("v_mov_b32 v%d, 0" % (g.ACC + r))
            gemm_main(k, g, 12, 1152, True, True, waitfn=loader, aext=True, zero=False,
                      atchunk=(lambda c: k.e("s_barrier") if c == 9 else None) if T5 else None)
        else:
            gemm_main(k, g, 12, 1152, True, True, waitfn=lambda: (await_solo(k, F_O, 38, 32), k.stamp()),
                      atchunk=(lambda c: k.e("s_barrier") if c == 9 else None) if T5 else None)
        k.wait(vm='*')
        k.e("s_cmp_lg_u32 s%d, 0" % S_W)
        k.e("s_cbranch_scc1 kt_w1")
        T = 88
        for w in (0, 1):
            if w:
                k.label("kt_w1")
            for jj in range(9):
                k.e("ds_write_b128 v13, %s offset:%d" % (vr(g.acc(1 - w, jj), 4), jj * 1024))
            k.e("s_waitcnt lgkmcnt(0)")
            k.e("s_barrier")
            for jj in range(9):
                k.e("ds_read_b128 %s, v12 offset:%d" % (vr(g.acc(1 - w, jj), 4), jj * 1024))
            for jj in range(9):
                k.e("ds_read_b128 %s, v15 offset:%d" % (vr(T + 4 * jj, 4), jj * 1024))
            for jj in range(9):
                a = g.acc(w, jj)
                b = g.acc(1 - w, jj)
                k.e("s_waitcnt lgkmcnt(%d)" % min(15, 17 - jj))
                k.e("v_pk_add_f32 %s, %s, %s" % (vr(a, 2), vr(a, 2), vr(b, 2)))
                k.e("v_pk_add_f32 %s, %s, %s" % (vr(a + 2, 2), vr(a + 2, 2), vr(b + 2, 2)))
                rnd2(k, a, a + 1)
                rnd2(k, a + 2, a + 3)
                for r in range(4):
                    k.e("v_mul_f32 v%d, v14, v%d" % (a + r, a + r))
                rnd2(k, a, a + 1)
                rnd2(k, a + 2, a + 3)
            for jj in range(9):
                a = g.acc(w, jj)
                b = T + 4 * jj
                k.e("s_waitcnt lgkmcnt(%d)" % (8 - jj))
                k.e("v_pk_add_f32 %s, %s, %s" % (vr(a, 2), vr(a, 2), vr(b, 2)))
                k.e("v_pk_add_f32 %s, %s, %s" % (vr(a + 2, 2), vr(a + 2, 2), vr(b + 2, 2)))
                k.e("v_cvt_pk_bf16_f32 v%d, v%d, v%d" % (a, a, a + 1))
                k.e("v_cvt_pk_bf16_f32 v%d, v%d, v%d" % (a + 1, a + 2, a + 3))
                k.e("buffer_store_dwordx2 %s, v11, s[%d:%d], s40 offen offset:%d" % (vr(a, 2), SO, SO + 3, jj * 32))
            ns = k.nstamp
            k.dump(3)
            k.nstamp = ns
            k.e("s_endpgm")
        return
    SP = SA
    SL, BIAS = 16, 160
    k.srd(SP, P_WS, WS_P, NSLAB * SLAB)
    k.srd(SX, P_B2, 0, 1152)
    k.srd(SB, P_WO, 0, 576 * 576 * 2)
    for jj in range(9):
        k.e("buffer_load_dwordx2 %s, v12, s[%d:%d], s40 offen offset:%d" % (vr(BIAS + 2 * jj, 2), SX, SX + 3, jj * 32))
    k.c("pull this die's copy of Wo into its L2 (read only, results unused)")
    k.e("s_bfe_u32 s28, s2, 0x50003")
    k.e("s_lshl_b32 s28, s28, 1")
    k.e("s_and_b32 s29, s%d, 1" % S_W)
    k.e("s_add_u32 s28, s28, s29")
    k.e("s_lshl_b32 s28, s28, 10")
    for i in range(11):
        k.e("buffer_load_dwordx4 %s, v10, s[%d:%d], s28 offen" % (vr(SL, 4), SB, SB + 3))
        if i < 10:
            k.e("s_add_u32 s28, s28, 65536")
    await_solo(k, F_P, 39, 4)
    k.e("s_lshl_b32 s42, s41, 2")
    k.e("s_add_u32 s42, s42, s4")
    k.e("s_mul_i32 s42, s42, 9216")
    for n in range(36):
        sl, jj = divmod(n, 9)
        k.e("buffer_load_dwordx4 %s, v10, s[%d:%d], s42 offen offset:%d sc1%s" % (vr(SL + n * 4, 4), SP, SP + 3, (jj % 4) * 1024, " nt" if "tnt" in sys.argv else ""))
        if jj % 4 == 3:
            k.e("s_add_u32 s42, s42, 4096")
        if jj == 8:
            k.e("s_add_u32 s42, s42, %d" % (SLAB - 8192))
    k.e("v_sub_f32 v6, 1.0, v14")
    bf16_round(k, 6, 6, 6)
    k.e("s_waitcnt vmcnt(0)")
    BT = 180
    for jj in range(9):
        b = SL + jj * 4
        k.e("v_lshlrev_b32 v%d, 16, v%d" % (BT, BIAS + 2 * jj))
        k.e("v_and_b32 v%d, 0xffff0000, v%d" % (BT + 1, BIAS + 2 * jj))
        k.e("v_lshlrev_b32 v%d, 16, v%d" % (BT + 2, BIAS + 1 + 2 * jj))
        k.e("v_and_b32 v%d, 0xffff0000, v%d" % (BT + 3, BIAS + 1 + 2 * jj))
        for x, y in ((b, b + 36), (b + 72, b + 108), (b, b + 72)):
            for h in (0, 2):
                k.e("v_pk_add_f32 %s, %s, %s" % (vr(x + h, 2), vr(x + h, 2), vr(y + h, 2)))
        rnd2(k, b, b + 1)
        rnd2(k, b + 2, b + 3)
        for h in (0, 2):
            k.e("v_pk_add_f32 %s, %s, %s" % (vr(b + h, 2), vr(b + h, 2), vr(BT + h, 2)))
        rnd2(k, b, b + 1)
        rnd2(k, b + 2, b + 3)
        for r in range(4):
            k.e("v_mul_f32 v%d, v6, v%d" % (b + r, b + r))
        rnd2(k, b, b + 1)
        rnd2(k, b + 2, b + 3)
        if not T5:
            k.e("ds_write_b128 v15, %s offset:%d" % (vr(b, 4), jj * 1024))
    if T5:
        k.e("s_barrier")
        for jj in range(9):
            k.e("ds_write_b128 v15, %s offset:%d" % (vr(SL + jj * 4, 4), jj * 1024))
    k.e("s_waitcnt lgkmcnt(0)")
    k.e("s_barrier")
    k.e("s_endpgm")


def k3_tail4(k, kh):
    k.vm = []
    k.lg = []
    k.e("s_lshr_b32 s3, s3, 3")
    k.e("s_lshl_b32 s39, s3, 2")
    k.e("s_add_u32 s39, s39, s4")
    k.e("s_lshl_b32 s39, s39, 2")
    k.e("s_add_u32 s38, s39, s5")
    if "tpe" in sys.argv:
        k.e("s_setprio 0")
    publish(k, F_P, 38)
    k.srd(SF, P_DBG, 0, 256)
    k.e("buffer_load_dword v0, off, s[%d:%d], 0 sc1" % (SF, SF + 3))
    k.stamp()
    g = G(2, 7, 1, 1, 2, AR=11, PAD=True)
    R = g.A + 48
    CT = g.FREE
    assert CT == 238
    STR = g.NBUF * g.BUF
    SG, S_REM = 32, 36
    HALF = 8 * 288
    def loader(single):
        lp = k.newlabel("tl")
        go = k.newlabel("tlg")
        dn = k.newlabel("tld")
        if single or not kh:
            if not kh:
                nonce_fast(k)
            k.e("s_lshl_b32 s28, s%d, 3" % S_W)
            k.e("s_add_u32 s28, s28, s38")
            k.e("s_lshl_b32 s28, s28, 2")
            k.e("s_add_u32 s28, s28, %d" % F_O)
            k.e("v_lshlrev_b32 v3, 2, v1")
            k.e("v_add_u32 v3, s28, v3")
            k.e("s_mov_b32 s%d, 0x11" % S_REM)
            k.e("s_mov_b32 s%d, %d" % (S_SP, SPIN))
        else:
            k.e("s_cmp_eq_u32 s%d, 0" % S_REM)
            k.e("s_cbranch_scc1 %s" % dn)
        k.label(lp)
        k.e("s_mov_b64 exec, 0xff")
        k.e("buffer_load_dword v2, v3, s[%d:%d], 0 offen sc1" % (SF, SF + 3))
        k.e("s_waitcnt vmcnt(0)")
        k.e("v_cmp_eq_u32 vcc, s%d, v2" % S_NONCE)
        k.e("s_mov_b64 exec, -1")
        k.e("s_nop 0")
        k.e("s_mov_b32 s28, vcc_lo")
        k.e("s_lshr_b32 s29, s28, 1")
        k.e("s_and_b32 s28, s28, s29")
        k.e("s_lshr_b32 s29, s28, 2")
        k.e("s_and_b32 s28, s28, s29")
        k.e("s_and_b32 s29, s28, s%d" % S_REM)
        if not single:
            k.e("s_cbranch_scc1 %s" % go)
            k.e("s_mov_b32 s29, s%d" % S_REM)
            k.e("s_sub_u32 s%d, s%d, 1" % (S_SP, S_SP))
            k.e("s_cbranch_scc1 %s" % go)
            k.e("s_sleep %d" % int(opt("slp", 1)))
            k.e("s_branch %s" % lp)
            k.label(go)
        for gr in range(2):
            sk = k.newlabel("tls")
            k.e("s_bitcmp1_b32 s29, %d" % (4 * gr))
            k.e("s_cbranch_scc0 %s" % sk)
            k.e("s_add_u32 s30, s%d, %d" % (S_AOFF, gr * 3072))
            for ks in range(3):
                for i in range(2):
                    k.e("buffer_load_dwordx4 %s, v%d, s[%d:%d], s30 offen offset:%d sc1" % (vr(g.a(3 * gr + ks, i), 4), g.VA + i, SA, SA + 3, ks * 1024))
            k.label(sk)
        k.e("s_andn2_b32 s%d, s%d, s29" % (S_REM, S_REM))
        if not single:
            k.e("s_cbranch_scc1 %s" % lp)
        k.label(dn)

    k.e("s_lshl_b32 s3, s3, 3")
    k.e("s_lshl_b32 s28, s5, 1")
    k.e("s_add_u32 s3, s3, s28")
    k.e("s_mul_i32 s40, s4, 288")
    k.e("v_lshlrev_b32 v10, 4, v1")
    k.srd(SB, P_WO, 0, 576 * 576 * 2)
    k.e("s_mul_i32 s%d, s%d, %d" % (S_BOFF, S_W, 144 * 1152))
    k.e("s_add_u32 s%d, s%d, s40" % (S_BOFF, S_BOFF))
    k.e("s_mul_i32 s%d, s%d, %d" % (S_AOFF, S_W, 6 * 1024))
    k.e("s_mul_i32 s28, s3, 24576")
    k.e("v_add_u32 v%d, s28, v10" % g.VA)
    k.e("v_add_u32 v%d, 24576, v%d" % (g.VA + 1, g.VA))
    k.e("s_mul_i32 s28, s%d, %d" % (S_W, STR))
    k.e("v_add_u32 v13, s28, v10")
    gemm_setup_b(k, g, 1152, True)
    for c in (0, 1):
        for op in gemm_dma_ops(k, g, c, 1152):
            op()
    if "tp0" in sys.argv:
        k.e("s_setprio 0")
    k.e("s_lshr_b32 s38, s3, 4")
    k.e("s_lshl_b32 s38, s38, 5")
    if kh:
        SP = SA
        SL, BIAS = 16, 238
        Q = [16 + 4 * i for i in range(18)] + [136 + 4 * i for i in range(18)]
        k.srd(SG, P_WS, WS_G, 8192)
        k.e("s_and_b32 s41, s%d, 1" % S_W)
        k.e("s_add_u32 s41, s41, s3")
        k.e("s_lshl_b32 s42, s41, 4")
        k.e("v_and_b32 v11, 15, v1")
        k.e("v_add_u32 v11, s42, v11")
        k.e("v_lshrrev_b32 v12, 4, v1")
        k.e("v_lshlrev_b32 v12, 3, v12")
        k.e("v_lshlrev_b32 v15, 2, v11")
        k.e("buffer_load_dword v14, v15, s[%d:%d], 0 offen" % (SG, SG + 3))
        k.e("v_mul_u32_u24 v11, 1152, v11")
        k.e("v_add_u32 v11, v11, v12")
        k.srd(SP, P_WS, WS_P, NSLAB * SLAB)
        k.srd(SX, P_B2, 0, 1152)
        k.srd(SO, P_OUT, 0, SZ_X)
        for jj in range(9):
            k.e("buffer_load_dwordx2 %s, v12, s[%d:%d], s40 offen offset:%d" % (vr(BIAS + 2 * jj, 2), SX, SX + 3, jj * 32))
        k.c("pull this die's copy of Wo into its L2 (read only, results unused)")
        k.e("s_bfe_u32 s28, s2, 0x50003")
        k.e("s_lshl_b32 s28, s28, 1")
        k.e("s_and_b32 s29, s%d, 1" % S_W)
        k.e("s_add_u32 s28, s28, s29")
        k.e("s_lshl_b32 s28, s28, 10")
        for i in range(11):
            k.e("buffer_load_dwordx4 %s, v10, s[%d:%d], s28 offen" % (vr(SL, 4), SB, SB + 3))
            if i < 10:
                k.e("s_add_u32 s28, s28, 65536")
        await_solo(k, F_P, 39, 4, True)
        k.e("s_lshl_b32 s42, s41, 2")
        k.e("s_add_u32 s42, s42, s4")
        k.e("s_mul_i32 s42, s42, 9216")
        for n in range(36):
            sl, jj = divmod(n, 9)
            k.e("buffer_load_dwordx4 %s, v10, s[%d:%d], s42 offen offset:%d sc1" % (vr(Q[4 * jj + sl], 4), SP, SP + 3, (jj % 4) * 1024))
            if jj % 4 == 3:
                k.e("s_add_u32 s42, s42, 4096")
            if jj == 8:
                k.e("s_add_u32 s42, s42, %d" % (SLAB - 8192))
        k.e("v_sub_f32 v6, 1.0, v14")
        bf16_round(k, 6, 6, 6)
        k.srd(SA, P_WS, WS_O, 128 * 24576)
        loader(True)
        k.vm = []
        for jj in range(9):
            b, b1, b2, b3 = Q[4 * jj:4 * jj + 4]
            k.e("v_lshlrev_b32 v4, 16, v%d" % (BIAS + 2 * jj))
            k.e("v_and_b32 v5, 0xffff0000, v%d" % (BIAS + 2 * jj))
            k.e("v_lshlrev_b32 v8, 16, v%d" % (BIAS + 1 + 2 * jj))
            k.e("v_and_b32 v9, 0xffff0000, v%d" % (BIAS + 1 + 2 * jj))
            for x, y in ((b, b1), (b2, b3), (b, b2)):
                for h in (0, 2):
                    k.e("v_pk_add_f32 %s, %s, %s" % (vr(x + h, 2), vr(x + h, 2), vr(y + h, 2)))
            rnd2(k, b, b + 1)
            rnd2(k, b + 2, b + 3)
            k.e("v_pk_add_f32 %s, %s, v[4:5]" % (vr(b, 2), vr(b, 2)))
            k.e("v_pk_add_f32 %s, %s, v[8:9]" % (vr(b + 2, 2), vr(b + 2, 2)))
            rnd2(k, b, b + 1)
            rnd2(k, b + 2, b + 3)
            for r in range(4):
                k.e("v_mul_f32 v%d, v6, v%d" % (b + r, b + r))
            k.e("v_cvt_pk_bf16_f32 v%d, v%d, v%d" % (CT + 2 * jj, b, b + 1))
            k.e("v_cvt_pk_bf16_f32 v%d, v%d, v%d" % (CT + 2 * jj + 1, b + 2, b + 3))
    else:
        k.srd(SA, P_WS, WS_O, 128 * 24576)
        k.wait(vm='*')
    k.c("first weight chunk goes to registers, its buffer takes the third")
    for j in range(9):
        k.e("ds_read_b64_tr_b16 %s, v%d offset:%d" % (vr(R + 4 * j, 2), g.VL, j * 32))
        k.e("ds_read_b64_tr_b16 %s, v%d offset:%d" % (vr(R + 4 * j + 2, 2), g.VL, j * 32 + HALF))
    for r in range(72):
        k.e("v_mov_b32 v%d, 0" % (g.ACC + r))
    k.e("s_waitcnt lgkmcnt(0)")
    for op in gemm_dma_ops(k, g, 2, 1152):
        op()
    k.stamp()
    loader(False)
    k.stamp()
    tiles = [(c, j) for c in (1, 2, 0, 3, 4, 5) for j in range(9)]
    LA = g.LA

    def bread(n):
        c, j = tiles[n]
        if c == 0:
            return
        if j == 0 and c >= 3:
            while q:
                q.pop(0)()
            k.wait(vm=("D", c))
        off = (c % 2) * g.BUF + j * 32
        b = g.b(n)
        k.ds("ds_read_b64_tr_b16 %s, v%d offset:%d" % (vr(b, 2), g.VL, off), ("B", n))
        k.ds("ds_read_b64_tr_b16 %s, v%d offset:%d" % (vr(b + 2, 2), g.VL, off + HALF), ("B", n))
    q = []
    k.vm = []
    k.lg = []
    for n in range(LA):
        bread(n)
    k.e("s_waitcnt vmcnt(0)")
    k.stamp()
    for n, (c, j) in enumerate(tiles):
        if n + LA < len(tiles):
            bread(n + LA)
        if q:
            q.pop(0)()
        if c:
            k.wait(lg=("B", n))
        b = g.b(n) if c else R + 4 * j
        for i in range(2):
            a = g.acc(i, j)
            k.e("v_mfma_f32_16x16x32_bf16 %s, %s, %s, %s" % (vr(a, 4), vr(b, 4), vr(g.a(c, i), 4), vr(a, 4)))
        if j == 8 and 1 <= c <= 3:
            q += gemm_dma_ops(k, g, c + 2, 1152)
    assert not q
    k.e("s_nop 7")
    k.e("s_nop 7")
    k.stamp()
    if kh == 0:
        for n in range(18):
            k.e("ds_write_b128 v13, %s offset:%d" % (vr(g.ACC + 4 * n, 4), n * 1024))
        k.e("s_waitcnt lgkmcnt(0)")
        k.e("s_barrier")
        k.dump(3)
        k.e("s_endpgm")
        return
    k.e("s_cmp_lg_u32 s%d, 2" % S_W)
    k.e("s_cbranch_scc1 kt_w3")
    T = 88
    for w in (0, 1):
        if w:
            k.label("kt_w3")
        for jj in range(9):
            k.e("ds_write_b128 v13, %s offset:%d" % (vr(g.acc(1 - w, jj), 4), (1 - w) * 9216 + jj * 1024))
        k.e("s_waitcnt lgkmcnt(0)")
        k.e("s_barrier")
        for jj in range(9):
            for n, src in enumerate((0, 1, 3 - w)):
                k.e("ds_read_b128 %s, v10 offset:%d" % (vr(T + 12 * jj + 4 * n, 4), src * STR + w * 9216 + jj * 1024))
        for jj in range(9):
            a = g.acc(w, jj)
            p = T + 12 * jj
            k.e("s_waitcnt lgkmcnt(%d)" % min(15, 24 - 3 * jj))
            for h in (0, 2):
                k.e("v_pk_add_f32 %s, %s, %s" % (vr(p + h, 2), vr(p + h, 2), vr(p + 4 + h, 2)))
                k.e("v_pk_add_f32 %s, %s, %s" % (vr(a + h, 2), vr(a + h, 2), vr(p + 8 + h, 2)))
            for h in (0, 2):
                k.e("v_pk_add_f32 %s, %s, %s" % (vr(a + h, 2), vr(a + h, 2), vr(p + h, 2)))
            rnd2(k, a, a + 1)
            rnd2(k, a + 2, a + 3)
            for r in range(4):
                k.e("v_mul_f32 v%d, v14, v%d" % (a + r, a + r))
            rnd2(k, a, a + 1)
            rnd2(k, a + 2, a + 3)
            k.e("v_lshlrev_b32 v%d, 16, v%d" % (p, CT + 2 * jj))
            k.e("v_and_b32 v%d, 0xffff0000, v%d" % (p + 1, CT + 2 * jj))
            k.e("v_lshlrev_b32 v%d, 16, v%d" % (p + 2, CT + 2 * jj + 1))
            k.e("v_and_b32 v%d, 0xffff0000, v%d" % (p + 3, CT + 2 * jj + 1))
            for h in (0, 2):
                k.e("v_pk_add_f32 %s, %s, %s" % (vr(a + h, 2), vr(a + h, 2), vr(p + h, 2)))
            k.e("v_cvt_pk_bf16_f32 v%d, v%d, v%d" % (a, a, a + 1))
            k.e("v_cvt_pk_bf16_f32 v%d, v%d, v%d" % (a + 1, a + 2, a + 3))
            k.e("buffer_store_dwordx2 %s, v11, s[%d:%d], s40 offen offset:%d" % (vr(a, 2), SO, SO + 3, jj * 32))
        k.e("s_endpgm")


def k3():
    return mixed_kernel("k3", 1, 2, k3_gemm2, 236, 73728)


def k23():
    k = K("k2")
    load_args(k)
    prologue_ids(k)
    k.e("s_cmp_ge_u32 s2, 512")
    k.e("s_cbranch_scc1 k2_exit")
    k.e("s_waitcnt lgkmcnt(0)")
    nonce_write(k)
    k.e("s_cmp_lt_u32 s2, 256")
    k.e("s_cbranch_scc1 k2_attn")
    k.priok = None
    if "gp" in sys.argv:
        k.e("s_setprio 3")
    k2_gemm1(k, True)
    k.priok = int(opt("g2p", -1))
    k3_gemm2(k, True)
    k.label("k2_attn")
    k.vm = []
    k.lg = []
    k.nstamp = 1
    if "a1" in sys.argv:
        attn(k, 0, 1, "k2_attn2")
        k.label("k2_attn2")
        k.e("s_barrier")
        attn(k, 1, 2)
    else:
        attn2(k, 1)
    k.label("k2_exit")
    k.e("s_endpgm")
    return k, 256 if "t8" in sys.argv else 252, 73728, 512


def k3_fin(k, keep, give, m):
    a, b = keep[m], give[m]
    k.e("v_pk_add_f32 %s, %s, %s" % (vr(a, 2), vr(a, 2), vr(b, 2)))
    k.e("v_pk_add_f32 %s, %s, %s" % (vr(a + 2, 2), vr(a + 2, 2), vr(b + 2, 2)))
    j = m % 9
    k.e("buffer_store_dwordx4 %s, v2, s[%d:%d], s28 offen offset:%d%s" % (vr(a, 4), SO, SO + 3, (j % 4) * 1024, " sc1"))
    if j % 4 == 3:
        k.e("s_add_u32 s28, s28, 4096")
    if j == 8:
        k.e("s_add_u32 s28, s28, %d" % (36864 - 8192))


def rnd2(k, x, y):
    k.e("v_cvt_pk_bf16_f32 v7, v%d, v%d" % (x, y))
    k.e("v_lshlrev_b32 v%d, 16, v7" % x)
    k.e("v_and_b32 v%d, 0xffff0000, v7" % y)


def k4():
    k = K("k4")
    load_args(k)
    prologue_ids(k)
    k.e("s_cmp_ge_u32 s2, 256")
    k.e("s_cbranch_scc1 k4_exit")
    k.e("s_waitcnt lgkmcnt(0)")
    g = G(2, 4, 1, 1, 4, AR=int(opt("oar", 3)))
    XCH = 8 * g.BUF
    SG = 36
    k.e("s_and_b32 s4, s2, 3")
    k.e("s_lshr_b32 s3, s2, 2")
    k.e("s_lshl_b32 s3, s3, 1")
    k.srd(SG, P_WS, WS_G, 8192)
    k.e("s_mul_i32 s40, s4, 288")
    k.e("s_and_b32 s41, s%d, 1" % S_W)
    k.e("s_mul_i32 s43, s41, %d" % (STR if T5 else 9216))
    k.e("s_add_u32 s41, s41, s3")
    k.e("v_lshlrev_b32 v10, 4, v1")
    k.e("s_add_u32 s43, s43, %d" % XCH)
    k.e("v_add_u32 v15, s43, v10")
    k.e("s_lshl_b32 s42, s41, 4")
    k.e("v_and_b32 v11, 15, v1")
    k.e("v_add_u32 v11, s42, v11")
    k.e("v_lshrrev_b32 v12, 4, v1")
    k.e("v_lshlrev_b32 v12, 3, v12")
    k.e("v_lshlrev_b32 v13, 2, v11")
    k.vmem("buffer_load_dword v14, v13, s[%d:%d], 0 offen" % (SG, SG + 3), "g")
    k.e("s_cmp_ge_u32 s%d, 2" % S_W)
    k.e("s_cbranch_scc1 k4_help")
    k.srd(SA, P_WS, WS_O, SZ_X)
    k.srd(SB, P_WO, 0, 576 * 576 * 2)
    k.srd(SO, P_OUT, 0, SZ_X)
    k.e("s_mul_i32 s%d, s%d, %d" % (S_BOFF, S_W, 288 * 1152))
    k.e("s_add_u32 s%d, s%d, s40" % (S_BOFF, S_BOFF))
    k.e("s_mul_i32 s%d, s%d, %d" % (S_AOFF, S_W, 9 * 1024))
    k.e("v_mul_u32_u24 v11, 1152, v11")
    k.e("v_add_u32 v11, v11, v12")
    k.e("s_mul_i32 s28, s3, 18432")
    k.e("v_add_u32 v%d, s28, v10" % g.VA)
    k.e("v_add_u32 v%d, 18432, v%d" % (g.VA + 1, g.VA))
    k.e("s_xor_b32 s28, s%d, 1" % S_W)
    k.e("s_mul_i32 s28, s28, 9216")
    k.e("s_add_u32 s28, s28, %d" % XCH)
    k.e("v_add_u32 v13, s28, v10")
    gemm_setup_b(k, g, 1152, True)
    if "k4nog" in sys.argv:
        k.e("s_barrier")
        k.stamp()
    else:
        gemm_main(k, g, 9, 1152, True, True, pre=lambda: k.e("s_barrier"))
    k.wait(vm='*')
    k.e("s_cmp_lg_u32 s%d, 0" % S_W)
    k.e("s_cbranch_scc1 k4_w1")
    T = 88
    for w in (0, 1):
        if w:
            k.label("k4_w1")
        for jj in range(9):
            k.e("ds_write_b128 v13, %s offset:%d" % (vr(g.acc(1 - w, jj), 4), 18432 + jj * 1024))
        k.e("s_waitcnt lgkmcnt(0)")
        k.e("s_barrier")
        for jj in range(9):
            k.e("ds_read_b128 %s, v15 offset:%d" % (vr(g.acc(1 - w, jj), 4), 18432 + jj * 1024))
        for jj in range(9):
            k.e("ds_read_b128 %s, v15 offset:%d" % (vr(T + 4 * jj, 4), jj * 1024))
        for jj in range(9):
            a = g.acc(w, jj)
            b = g.acc(1 - w, jj)
            k.e("s_waitcnt lgkmcnt(%d)" % min(15, 17 - jj))
            k.e("v_pk_add_f32 %s, %s, %s" % (vr(a, 2), vr(a, 2), vr(b, 2)))
            k.e("v_pk_add_f32 %s, %s, %s" % (vr(a + 2, 2), vr(a + 2, 2), vr(b + 2, 2)))
            rnd2(k, a, a + 1)
            rnd2(k, a + 2, a + 3)
            for r in range(4):
                k.e("v_mul_f32 v%d, v14, v%d" % (a + r, a + r))
            rnd2(k, a, a + 1)
            rnd2(k, a + 2, a + 3)
        for jj in range(9):
            a = g.acc(w, jj)
            b = T + 4 * jj
            k.e("s_waitcnt lgkmcnt(%d)" % (8 - jj))
            k.e("v_pk_add_f32 %s, %s, %s" % (vr(a, 2), vr(a, 2), vr(b, 2)))
            k.e("v_pk_add_f32 %s, %s, %s" % (vr(a + 2, 2), vr(a + 2, 2), vr(b + 2, 2)))
            k.e("v_cvt_pk_bf16_f32 v%d, v%d, v%d" % (a, a, a + 1))
            k.e("v_cvt_pk_bf16_f32 v%d, v%d, v%d" % (a + 1, a + 2, a + 3))
            k.e("buffer_store_dwordx2 %s, v11, s[%d:%d], s40 offen offset:%d" % (vr(a, 2), SO, SO + 3, jj * 32))
        k.dump(3)
        k.e("s_endpgm")
    k.label("k4_help")
    k.vm = []
    k.lg = []
    SP = 32
    SL, BIAS = 16, 160
    k.srd(SP, P_WS, WS_P, NSLAB * SLAB)
    k.srd(SX, P_B2, 0, 1152)
    k.e("s_lshl_b32 s42, s41, 2")
    k.e("s_add_u32 s42, s42, s4")
    k.e("s_mul_i32 s42, s42, 9216")
    k.e("s_barrier")
    for n in range(36 if "k4nos" not in sys.argv else 0):
        sl, jj = divmod(n, 9)
        k.e("buffer_load_dwordx4 %s, v10, s[%d:%d], s42 offen offset:%d%s" % (vr(SL + n * 4, 4), SP, SP + 3, (jj % 4) * 1024, pol("pl")))
        if jj % 4 == 3:
            k.e("s_add_u32 s42, s42, 4096")
        if jj == 8:
            k.e("s_add_u32 s42, s42, %d" % (SLAB - 8192))
    for jj in range(9):
        k.e("buffer_load_dwordx2 %s, v12, s[%d:%d], s40 offen offset:%d" % (vr(BIAS + 2 * jj, 2), SX, SX + 3, jj * 32))
    k.e("s_waitcnt vmcnt(0)")
    k.e("v_sub_f32 v6, 1.0, v14")
    bf16_round(k, 6, 6, 6)
    BT = 180
    for jj in range(9):
        b = SL + jj * 4
        k.e("v_lshlrev_b32 v%d, 16, v%d" % (BT, BIAS + 2 * jj))
        k.e("v_and_b32 v%d, 0xffff0000, v%d" % (BT + 1, BIAS + 2 * jj))
        k.e("v_lshlrev_b32 v%d, 16, v%d" % (BT + 2, BIAS + 1 + 2 * jj))
        k.e("v_and_b32 v%d, 0xffff0000, v%d" % (BT + 3, BIAS + 1 + 2 * jj))
        for x, y in ((b, b + 36), (b + 72, b + 108), (b, b + 72)):
            for h in (0, 2):
                k.e("v_pk_add_f32 %s, %s, %s" % (vr(x + h, 2), vr(x + h, 2), vr(y + h, 2)))
        rnd2(k, b, b + 1)
        rnd2(k, b + 2, b + 3)
        for h in (0, 2):
            k.e("v_pk_add_f32 %s, %s, %s" % (vr(b + h, 2), vr(b + h, 2), vr(BT + h, 2)))
        rnd2(k, b, b + 1)
        rnd2(k, b + 2, b + 3)
        for r in range(4):
            k.e("v_mul_f32 v%d, v6, v%d" % (b + r, b + r))
        rnd2(k, b, b + 1)
        rnd2(k, b + 2, b + 3)
        k.e("ds_write_b128 v15, %s offset:%d" % (vr(b, 4), jj * 1024))
    k.e("s_waitcnt lgkmcnt(0)")
    k.e("s_barrier")
    k.label("k4_exit")
    k.e("s_endpgm")
    return k, 184, XCH + 36864, 256


def emit(kernels):
    out = []
    hdr = open("cdna_kernels/%s.s.ref" % NAME).read().split("\n")
    for l in hdr:
        if l.startswith("; @launch") or l.startswith("; Override") or l.startswith("; grid="):
            continue
        if l.startswith(";"):
            out.append(l)
    for k, nv, lds, nwg in kernels:
        out.append("; @launch kernel=%s_kernel grid=(%d,1,1) block=(%d,1,1) lds=%d" % (k.name, nwg, k.block, lds))
    out.append('.amdgcn_target "amdgcn-amd-amdhsa--gfx950"')
    out.append(".text")
    for k, nv, lds, nwg in kernels:
        out.append(".globl %s_kernel" % k.name)
        out.append(".p2align 8")
        out.append(".type %s_kernel,@function" % k.name)
        out.append("%s_kernel:" % k.name)
        out += k.L
    out.append('.section .rodata,"a"')
    for k, nv, lds, nwg in kernels:
        out.append(".p2align 6")
        out.append(".amdhsa_kernel %s_kernel" % k.name)
        out.append("  .amdhsa_next_free_vgpr %d" % nv)
        out.append("  .amdhsa_next_free_sgpr 102")
        out.append("  .amdhsa_accum_offset %d" % ((nv + 3) // 4 * 4))
        out.append("  .amdhsa_group_segment_fixed_size 0")
        out.append("  .amdhsa_kernarg_size 96")
        out.append("  .amdhsa_user_sgpr_count 2")
        out.append("  .amdhsa_user_sgpr_kernarg_segment_ptr 1")
        out.append("  .amdhsa_system_sgpr_workgroup_id_x 1")
        out.append(".end_amdhsa_kernel")
    return "\n".join(out) + "\n"


def k123():
    k = K("k2")
    load_args(k)
    prologue_ids(k)
    k.e("s_cmp_ge_u32 s2, 512")
    k.e("s_cbranch_scc1 k2_exit")
    k.e("s_waitcnt lgkmcnt(0)")
    nonce_write(k)
    k.e("s_cmp_ge_u32 s2, 256")
    k.e("s_cbranch_scc1 k2_g0")
    k.e("s_mov_b32 s3, s2")
    k.e("s_cmp_lt_u32 s2, 192")
    k.e("s_cbranch_scc1 k2_q")
    k.e("s_sub_u32 s3, s2, 192")
    k1_ln(k, True)
    k.label("k2_q")
    if "qp" in sys.argv:
        k.e("s_setprio 3")
    qkv_tile(k)
    k.dump(0)
    if "qp" in sys.argv:
        k.e("s_setprio 0")
    k.label("k2_attn")
    k.vm = []
    k.lg = []
    if "a1" in sys.argv:
        attn(k, 0, 1, "k2_attn2", wait=True)
        k.label("k2_attn2")
        k.e("s_barrier")
        attn(k, 1, 2)
    else:
        attn2(k, 1, wait=True)
    k.label("k2_g0")
    k.e("s_cmp_lg_u32 s%d, 0" % S_W)
    k.e("s_cbranch_scc1 k2_g")
    nonce_get(k)
    k.label("k2_g")
    k.vm = []
    k.lg = []
    k.nstamp = 1
    k.priok = None
    k2_gemm1(k, 2)
    k3_gemm2(k, True)
    k.label("k2_exit")
    k.e("s_endpgm")
    return k, 256 if "t8" in sys.argv else 252, 73728, 512


def klist():
    if "old" in sys.argv:
        return [k1(), k2(), k3(), k4()]
    if "t4" in sys.argv:
        return [k1(), k23()]
    if "s1" in sys.argv:
        return [k1(), k23(), k4()]
    return [k123(), k4()]


if __name__ == "__main__":
    if "diag" in sys.argv:
        DIAG = True
        open("diag%s.s" % "".join(a.replace("=", "").replace("+", "") for a in sys.argv[1:] if a != "diag"), "w").write(emit(klist()))
        sys.exit(0)
    ks = klist()
    open("cdna_kernels/%s.s" % NAME, "w").write(emit(ks))
    print("written")
```

```python
import math, struct, sys

NAME = "gated_mix__softmax_full_mha__mixer_channel_mlp__prompt"

def f32(x):
    return "0x%08x" % struct.unpack("<I", struct.pack("<f", x))[0]

WS_Y = 0x0
WS_G = 0x240000
WS_Q = 0x400000
WS_KV = 0x800000
WS_H = 0x1000000
WS_O = 0x2400000
WS_P = 0x2800000
WS_F = 0x300000
F_H, F_QKV, F_LN, F_O, F_P = 0x0, 0x1000, 0x2000, 0x3000, 0x4000
WS_DIAG = 0x6000000
DIAG = False
SLAB = 2048 * 576 * 4
SZ_X = 2048 * 576 * 2
SZ_H = 2048 * 4608 * 2


class K:
    def __init__(self, name):
        self.name = name
        self.L = []
        self.vm = []
        self.lg = []
        self.nlabel = 0
        self.nstamp = 0
        self.block = 256

    def e(self, s):
        self.L.append("    " + s)

    def c(self, s):
        self.L.append("    ; " + s)

    def label(self, l):
        self.L.append(l + ":")

    def newlabel(self, p="L"):
        self.nlabel += 1
        return "%s_%s_%d" % (self.name[:6], p, self.nlabel)

    def vmem(self, s, tag=None):
        self.e(s)
        self.vm.append(tag)

    def ds(self, s, tag=None):
        self.e(s)
        self.lg.append(tag)

    def wait(self, vm=None, lg=None):
        parts = []
        if vm is not None:
            if vm == '*':
                n = 0
            else:
                idx = [i for i, t in enumerate(self.vm) if t == vm]
                n = len(self.vm) - 1 - idx[-1] if idx else None
            if n is not None:
                assert n <= 63
                parts.append("vmcnt(%d)" % n)
                self.vm = self.vm[len(self.vm) - n:] if n else []
        if lg is not None:
            if lg == '*':
                n = 0
            else:
                idx = [i for i, t in enumerate(self.lg) if t == lg]
                n = len(self.lg) - 1 - idx[-1] if idx else None
            if n is not None:
                assert n <= 15
                parts.append("lgkmcnt(%d)" % n)
                self.lg = self.lg[len(self.lg) - n:] if n else []
        if parts:
            self.e("s_waitcnt " + " ".join(parts))

    def stamp(self):
        if not DIAG:
            return
        i = self.nstamp
        self.nstamp += 1
        assert i < 8
        self.e("s_waitcnt lgkmcnt(0)")
        self.e("s_memtime s[%d:%d]" % (44 + 2 * i, 45 + 2 * i))
        if i == 0:
            self.e("s_memrealtime s[60:61]")
        self.e("s_waitcnt lgkmcnt(0)")
        self.lg = []

    def dump(self, kidx, wave=0):
        if not DIAG:
            return
        self.stamp()
        self.e("s_memrealtime s[62:63]")
        self.e("s_waitcnt lgkmcnt(0)")
        l = self.newlabel("nd")
        self.e("s_cmp_lg_u32 s%d, %d" % (S_W, wave))
        self.e("s_cbranch_scc1 %s" % l)
        self.srd(88, P_WS, WS_DIAG + kidx * 65536, 65536)
        self.e("s_lshl_b32 s92, s2, 6")
        self.e("v_mov_b32 v2, s92")
        for i in range(self.nstamp):
            self.e("v_mov_b32 v3, s%d" % (44 + 2 * i))
            self.e("buffer_store_dword v3, v2, s[88:91], 0 offen offset:%d" % (4 * i))
        for i in (0, 1):
            self.e("v_mov_b32 v3, s%d" % (60 + 2 * i))
            self.e("buffer_store_dword v3, v2, s[88:91], 0 offen offset:%d" % (56 + 4 * i))
        self.label(l)
        self.nstamp = 1

    def sel(self, d, a, b):
        self.e("s_mov_b32 s%d, %s" % (d, b))
        self.e("s_cmov_b32 s%d, %s" % (d, a))

    def srd(self, d, ptr, off, size):
        if off:
            self.e("s_add_u32 s%d, s%d, 0x%x" % (d, ptr, off))
            self.e("s_addc_u32 s%d, s%d, 0" % (d + 1, ptr + 1))
        else:
            self.e("s_mov_b32 s%d, s%d" % (d, ptr))
            self.e("s_mov_b32 s%d, s%d" % (d + 1, ptr + 1))
        self.e("s_mov_b32 s%d, 0x%x" % (d + 2, size))
        self.e("s_mov_b32 s%d, 0x00020000" % (d + 3))


def pol(tag):
    return "".join(" " + f.split("=")[1].replace("+", " ") for f in sys.argv if f.startswith(tag + "="))


def opt(name, default):
    for f in sys.argv:
        if f.startswith(name + "="):
            return f.split("=")[1]
    return default


def vr(a, n=1):
    return "v%d" % a if n == 1 else "v[%d:%d]" % (a, a + n - 1)


def sr(a, n=1):
    return "s%d" % a if n == 1 else "s[%d:%d]" % (a, a + n - 1)


P_X, P_WQKV, P_WO, P_BX, P_W1, P_B1, P_W2, P_B2, P_GW, P_OUT, P_DBG, P_WS = [64 + 2 * i for i in range(12)]


def load_args(k):
    k.e("s_load_dwordx8 s[64:71], s[0:1], 0")
    k.e("s_load_dwordx8 s[72:79], s[0:1], 32")
    k.e("s_load_dwordx8 s[80:87], s[0:1], 64")


SF, S_NONCE, S_SP = 96, 100, 101
SPIN = 1 << 18


def nonce_write(k):
    l = k.newlabel("nw")
    k.e("s_or_b32 s28, s2, s%d" % S_W)
    k.e("s_cmp_lg_u32 s28, 0")
    k.e("s_cbranch_scc1 %s" % l)
    k.e("s_memrealtime s[28:29]")
    k.srd(SF, P_DBG, 0, 256)
    k.e("s_waitcnt lgkmcnt(0)")
    k.e("s_or_b32 s28, s28, 1")
    k.e("v_mov_b32 v2, s28")
    k.e("v_mov_b32 v3, 0")
    k.e("s_mov_b64 exec, 1")
    k.e("buffer_store_dword v2, v3, s[%d:%d], 0 offen sc1" % (SF, SF + 3))
    k.e("s_mov_b64 exec, -1")
    k.label(l)


def nonce_get(k):
    l = k.newlabel("ng")
    d = k.newlabel("ngd")
    k.srd(SF, P_DBG, 0, 256)
    k.e("v_mov_b32 v3, 0")
    k.e("s_mov_b32 s%d, %d" % (S_SP, SPIN))
    k.label(l)
    k.e("buffer_load_dword v2, v3, s[%d:%d], 0 offen sc1" % (SF, SF + 3))
    k.e("s_waitcnt vmcnt(0)")
    k.e("v_readfirstlane_b32 s%d, v2" % S_NONCE)
    k.e("s_cmp_lg_u32 s%d, 0" % S_NONCE)
    k.e("s_cbranch_scc1 %s" % d)
    k.e("s_sub_u32 s%d, s%d, 1" % (S_SP, S_SP))
    k.e("s_cbranch_scc1 %s" % d)
    k.e("s_sleep 1")
    k.e("s_branch %s" % l)
    k.label(d)
    k.srd(SF, P_WS, WS_F, 0x10000)


def nonce_fast(k):
    sl = k.newlabel("nfs")
    d = k.newlabel("nfd")
    k.e("s_waitcnt vmcnt(39)")
    k.e("v_readfirstlane_b32 s95, v0")
    k.e("s_nop 3")
    k.e("s_cmp_eq_u32 s95, 0")
    k.e("s_cbranch_scc1 %s" % sl)
    k.e("s_mov_b32 s%d, s95" % S_NONCE)
    k.srd(SF, P_WS, WS_F, 0x10000)
    k.e("s_branch %s" % d)
    k.label(sl)
    nonce_get(k)
    k.label(d)


def publish(k, base, s_idx, first=False):
    k.e("s_waitcnt vmcnt(0)")
    k.vm = []
    k.e("s_barrier")
    l = k.newlabel("pb")
    k.e("s_cmp_lg_u32 s%d, 0" % S_W)
    k.e("s_cbranch_scc1 %s" % l)
    if first:
        nonce_get(k)
    k.e("s_lshl_b32 s28, s%d, 2" % s_idx)
    k.e("s_add_u32 s28, s28, %d" % base)
    k.e("v_mov_b32 v3, s28")
    k.e("v_mov_b32 v2, s%d" % S_NONCE)
    k.e("s_mov_b64 exec, 1")
    k.e("buffer_store_dword v2, v3, s[%d:%d], 0 offen sc1" % (SF, SF + 3))
    k.e("s_mov_b64 exec, -1")
    k.label(l)


def await_flags(k, base, s_idx, n, first=False, acquire=False, wide=False):
    l = k.newlabel("aw")
    lp = k.newlabel("awl")
    d = k.newlabel("awd")
    k.e("s_cmp_lg_u32 s%d, 0" % S_W)
    k.e("s_cbranch_scc1 %s" % l)
    if first:
        nonce_get(k)
    k.e("s_lshl_b32 s28, s%d, 2" % s_idx)
    k.e("s_add_u32 s28, s28, %d" % base)
    k.e("v_lshlrev_b32 v3, %d, v1" % (3 if wide else 2))
    k.e("v_add_u32 v3, s28, v3")
    if wide:
        n //= 2
    k.e("s_mov_b32 s28, %d" % ((1 << min(n, 32)) - 1))
    k.e("s_mov_b32 s29, %d" % ((1 << max(n - 32, 0)) - 1))
    k.e("s_mov_b64 exec, s[28:29]")
    k.e("s_mov_b32 s%d, %d" % (S_SP, SPIN))
    k.label(lp)
    if wide:
        k.e("buffer_load_dwordx2 v[4:5], v3, s[%d:%d], 0 offen sc1" % (SF, SF + 3))
        k.e("s_waitcnt vmcnt(0)")
        k.e("v_xor_b32 v4, s%d, v4" % S_NONCE)
        k.e("v_xor_b32 v5, s%d, v5" % S_NONCE)
        k.e("v_or_b32 v2, v4, v5")
        k.e("v_cmp_ne_u32 vcc, 0, v2")
    else:
        k.e("buffer_load_dword v2, v3, s[%d:%d], 0 offen sc1" % (SF, SF + 3))
        k.e("s_waitcnt vmcnt(0)")
        k.e("v_cmp_ne_u32 vcc, s%d, v2" % S_NONCE)
    k.e("s_cbranch_vccz %s" % d)
    k.e("s_sub_u32 s%d, s%d, 1" % (S_SP, S_SP))
    k.e("s_cbranch_scc1 %s" % d)
    k.e("s_sleep 1")
    k.e("s_branch %s" % lp)
    k.label(d)
    k.e("s_mov_b64 exec, -1")
    if acquire:
        k.e("buffer_inv sc1")
        k.e("s_waitcnt vmcnt(0)")
    k.label(l)
    k.e("s_barrier")


def await_solo(k, base, s_idx, n, fast=False):
    lp = k.newlabel("asl")
    d = k.newlabel("asd")
    (nonce_fast if fast else nonce_get)(k)
    k.e("s_lshl_b32 s28, s%d, 2" % s_idx)
    k.e("s_add_u32 s28, s28, %d" % base)
    k.e("v_lshlrev_b32 v3, 2, v1")
    k.e("v_add_u32 v3, s28, v3")
    k.e("s_mov_b32 s28, %d" % ((1 << min(n, 32)) - 1))
    k.e("s_mov_b32 s29, %d" % ((1 << max(n - 32, 0)) - 1))
    k.e("s_mov_b64 exec, s[28:29]")
    k.e("s_mov_b32 s%d, %d" % (S_SP, SPIN))
    k.label(lp)
    k.e("buffer_load_dword v2, v3, s[%d:%d], 0 offen sc1" % (SF, SF + 3))
    k.e("s_waitcnt vmcnt(0)")
    k.e("v_cmp_ne_u32 vcc, s%d, v2" % S_NONCE)
    k.e("s_cbranch_vccz %s" % d)
    k.e("s_sub_u32 s%d, s%d, 1" % (S_SP, S_SP))
    k.e("s_cbranch_scc1 %s" % d)
    k.e("s_sleep %d" % int(opt("slp", 1)))
    k.e("s_branch %s" % lp)
    k.label(d)
    k.e("s_mov_b64 exec, -1")


BUF = 20480
SA, SB, SO, SX = 8, 12, 16, 20
S_WB, S_BOFF, S_AOFF, S_W = 24, 25, 26, 27


class G:
    def __init__(self, MT, LA=2, TW=4, CK=2, NBUF=3, NJ=9, AR=3, PAD=False):
        self.PAD = PAD
        self.MT = MT
        self.AR = AR
        self.NJ = NJ
        self.LA = LA
        self.TW = TW
        self.CK = CK
        self.NBUF = NBUF
        self.NP = -(-9 * CK // TW)
        self.BUF = 20480 if TW == 4 else 9216 * CK
        self.ACC = 16
        self.A = self.ACC + MT * NJ * 4
        self.B = self.A + AR * MT * 4
        self.VA = self.B + 4 * (LA + 1)
        self.VD = self.VA + MT
        self.VL = self.VD + self.NP * (3 if PAD else 1)
        self.FREE = self.VL + 1

    def acc(self, i, j):
        return self.ACC + (i * self.NJ + j) * 4

    def a(self, ks, i):
        return self.A + ((ks % self.AR) * self.MT + i) * 4

    def b(self, t):
        return self.B + (t % (self.LA + 1)) * 4


def gemm_setup_b(k, g, rsb, bitswap):
    k.c("DMA source offsets")
    if g.TW == 4:
        k.e("s_mul_i32 s%d, s%d, 5120" % (S_WB, S_W))
        k.e("s_mul_i32 s28, s%d, 320" % S_W)
    elif g.TW == 1:
        k.e("s_mul_i32 s31, s%d, %d" % (S_W, g.NBUF * g.BUF))
        k.e("s_mov_b32 s%d, s31" % S_WB)
        k.e("s_mov_b32 s28, 0")
    else:
        P0 = 9 * g.CK - g.NP
        k.e("s_and_b32 s28, s%d, 1" % S_W)
        k.e("s_lshr_b32 s31, s%d, 1" % S_W)
        k.e("s_mul_i32 s31, s31, %d" % (g.NBUF * g.BUF))
        k.e("s_mul_i32 s%d, s28, %d" % (S_WB, P0 * 1024))
        k.e("s_add_u32 s%d, s%d, s31" % (S_WB, S_WB))
        k.e("s_mul_i32 s28, s28, %d" % (P0 * 64))
    for i in range(g.NP):
        k.e("s_add_u32 s29, s28, %d" % (i * 64))
        if i >= 3 and g.TW == 4:
            k.e("s_cmp_ge_u32 s29, 1152")
            k.e("s_cselect_b32 s30, 128, 0")
            k.e("s_sub_u32 s29, s29, s30")
        k.e("v_add_u32 v2, s29, v1")
        k.e("v_mul_u32_u24 v3, 3641, v2")
        k.e("v_lshrrev_b32 v3, 16, v3")
        k.e("v_mul_u32_u24 v4, 18, v3")
        k.e("v_sub_u32 v4, v2, v4")
        if bitswap:
            k.e("v_and_b32 v5, 0x33, v3")
            k.e("v_and_b32 v6, 4, v3")
            k.e("v_lshlrev_b32 v6, 1, v6")
            k.e("v_and_b32 v7, 8, v3")
            k.e("v_lshrrev_b32 v7, 1, v7")
            k.e("v_or3_b32 v3, v5, v6, v7")
        k.e("v_lshlrev_b32 v4, 4, v4")
        if g.PAD:
            for b in range(3):
                k.e("v_add_u32 v5, %d, v3" % (32 * b))
                k.e("v_mul_u32_u24 v6, 2731, v5")
                k.e("v_lshrrev_b32 v6, 16, v6")
                k.e("v_mul_u32_u24 v7, 24, v6")
                k.e("v_sub_u32 v5, v5, v7")
                if "t3" in sys.argv:
                    k.e("v_cmp_lt_u32 vcc, 17, v5")
                k.e("v_min_u32 v5, 17, v5")
                k.e("v_mul_u32_u24 v6, 18, v6")
                k.e("v_add_u32 v5, v5, v6")
                k.e("v_mul_u32_u24 v5, %d, v5" % rsb)
                k.e("v_add_u32 v5, v5, v4")
                k.e("v_subrev_u32 v%d, %d, v5" % (g.VD + b * g.NP + i, (i % 4) * 1024))
                if "t3" in sys.argv:
                    assert g.NBUF == 3
                    k.e("v_mov_b32 v8, 0x80000000")
                    k.e("v_cndmask_b32 v%d, v%d, v8, vcc" % (g.VD + b * g.NP + i, g.VD + b * g.NP + i))
            continue
        k.e("v_mul_u32_u24 v3, %d, v3" % rsb)
        k.e("v_add_u32 v3, v3, v4")
        if i % 4:
            k.e("v_subrev_u32 v%d, %d, v3" % (g.VD + i, (i % 4) * 1024))
        else:
            k.e("v_mov_b32 v%d, v3" % (g.VD + i))
    k.c("LDS tr-read lane address")
    k.e("v_lshrrev_b32 v2, 4, v1")
    k.e("v_and_b32 v3, 15, v1")
    k.e("v_lshrrev_b32 v4, 2, v3")
    if bitswap:
        k.e("v_lshrrev_b32 v5, 1, v2")
        k.e("v_lshlrev_b32 v5, 4, v5")
        k.e("v_and_b32 v6, 1, v2")
        k.e("v_lshlrev_b32 v6, 2, v6")
        k.e("v_add3_u32 v4, v4, v5, v6")
    else:
        k.e("v_lshlrev_b32 v5, 2, v2")
        k.e("v_add_u32 v4, v4, v5")
    k.e("v_mul_u32_u24 v4, 288, v4")
    k.e("v_and_b32 v3, 3, v3")
    k.e("v_lshlrev_b32 v3, 3, v3")
    k.e("v_add_u32 v%d, v4, v3" % g.VL)
    if g.TW != 4:
        k.e("v_add_u32 v%d, s31, v%d" % (g.VL, g.VL))


def gemm_dma_ops(k, g, c, rsb):
    buf = c % g.NBUF
    ops = []
    for i in range(g.NP):
        def op(i=i):
            k.e("s_add_u32 m0, s%d, %d" % (S_WB, buf * g.BUF + (i // 4) * 4096))
            k.e("s_nop 0")
            vd = g.VD + i + (c % 3) * g.NP * g.PAD
            k.vmem("buffer_load_dwordx4 v%d, s[%d:%d], s%d offen offset:%d lds" % (vd, SB, SB + 3, S_BOFF, (i % 4) * 1024), ("D", c))
            if i == g.NP - 1 and g.PAD:
                if c % 3 == 2:
                    k.e("s_add_u32 s%d, s%d, %d" % (S_BOFF, S_BOFF, 72 * rsb))
            elif i == g.NP - 1:
                k.e("s_add_u32 s%d, s%d, %d" % (S_BOFF, S_BOFF, 32 * g.CK * rsb))
        ops.append(op)
    return ops


def gemm_main(k, g, KS, rsb, bitswap, afrag, extra=None, pre=None, waitfn=None, zero=True, atchunk=None, aext=False, lazy=False):
    MT = g.MT
    NJ = g.NJ
    NC = KS // g.CK
    HALF = (8 if bitswap else 16) * 288
    SPREAD = "nospread" not in sys.argv

    def aload_ops(ks):
        ops = []
        for i in range(0 if aext else MT):
            def op(i=i):
                if afrag:
                    k.vmem("buffer_load_dwordx4 %s, v%d, s[%d:%d], s%d offen%s" % (vr(g.a(ks, i), 4), g.VA + i, SA, SA + 3, S_AOFF, " sc1" if waitfn else ""), ("A", ks))
                    if i == MT - 1:
                        k.e("s_add_u32 s%d, s%d, 1024" % (S_AOFF, S_AOFF))
                else:
                    k.vmem("buffer_load_dwordx4 %s, v%d, s[%d:%d], s%d offen offset:%d" % (vr(g.a(ks, i), 4), g.VA + i, SA, SA + 3, S_AOFF, ks * 64), ("A", ks))
            ops.append(op)
        return ops

    def bread(t):
        ks, j = divmod(t, NJ)
        off = ((ks // g.CK) % g.NBUF) * g.BUF + (ks % g.CK) * 9216 + j * 32
        b = g.b(t)
        k.ds("ds_read_b64_tr_b16 %s, v%d offset:%d" % (vr(b, 2), g.VL, off), ("B", t))
        k.ds("ds_read_b64_tr_b16 %s, v%d offset:%d" % (vr(b + 2, 2), g.VL, off + HALF), ("B", t))

    k.stamp()
    if waitfn is None:
        ops = gemm_dma_ops(k, g, 0, rsb) + aload_ops(0) + gemm_dma_ops(k, g, 1, rsb) + aload_ops(1)
        for c in range(2, g.NBUF):
            ops += gemm_dma_ops(k, g, c, rsb)
        for ks in range(2, g.AR - 1):
            ops += aload_ops(ks)
    else:
        ops = []
        for c in range(g.NBUF):
            ops += gemm_dma_ops(k, g, c, rsb)
        ops += [waitfn]
        for ks in range(g.AR - 1):
            ops += aload_ops(ks)
    q = []
    for op in ops:
        op()
    if pre is not None:
        pre()
    k.c("zero accumulators")
    for r in range(MT * NJ * 4 if zero else 0):
        k.e("v_mov_b32 v%d, 0" % (g.ACC + r))
    k.wait(vm=("D", 0))
    if g.TW > 1:
        k.e("s_barrier")
    k.stamp()
    for t in range(g.LA):
        bread(t)
    NTS = KS * NJ
    for t in range(NTS if lazy else 0):
        assert g.TW == 1 and g.CK == 1 and aext and MT == 2
        ks, j = divmod(t, NJ)
        k.wait(lg=("B", t))
        a = g.acc(0, j)
        k.e("v_mfma_f32_16x16x32_bf16 %s, %s, %s, %s" % (vr(a, 4), vr(g.b(t), 4), vr(g.a(ks, 0), 4), vr(a, 4)))
        tn = t + g.LA
        if tn < NTS:
            if tn % NJ == 0:
                while q:
                    q.pop(0)()
                k.wait(vm=("D", tn // NJ))
            bread(tn)
        a = g.acc(1, j)
        k.e("v_mfma_f32_16x16x32_bf16 %s, %s, %s, %s" % (vr(a, 4), vr(g.b(t), 4), vr(g.a(ks, 1), 4), vr(a, 4)))
        if j == NJ - 1:
            if atchunk is not None:
                atchunk(ks + 1)
            if ks + g.NBUF < NC:
                q += gemm_dma_ops(k, g, ks + g.NBUF, rsb)
        if q:
            q.pop(0)()
    for t in range(0 if lazy else NTS):
        ks, j = divmod(t, NJ)
        if j == 0 and ks + g.AR - 1 < KS and "xA" not in sys.argv:
            q = aload_ops(ks + g.AR - 1) + q
        if extra is not None:
            extra(ks, j)
        if j == 0 and getattr(k, "priok", None) == ks:
            k.e("s_setprio 0")
        tn = t + g.LA
        if tn < NTS:
            if tn % (NJ * g.CK) == 0:
                c = tn // (NJ * g.CK)
                while any(True for _ in q):
                    q.pop(0)()
                k.wait(vm=("D", c), lg='*')
                if "xB" not in sys.argv and g.TW > 1:
                    k.e("s_barrier")
                if atchunk is not None:
                    atchunk(c)
                if c + g.NBUF - 1 < NC and "xD" not in sys.argv:
                    q += gemm_dma_ops(k, g, c + g.NBUF - 1, rsb)
            bread(tn)
        if q:
            q.pop(0)()
            while q and not SPREAD:
                q.pop(0)()
        k.wait(lg=("B", t), vm=("A", ks) if j == 0 else None)
        for i in range(MT):
            a = g.acc(i, j)
            k.e("v_mfma_f32_16x16x32_bf16 %s, %s, %s, %s" % (vr(a, 4), vr(g.b(t), 4), vr(g.a(ks, i), 4), vr(a, 4)))
    assert not q
    k.e("s_nop 7")
    k.e("s_nop 7")
    k.stamp()


def prologue_ids(k):
    k.stamp()
    k.e("v_and_b32 v1, 63, v0")
    k.e("v_lshrrev_b32 v2, 6, v0")
    k.e("s_nop 0")
    k.e("v_readfirstlane_b32 s%d, v2" % S_W)


def a_offsets_rowmajor(k, g, s_m0, stride):
    k.e("s_mul_i32 s28, s%d, %d" % (S_W, 16 * g.MT))
    k.e("s_add_u32 s28, s28, s%d" % s_m0)
    k.e("v_and_b32 v2, 15, v1")
    k.e("v_add_u32 v2, s28, v2")
    k.e("v_mul_u32_u24 v2, %d, v2" % stride)
    k.e("v_lshrrev_b32 v3, 4, v1")
    k.e("v_lshlrev_b32 v3, 4, v3")
    k.e("v_add_u32 v2, v2, v3")
    for i in range(g.MT):
        k.e("v_add_u32 v%d, %d, v2" % (g.VA + i, i * 16 * stride))


def a_offsets_frag(k, g, s_mt, tile_bytes):
    k.e("s_mul_i32 s28, s%d, %d" % (S_W, g.MT))
    k.e("s_add_u32 s28, s28, s%d" % s_mt)
    k.e("s_mul_i32 s28, s28, %d" % tile_bytes)
    k.e("v_lshlrev_b32 v2, 4, v1")
    k.e("v_add_u32 v2, s28, v2")
    for i in range(g.MT):
        k.e("v_add_u32 v%d, %d, v2" % (g.VA + i, i * tile_bytes))


def bf16_round(k, d, s, t):
    k.e("v_cvt_pk_bf16_f32 v%d, v%d, v%d" % (t, s, s))
    k.e("v_lshlrev_b32 v%d, 16, v%d" % (d, t))


def red8(k, v, t):
    k.e("s_nop 1")
    k.e("v_add_f32_dpp v%d, v%d, v%d quad_perm:[1,0,3,2] row_mask:0xf bank_mask:0xf" % (t, v, v))
    k.e("s_nop 1")
    k.e("v_add_f32_dpp v%d, v%d, v%d quad_perm:[2,3,0,1] row_mask:0xf bank_mask:0xf" % (v, t, t))
    k.e("s_nop 1")
    k.e("v_add_f32_dpp v%d, v%d, v%d row_half_mirror row_mask:0xf bank_mask:0xf" % (t, v, v))
    k.e("v_mov_b32 v%d, v%d" % (v, t))


def k1_ln(k, fused=False):
    k.c("---- LN / gate part")
    k.srd(SA, P_X, 0, SZ_X)
    k.srd(SB, P_GW, 0, 1152)
    k.srd(SO, P_WS, WS_Y, SZ_X)
    k.srd(SX, P_WS, WS_G, 8192)
    X, GW, F = 16, 52, 88
    if "pf0" in sys.argv:
        k.e("s_and_b32 s28, s3, 7")
        k.e("s_lshl_b32 s28, s28, 7")
        k.e("s_bfe_u32 s29, s3, 0x10005")
        k.e("s_lshl_b32 s29, s29, 10")
        k.e("s_add_u32 s28, s28, s29")
        k.e("s_bfe_u32 s29, s3, 0x20003")
        k.e("s_lshl_b32 s29, s29, 5")
        k.e("s_add_u32 s28, s28, s29")
    else:
        k.e("s_lshl_b32 s28, s3, 5")
    k.e("s_lshl_b32 s29, s%d, 3" % S_W)
    k.e("s_add_u32 s28, s28, s29")
    k.e("v_lshrrev_b32 v2, 3, v1")
    k.e("v_add_u32 v2, s28, v2")
    k.e("v_and_b32 v3, 7, v1")
    k.e("v_lshlrev_b32 v4, 4, v3")
    k.e("v_mul_u32_u24 v5, 1152, v2")
    k.e("v_add_u32 v5, v5, v4")
    for i in range(9):
        k.vmem("buffer_load_dwordx4 %s, v5, s[%d:%d], 0 offen offset:%d" % (vr(X + 4 * i, 4), SA, SA + 3, i * 128))
    for i in range(9):
        k.vmem("buffer_load_dwordx4 %s, v4, s[%d:%d], 0 offen offset:%d" % (vr(GW + 4 * i, 4), SB, SB + 3, i * 128), "ln")
    if "pf0" in sys.argv:
        k.srd(32, P_WQKV, 0, 576 * 1728 * 2)
        k.e("s_lshr_b32 s28, s3, 3")
        k.e("s_lshl_b32 s28, s28, 2")
        k.e("s_add_u32 s28, s28, s%d" % S_W)
        k.e("s_lshl_b32 s28, s28, 10")
        k.e("v_lshlrev_b32 v6, 4, v1")
        k.e("v_add_u32 v6, s28, v6")
        for i in range(61):
            k.e("s_mov_b32 s28, %d" % (i * 32768))
            k.vmem("buffer_load_dwordx4 %s, v6, s[32:35], s28 offen" % vr(160 + 4 * (i % 8), 4))
    k.wait(vm="ln")
    for i in range(36):
        k.e("v_lshlrev_b32 v%d, 16, v%d" % (F + 2 * i, X + i))
        k.e("v_and_b32 v%d, 0xffff0000, v%d" % (F + 2 * i + 1, X + i))
    k.e("v_add_f32 v6, v%d, v%d" % (F, F + 1))
    k.e("v_add_f32 v7, v%d, v%d" % (F + 2, F + 3))
    for i in range(2, 36):
        k.e("v_add_f32 v%d, v%d, v%d" % (6 + (i & 1), 6 + (i & 1), F + 2 * i))
        k.e("v_add_f32 v%d, v%d, v%d" % (6 + (i & 1), 6 + (i & 1), F + 2 * i + 1))
    k.e("v_add_f32 v6, v6, v7")
    red8(k, 6, 7)
    k.e("v_mul_f32 v6, %s, v6" % f32(1.0 / 576))
    k.e("v_mov_b32 v10, 0")
    k.e("v_mov_b32 v11, 0")
    for i in range(36):
        k.e("v_lshlrev_b32 v8, 16, v%d" % (GW + i))
        k.e("v_and_b32 v9, 0xffff0000, v%d" % (GW + i))
        k.e("v_mul_f32 v8, v8, v%d" % (F + 2 * i))
        k.e("v_mul_f32 v9, v9, v%d" % (F + 2 * i + 1))
        k.e("v_cvt_pk_bf16_f32 v8, v8, v9")
        k.e("v_and_b32 v9, 0xffff0000, v8")
        k.e("v_lshlrev_b32 v8, 16, v8")
        k.e("v_add_f32 v10, v10, v8")
        k.e("v_add_f32 v11, v11, v9")
    k.e("v_add_f32 v10, v10, v11")
    red8(k, 10, 11)
    bf16_round(k, 10, 10, 10)
    k.e("v_mul_f32 v10, %s, v10" % f32(-math.log2(math.e)))
    k.e("v_exp_f32 v10, v10")
    k.e("s_nop 0")
    k.e("v_add_f32 v10, 1.0, v10")
    k.e("v_rcp_f32 v10, v10")
    k.e("s_nop 0")
    bf16_round(k, 10, 10, 10)
    k.e("v_lshlrev_b32 v11, 2, v2")
    k.e("v_cmp_eq_u32 vcc, 0, v3")
    k.e("s_and_saveexec_b64 s[30:31], vcc")
    k.vmem("buffer_store_dword v10, v11, s[%d:%d], 0 offen" % (SX, SX + 3))
    k.e("s_mov_b64 exec, s[30:31]")
    if "pf5" in sys.argv:
        k.e("s_lshl_b32 s6, s3, 2")
        k.e("s_add_u32 s6, s6, s%d" % S_W)
        k.e("s_lshl_b32 s6, s6, 10")
        k.e("v_lshlrev_b32 v200, 4, v1")
        k.e("v_add_u32 v200, s6, v200")
        k.srd(36, P_W1, 0, 4608 * 576 * 2)
        k.srd(40, P_WO, 0, 576 * 576 * 2)
        k.srd(32, P_W2, 0, 4608 * 576 * 2)
    mark0 = len(k.L)
    k.e("v_mov_b32 v8, 0")
    k.e("v_mov_b32 v9, 0")
    for i in range(72):
        k.e("v_sub_f32 v12, v%d, v6" % (F + i))
        k.e("v_fma_f32 v%d, v12, v12, v%d" % (8 + (i & 1), 8 + (i & 1)))
    k.e("v_add_f32 v8, v8, v9")
    red8(k, 8, 9)
    k.e("v_mul_f32 v8, %s, v8" % f32(1.0 / 576))
    bf16_round(k, 8, 8, 8)
    k.e("v_add_f32 v8, %s, v8" % f32(1e-5))
    bf16_round(k, 8, 8, 8)
    k.e("v_sqrt_f32 v8, v8")
    k.e("s_nop 0")
    bf16_round(k, 8, 8, 8)
    k.e("v_rcp_f32 v9, v8")
    bf16_round(k, 6, 6, 6)
    for i in range(36):
        a, b = F + 2 * i, F + 2 * i + 1
        k.e("v_sub_f32 v%d, v%d, v6" % (a, a))
        k.e("v_sub_f32 v%d, v%d, v6" % (b, b))
        k.e("v_cvt_pk_bf16_f32 v12, v%d, v%d" % (a, b))
        k.e("v_lshlrev_b32 v%d, 16, v12" % a)
        k.e("v_and_b32 v%d, 0xffff0000, v12" % b)
        for x, q, e in ((a, 12, 13), (b, 14, 15)):
            k.e("v_mul_f32 v%d, v%d, v9" % (q, x))
            k.e("v_fma_f32 v%d, -v%d, v8, v%d" % (e, q, x))
            k.e("v_fma_f32 v%d, v%d, v9, v%d" % (q, e, q))
        k.e("v_cvt_pk_bf16_f32 v%d, v12, v14" % (X + i))
    if "pf5" in sys.argv:
        body = k.L[mark0:]
        del k.L[mark0:]
        pf = [(36, i) for i in range(21)] + [(40, i) for i in range(3)]
        if "pf2" not in sys.argv:
            pf += [(32, i) for i in range(21)]
        step = len(body) // len(pf)
        for n, l in enumerate(body):
            if n % step == 0 and n // step < len(pf) and "s_nop" not in l and "s_nop" not in body[n - 1]:
                srd, i = pf[n // step]
                k.e("s_mov_b32 s6, %d" % (i * 262144))
                k.vmem("buffer_load_dwordx4 %s, v200, s[%d:%d], s6 offen" % (vr(160 + 4 * (i % 8), 4), srd, srd + 3))
            k.L.append(l)
    k.e("v_lshrrev_b32 v5, 4, v2")
    k.e("v_mul_u32_u24 v5, 18432, v5")
    k.e("v_lshrrev_b32 v4, 2, v3")
    k.e("v_lshlrev_b32 v4, 10, v4")
    k.e("v_add_u32 v5, v5, v4")
    k.e("v_and_b32 v4, 3, v3")
    k.e("v_lshlrev_b32 v4, 8, v4")
    k.e("v_add_u32 v5, v5, v4")
    k.e("v_and_b32 v4, 15, v2")
    k.e("v_lshlrev_b32 v4, 4, v4")
    k.e("v_add_u32 v5, v5, v4")
    for i in range(9):
        k.e("s_mov_b32 s28, %d" % ((i >> 1) * 4096))
        k.vmem("buffer_store_dwordx4 %s, v5, s[%d:%d], s28 offen offset:%d%s" % (vr(X + 4 * i, 4), SO, SO + 3, (i & 1) * 2048, " sc1"))
    if "pf1" in sys.argv:
        k.c("---- pull the later kernels' weights towards the chip (read only, results unused)")
        k.e("s_lshl_b32 s28, s3, 2")
        k.e("s_add_u32 s28, s28, s%d" % S_W)
        k.e("s_lshl_b32 s28, s28, 10")
        k.e("v_lshlrev_b32 v4, 4, v1")
        k.e("v_add_u32 v4, s28, v4")
        for ptr, nb in ((P_W1, 4608 * 576 * 2), (P_WO, 576 * 576 * 2), (P_W2, 4608 * 576 * 2))[:1 if "pf4" in sys.argv else 2 if "pf2" in sys.argv else 3]:
            k.srd(SB, ptr, 0, nb)
            for i in range(-(-nb // 262144)):
                k.e("s_mov_b32 s28, %d" % (i * 262144))
                k.e("buffer_load_dwordx4 %s, v4, s[%d:%d], s28 offen" % (vr(88 + 4 * (i % 8), 4), SB, SB + 3))
        k.e("s_waitcnt vmcnt(0)")
        k.vm = []
    if fused:
        k.stamp()
        publish(k, F_LN, 3, first=True)
    k.dump(0)
    if fused:
        k.e("s_branch %s_attn" % k.name)
    else:
        k.e("s_endpgm")


def k1():
    k = K("k1")
    load_args(k)
    prologue_ids(k)
    NPF = int(opt("npf", 64)) if "pf4" in sys.argv else 0
    k.e("s_cmp_ge_u32 s2, %d" % (256 + NPF))
    k.e("s_cbranch_scc1 k1_exit")
    k.e("s_waitcnt lgkmcnt(0)")
    k.e("s_mov_b32 s3, s2")
    k.e("s_cmp_lt_u32 s2, 192")
    k.e("s_cbranch_scc1 k1_q")
    if NPF:
        k.e("s_cmp_lt_u32 s2, 256")
        k.e("s_cbranch_scc1 k1_ln")
        k.c("---- pull the later kernels' weights towards the chip (read only, results unused)")
        k.e("s_sub_u32 s3, s2, 256")
        k.e("s_lshl_b32 s28, s3, 2")
        k.e("s_add_u32 s28, s28, s%d" % S_W)
        k.e("s_lshl_b32 s28, s28, 10")
        k.e("v_lshlrev_b32 v4, 4, v1")
        k.e("v_add_u32 v4, s28, v4")
        for ptr, nb in ((P_W2, 4608 * 576 * 2), (P_WO, 576 * 576 * 2)):
            k.srd(SB, ptr, 0, nb)
            for i in range(-(-nb // (NPF * 4096))):
                k.e("s_mov_b32 s28, %d" % (i * NPF * 4096))
                k.e("buffer_load_dwordx4 %s, v4, s[%d:%d], s28 offen" % (vr(16 + 4 * (i % 8), 4), SB, SB + 3))
        k.e("s_waitcnt vmcnt(0)")
        k.e("s_endpgm")
        k.label("k1_ln")
    k.e("s_sub_u32 s3, s2, 192")
    k1_ln(k, False)
    k.label("k1_q")
    qkv_tile(k, False)
    k.dump(0)
    k.label("k1_exit")
    k.e("s_endpgm")
    return k, 248, 65536, 256 + NPF


def k1_body(k, fused):
    g = G(2)
    SC = " sc1" if fused else ""
    k.e("s_cmp_lt_u32 s2, 192")
    k.e("s_cbranch_scc1 k1_gemm")
    k.e("s_sub_u32 s3, s2, 192")
    k1_ln(k, fused)
    k.label("k1_gemm")
    k.vm = []
    k.lg = []
    k.e("s_and_b32 s3, s2, 15")
    k.e("s_lshl_b32 s3, s3, 7")
    k.e("s_lshr_b32 s4, s2, 4")
    k.srd(SA, P_X, 0, SZ_X)
    k.srd(SB, P_WQKV, 0, 576 * 1728 * 2)
    k.e("s_mul_i32 s%d, s4, 288" % S_BOFF)
    k.e("s_mov_b32 s%d, 0" % S_AOFF)
    a_offsets_rowmajor(k, g, 3, 1152)
    gemm_setup_b(k, g, 3456, True)
    gemm_main(k, g, 18, 3456, True, False)
    k.c("---- QKV epilogue")
    k.e("s_lshr_b32 s5, s4, 2")
    k.e("s_and_b32 s6, s4, 3")
    k.e("s_lshl_b32 s6, s6, 3")
    k.e("s_cmp_eq_u32 s5, 0")
    k.sel(28, "0x%x" % WS_Q, "0x%x" % WS_KV)
    k.sel(29, "0x%x" % (4 << 20), "0x%x" % (8 << 20))
    k.sel(32, 131072, 262144)
    k.sel(33, 2048, 4096)
    k.sel(38, f32(18 ** -0.5 * math.log2(math.e)), "1.0")
    k.e("s_add_u32 s%d, s%d, s28" % (SO, P_WS))
    k.e("s_addc_u32 s%d, s%d, 0" % (SO + 1, P_WS + 1))
    k.e("s_mov_b32 s%d, s29" % (SO + 2))
    k.e("s_mov_b32 s%d, 0x00020000" % (SO + 3))
    k.e("s_cmp_eq_u32 s5, 2")
    k.sel(34, 32, 1024)
    k.sel(35, 16, 512)
    k.sel(36, 2048, 0)
    k.sel(37, 64, 16)
    T = g.A
    k.e("s_lshl_b32 s28, s%d, 5" % S_W)
    k.e("s_add_u32 s28, s28, s3")
    k.e("s_lshr_b32 s28, s28, 5")
    k.e("s_mul_i32 s28, s28, s33")
    k.e("s_add_u32 s28, s28, s36")
    k.e("s_mul_i32 s29, s6, s32")
    k.e("s_add_u32 s28, s28, s29")
    k.e("v_and_b32 v2, 15, v1")
    k.e("v_mul_lo_u32 v10, v2, s37")
    k.e("v_add_u32 v10, s28, v10")
    k.e("s_lshl_b32 s29, s37, 4")
    k.e("v_add_u32 v11, s29, v10")
    k.e("v_lshrrev_b32 v3, 4, v1")
    k.e("v_lshlrev_b32 v3, 2, v3")
    for j in range(9):
        for pp in range(2):
            k.e("v_add_u32 v4, %d, v3" % (16 * j + 2 * pp))
            k.e("v_mul_u32_u24 v5, 3641, v4")
            k.e("v_lshrrev_b32 v5, 16, v5")
            k.e("v_mul_u32_u24 v6, 18, v5")
            k.e("v_sub_u32 v6, v4, v6")
            k.e("v_mul_lo_u32 v5, v5, s32")
            k.e("v_lshrrev_b32 v7, 4, v6")
            k.e("v_mul_lo_u32 v7, v7, s34")
            k.e("v_add_u32 v5, v5, v7")
            k.e("v_bfe_u32 v7, v6, 3, 1")
            k.e("v_mul_lo_u32 v7, v7, s35")
            k.e("v_add_u32 v5, v5, v7")
            k.e("v_and_b32 v7, 7, v6")
            k.e("v_lshlrev_b32 v7, 1, v7")
            k.e("v_add_u32 v5, v5, v7")
            for mi in range(2):
                a = g.acc(mi, j) + 2 * pp
                d = T + (j * 4 + pp * 2 + mi) % 16 * 2
                k.e("v_mul_f32 v%d, s38, v%d" % (a, a))
                k.e("v_mul_f32 v%d, s38, v%d" % (a + 1, a + 1))
                k.e("v_cvt_pk_bf16_f32 v%d, v%d, v%d" % (a, a, a + 1))
                k.e("v_add_u32 v%d, v5, v%d" % (a + 1, 10 + mi))
                k.vmem("buffer_store_dword v%d, v%d, s[%d:%d], 0 offen%s" % (a, a + 1, SO, SO + 3, SC))
    if fused:
        k.stamp()
    else:
        k.dump(0)
    k.e("s_cmp_eq_u32 s5, 0")
    k.e("s_cbranch_scc1 k1_done")
    k.e("v_and_b32 v2, 127, v0")
    k.e("v_add_u32 v2, s3, v2")
    k.e("v_lshrrev_b32 v3, 5, v2")
    k.e("v_mul_lo_u32 v3, v3, s33")
    k.e("v_and_b32 v2, 31, v2")
    k.e("v_mul_lo_u32 v2, v2, s37")
    k.e("v_add_u32 v2, v2, v3")
    k.e("v_lshrrev_b32 v3, 7, v0")
    k.e("v_lshlrev_b32 v3, 2, v3")
    k.e("v_add_u32 v3, s6, v3")
    k.e("v_mul_lo_u32 v3, v3, s32")
    k.e("v_add_u32 v2, v2, v3")
    k.e("s_add_u32 s28, s34, s36")
    k.e("v_add_u32 v2, s28, v2")
    k.e("v_add_u32 v3, s35, v2")
    k.e("v_add_u32 v2, 4, v2")
    k.e("v_mov_b32 v4, 0x3f803f80")
    for r in (5, 6, 8, 9, 10, 11):
        k.e("v_mov_b32 v%d, 0" % r)
    k.e("s_mov_b32 s28, 0")
    for h in range(4):
        k.vmem("buffer_store_dwordx3 v[4:6], v2, s[%d:%d], s28 offen%s" % (SO, SO + 3, SC))
        k.vmem("buffer_store_dwordx4 v[8:11], v3, s[%d:%d], s28 offen%s" % (SO, SO + 3, SC))
        k.e("s_add_u32 s28, s28, s32")
    k.label("k1_done")
    if fused:
        k.e("s_and_b32 s6, s4, 3")
        k.e("s_mul_i32 s6, s6, 48")
        k.e("s_lshl_b32 s5, s5, 4")
        k.e("s_add_u32 s6, s6, s5")
        k.e("s_lshr_b32 s3, s3, 7")
        k.e("s_add_u32 s6, s6, s3")
        publish(k, F_QKV, 6, first=True)
        k.dump(0)


def qkv_tile(k, fused=True):
    g = G(2, int(opt("qla", 2)), AR=int(opt("qar", 3)))
    AD = g.FREE
    k.vm = []
    k.lg = []
    k.e("s_lshr_b32 s4, s3, 4")
    k.e("s_and_b32 s3, s3, 15")
    k.srd(SA, P_X, 0, SZ_X)
    k.srd(SB, P_WQKV, 0, 576 * 1728 * 2)
    k.e("s_mul_i32 s%d, s4, 288" % S_BOFF)
    k.e("s_mov_b32 s%d, 0" % S_AOFF)
    k.e("s_lshl_b32 s28, s3, 2")
    k.e("s_add_u32 s33, s28, s%d" % S_W)
    k.e("s_lshl_b32 s28, s33, 5")
    k.e("v_and_b32 v2, 15, v1")
    k.e("v_add_u32 v2, s28, v2")
    k.e("v_mul_u32_u24 v2, 1152, v2")
    k.e("v_lshrrev_b32 v3, 4, v1")
    k.e("v_lshlrev_b32 v3, 4, v3")
    k.e("v_add_u32 v%d, v2, v3" % g.VA)
    k.e("v_add_u32 v%d, %d, v%d" % (g.VA + 1, 16 * 1152, g.VA))
    gemm_setup_b(k, g, 3456, True)

    def pre():
        k.c("epilogue addresses (in the shadow of the first loads)")
        k.e("s_lshr_b32 s5, s4, 2")
        k.e("s_cmp_eq_u32 s5, 2")
        k.sel(34, 32, 1024)
        k.sel(35, 16, 512)
        k.sel(37, 64, 16)
        k.e("s_lshl_b32 s28, s%d, 14" % S_W)
        k.e("v_and_b32 v2, 15, v1")
        k.e("v_mul_lo_u32 v10, v2, s37")
        k.e("v_add_u32 v10, s28, v10")
        k.e("s_lshl_b32 s29, s37, 4")
        k.e("v_lshrrev_b32 v3, 4, v1")
        k.e("v_lshlrev_b32 v3, 2, v3")
        for j in range(9):
            for pp in range(2):
                k.e("v_add_u32 v4, %d, v3" % (16 * j + 2 * pp))
                k.e("v_mul_u32_u24 v5, 3641, v4")
                k.e("v_lshrrev_b32 v5, 16, v5")
                k.e("v_mul_u32_u24 v6, 18, v5")
                k.e("v_sub_u32 v6, v4, v6")
                k.e("v_lshlrev_b32 v5, 11, v5")
                k.e("v_lshrrev_b32 v7, 4, v6")
                k.e("v_mul_lo_u32 v7, v7, s34")
                k.e("v_add_u32 v5, v5, v7")
                k.e("v_bfe_u32 v7, v6, 3, 1")
                k.e("v_mul_lo_u32 v7, v7, s35")
                k.e("v_add_u32 v5, v5, v7")
                k.e("v_and_b32 v7, 7, v6")
                k.e("v_lshlrev_b32 v7, 1, v7")
                k.e("v_add3_u32 v%d, v5, v7, v10" % (AD + (j * 2 + pp) * 2))
                k.e("v_add_u32 v%d, s29, v%d" % (AD + (j * 2 + pp) * 2 + 1, AD + (j * 2 + pp) * 2))
        k.e("v_and_b32 v2, 31, v1")
        k.e("v_mul_lo_u32 v2, v2, s37")
        k.e("v_lshrrev_b32 v3, 5, v1")
        k.e("v_lshlrev_b32 v3, 11, v3")
        k.e("s_add_u32 s29, s28, s34")
        k.e("v_add3_u32 v%d, v2, v3, s29" % (AD + 36))
        k.e("v_add_u32 v%d, s35, v%d" % (AD + 37, AD + 36))
        k.e("v_lshlrev_b32 v2, 4, v1")
        k.e("v_add_u32 v%d, s28, v2" % (AD + 38))
    gemm_main(k, g, 18, 3456, True, False, pre=pre)
    if "pf3" in sys.argv:
        k.c("---- pull the later kernels' weights towards the chip (read only, results unused)")
        k.e("s_lshl_b32 s28, s2, 2")
        k.e("s_add_u32 s28, s28, s%d" % S_W)
        k.e("s_lshl_b32 s28, s28, 10")
        k.e("v_lshlrev_b32 v%d, 4, v1" % g.VD)
        k.e("v_add_u32 v%d, s28, v%d" % (g.VD, g.VD))
        for ptr, nb in ((P_W1, 4608 * 576 * 2), (P_WO, 576 * 576 * 2), (P_W2, 4608 * 576 * 2)):
            k.srd(SB, ptr, 0, nb)
            for i in range(-(-nb // 786432)):
                k.e("s_mov_b32 s28, %d" % (i * 786432))
                k.vmem("buffer_load_dwordx4 %s, v%d, s[%d:%d], s28 offen" % (vr(g.B, 4), g.VD, SB, SB + 3))
    k.c("---- QKV epilogue through LDS")
    k.e("s_cmp_eq_u32 s5, 0")
    k.sel(28, "0x%x" % WS_Q, "0x%x" % WS_KV)
    k.sel(29, "0x%x" % (4 << 20), "0x%x" % (8 << 20))
    k.sel(32, 131072, 262144)
    k.sel(31, 2048, 4096)
    k.sel(38, f32(18 ** -0.5 * math.log2(math.e)), "1.0")
    k.e("s_add_u32 s%d, s%d, s28" % (SO, P_WS))
    k.e("s_addc_u32 s%d, s%d, 0" % (SO + 1, P_WS + 1))
    k.e("s_mov_b32 s%d, s29" % (SO + 2))
    k.e("s_mov_b32 s%d, 0x00020000" % (SO + 3))
    k.e("s_mul_i32 s31, s31, s33")
    k.e("s_and_b32 s28, s4, 3")
    k.e("s_lshl_b32 s28, s28, 3")
    k.e("s_mul_i32 s28, s28, s32")
    k.e("s_add_u32 s31, s31, s28")
    k.e("s_cmp_eq_u32 s5, 2")
    k.sel(28, 2048, 0)
    k.e("s_add_u32 s31, s31, s28")
    k.e("v_mov_b32 v4, 0x3f803f80")
    for r in (6, 7, 8, 9, 10, 11):
        k.e("v_mov_b32 v%d, 0" % r)
    k.e("s_barrier")
    for h in (0, 4096, 8192, 12288):
        k.ds("ds_write_b32 v%d, v4 offset:%d" % (AD + 36, 4 + h))
        k.ds("ds_write_b64 v%d, v[6:7] offset:%d" % (AD + 36, 8 + h))
        k.ds("ds_write_b128 v%d, v[8:11] offset:%d" % (AD + 37, h))
    for j in range(9):
        for pp in range(2):
            for mi in range(2):
                a = g.acc(mi, j) + 2 * pp
                k.e("v_mul_f32 v%d, s38, v%d" % (a, a))
                k.e("v_mul_f32 v%d, s38, v%d" % (a + 1, a + 1))
                k.e("v_cvt_pk_bf16_f32 v%d, v%d, v%d" % (a, a, a + 1))
                k.ds("ds_write_b32 v%d, v%d" % (AD + (j * 2 + pp) * 2 + mi, a))
    k.wait(lg='*')
    k.e("v_lshlrev_b32 v2, 4, v1")
    for i0 in (0, 8):
        for i in range(i0, i0 + 8):
            k.ds("ds_read_b128 %s, v%d offset:%d" % (vr(g.ACC + 4 * i, 4), AD + 38, i * 1024), ("R", i))
        for i in range(i0, i0 + 8):
            k.wait(lg=("R", i))
            k.vmem("buffer_store_dwordx4 %s, v2, s[%d:%d], s31 offen offset:%d sc1" % (vr(g.ACC + 4 * i, 4), SO, SO + 3, (i & 1) * 1024))
            if i & 1:
                k.e("s_add_u32 s31, s31, s32")
    if fused:
        k.stamp()
        k.e("s_and_b32 s6, s4, 3")
        k.e("s_mul_i32 s6, s6, 48")
        k.e("s_lshl_b32 s5, s5, 4")
        k.e("s_add_u32 s6, s6, s5")
        k.e("s_add_u32 s6, s6, s3")
        publish(k, F_QKV, 6, first=True)


def k2_gemm1(k, fused=False):
    g = G(4, 3)
    BIAS = g.FREE
    k.c("---- GEMM1: wg s3 = s2-256 in 0..255")
    k.e("s_and_b32 s3, s2, 255")
    k.e("s_and_b32 s4, s3, 7")
    k.e("s_lshl_b32 s4, s4, 2")
    k.e("s_bfe_u32 s5, s3, 0x20003")
    k.e("s_add_u32 s4, s4, s5")
    k.e("s_lshr_b32 s3, s3, 5")
    k.e("s_lshl_b32 s3, s3, 4")
    k.srd(SA, P_WS, WS_Y, SZ_X)
    k.srd(SB, P_W1, 0, 576 * 4608 * 2)
    k.srd(SO, P_WS, WS_H, SZ_H)
    k.srd(SX, P_B1, 0, 9216)
    k.e("s_mul_i32 s%d, s4, 288" % S_BOFF)
    k.e("s_mov_b32 s%d, 0" % S_AOFF)
    k.e("v_lshrrev_b32 v2, 4, v1")
    k.e("v_lshlrev_b32 v2, 3, v2")
    for j in range(9):
        k.vmem("buffer_load_dwordx2 %s, v2, s[%d:%d], s%d offen offset:%d" % (vr(BIAS + 2 * j, 2), SX, SX + 3, S_BOFF, j * 32), "bias")
    a_offsets_frag(k, g, 3, 18432)
    gemm_setup_b(k, g, 9216, True)
    wf = None
    if fused == 2:
        k.e("s_lshr_b32 s39, s3, 1")
        wf = lambda: (await_flags(k, F_LN, 39, 8), k.stamp())
    gemm_main(k, g, 18, 9216, True, True, waitfn=wf)
    if "pf2" in sys.argv:
        k.c("---- pull this die's share of W2 into its L2 (read only, results unused)")
        k.srd(SB, P_W2, 0, 4608 * 576 * 2)
        k.e("s_and_b32 s28, s2, 3")
        k.e("s_mul_i32 s28, s28, %d" % (1152 * 1152))
        k.e("s_bfe_u32 s29, s2, 0x50003")
        k.e("s_lshl_b32 s29, s29, 2")
        k.e("s_add_u32 s29, s29, s%d" % S_W)
        k.e("s_lshl_b32 s29, s29, 10")
        k.e("s_add_u32 s28, s28, s29")
        k.e("v_lshlrev_b32 v%d, 4, v1" % g.VD)
        for i in range(11):
            k.vmem("buffer_load_dwordx4 %s, v%d, s[%d:%d], s28 offen" % (vr(g.B, 4), g.VD, SB, SB + 3))
            if i < 10:
                k.e("s_add_u32 s28, s28, 131072")
    k.c("---- GELU epilogue")
    if "ge" in sys.argv:
        k.e("s_setprio 3")
    c0 = -2.0 * math.log2(math.e) * math.sqrt(2.0 / math.pi)
    c1 = c0 * 0.044715
    T = g.A
    for r, c in ((8, c1), (9, c1), (10, c0), (11, c0), (12, 1.0), (13, 1.0)):
        k.e("v_mov_b32 v%d, %s" % (r, f32(c)))
    k.e("s_lshl_b32 s29, s%d, 2" % S_W)
    k.e("s_add_u32 s28, s3, s29")
    k.e("s_mul_i32 s28, s28, 147456")
    k.e("v_lshlrev_b32 v2, 4, v1")
    k.e("v_add_u32 v2, s28, v2")
    for mi in range(4):
        k.e("v_add_u32 v%d, %d, v2" % (g.VA + mi, mi * 147456))
    k.e("s_mul_i32 s30, s4, 9")
    k.e("s_and_b32 s31, s4, 1")
    k.e("s_cmp_lg_u32 s31, 0")
    k.e("s_cbranch_scc1 %s_gelu1" % k.name)
    for par in (0, 1):
        if par:
            k.label("%s_gelu1" % k.name)
        groups = [(0, 1), (2, 3), (4, 5), (6, 7), (8,)] if par == 0 else [(0,), (1, 2), (3, 4), (5, 6), (7, 8)]
        n = 0
        for grp in groups:
            k.e("s_add_u32 s31, s30, %d" % grp[0])
            k.e("s_lshr_b32 s32, s31, 1")
            k.e("s_lshl_b32 s32, s32, 10")
            if len(grp) == 1 and par == 1:
                k.e("s_add_u32 s32, s32, 8")
            bregs = ((4, 6), (14, 2))
            for j, (b0, b1) in zip(grp, bregs):
                b = BIAS + 2 * j
                k.e("v_lshlrev_b32 v%d, 16, v%d" % (b0, b))
                k.e("v_and_b32 v%d, 0xffff0000, v%d" % (b0 + 1, b))
                k.e("v_lshlrev_b32 v%d, 16, v%d" % (b1, b + 1))
                k.e("v_and_b32 v%d, 0xffff0000, v%d" % (b1 + 1, b + 1))
            for mp in range(2):
                prs = []
                slots = []
                for q in range(2):
                    t = T + ((n % 2) * 2 + q) * 12
                    slots.append(t)
                    for jj, j in enumerate(grp):
                        a = g.acc(2 * mp + q, j)
                        prs += [(a, t + 4 * jj, bregs[jj][0]), (a + 2, t + 4 * jj + 2, bregs[jj][1])]
                n += 1
                for a, t, bb in prs:
                    k.e("v_pk_add_f32 %s, %s, %s" % (vr(a, 2), vr(a, 2), vr(bb, 2)))
                for a, t, bb in prs:
                    k.e("v_pk_mul_f32 %s, %s, %s" % (vr(t, 2), vr(a, 2), vr(a, 2)))
                for a, t, bb in prs:
                    k.e("v_pk_fma_f32 %s, %s, v[8:9], v[10:11]" % (vr(t, 2), vr(t, 2)))
                for a, t, bb in prs:
                    k.e("v_pk_mul_f32 %s, %s, %s" % (vr(t, 2), vr(t, 2), vr(a, 2)))
                for a, t, bb in prs:
                    k.e("v_exp_f32 v%d, v%d" % (t, t))
                    k.e("v_exp_f32 v%d, v%d" % (t + 1, t + 1))
                for a, t, bb in prs:
                    k.e("v_pk_add_f32 %s, %s, v[12:13]" % (vr(t, 2), vr(t, 2)))
                for a, t, bb in prs:
                    k.e("v_rcp_f32 v%d, v%d" % (t, t))
                    k.e("v_rcp_f32 v%d, v%d" % (t + 1, t + 1))
                for a, t, bb in prs:
                    k.e("v_pk_mul_f32 %s, %s, %s" % (vr(t, 2), vr(t, 2), vr(a, 2)))
                for q in range(2):
                    t = slots[q]
                    for jj in range(len(grp)):
                        k.e("v_cvt_pk_bf16_f32 v%d, v%d, v%d" % (t + 8 + 2 * jj, t + 4 * jj, t + 4 * jj + 1))
                        k.e("v_cvt_pk_bf16_f32 v%d, v%d, v%d" % (t + 9 + 2 * jj, t + 4 * jj + 2, t + 4 * jj + 3))
                    k.vmem("buffer_store_dwordx%d %s, v%d, s[%d:%d], s32 offen sc1" % (2 * len(grp), vr(t + 8, 2 * len(grp)), g.VA + 2 * mp + q, SO, SO + 3))
        if par == 0:
            k.e("s_branch %s_gelu_end" % k.name)
    k.label("%s_gelu_end" % k.name)
    k.dump(1)
    if fused:
        k.e("s_lshr_b32 s3, s3, 4")
        k.e("s_lshl_b32 s3, s3, 5")
        k.e("s_add_u32 s3, s3, s4")
        if "ge0" in sys.argv:
            k.e("s_setprio 0")
        publish(k, F_H, 3, first=(fused == 1))
    else:
        k.e("s_endpgm")


def attn(k, half, kidx, nxt=None, wait=False):
    N = k.name + "h%d" % half
    O, S0, S1, P0, P1, Q, KR, VR = 16, 32, 48, 64, 72, 80, 88, 104
    SS, PP = (S0, S1), (P0, P1)
    VKC, VVC, VKN, VVN, VKB, VVB, VDM = 120, 121, 122, 123, 124, 125, 126
    S_NB, S_DOFF, S_CNT, S_FLAG, S_T = 28, 29, 30, 31, 32
    LOMASK = 40
    k.c("---- attention: wg s3 in 0..255")
    k.e("s_and_b32 s3, s2, 255")
    k.e("s_and_b32 s4, s3, 7")
    k.e("s_lshr_b32 s5, s3, 6")
    k.e("s_lshl_b32 s5, s5, 3")
    k.e("s_add_u32 s4, s4, s5")
    k.e("s_bfe_u32 s5, s3, 0x30003")
    k.e("s_lshl_b32 s5, s5, 2")
    k.e("s_add_u32 s5, s5, s%d" % S_W)
    k.e("s_add_u32 s5, s5, %d" % (half * 32))
    if wait:
        k.e("s_lshr_b32 s39, s4, 3")
        k.e("s_mul_i32 s39, s39, 48")
        await_flags(k, F_QKV, 39, 48, acquire=True)
        k.stamp()
    k.srd(SA, P_WS, WS_Q, 4 << 20)
    k.srd(SB, P_WS, WS_KV, 8 << 20)
    k.srd(SO, P_WS, WS_O, SZ_X)
    k.e("s_mov_b32 s%d, -1" % LOMASK)
    k.e("s_mov_b32 s%d, 0" % (LOMASK + 1))
    k.e("s_mov_b32 s%d, 0" % S_FLAG)
    k.e("s_lshl_b32 s%d, s%d, 12" % (S_WB, S_W))
    k.e("s_lshl_b32 s%d, s4, 18" % S_DOFF)
    k.e("s_mov_b32 s33, s%d" % S_DOFF)
    k.e("v_lshlrev_b32 v2, 4, v1")
    k.e("v_add_u32 v%d, s%d, v2" % (VDM, S_WB))

    def dma(m0expr):
        k.e(m0expr)
        k.e("s_nop 0")
        for i in range(4):
            k.e("buffer_load_dwordx4 v%d, s[%d:%d], s%d offen offset:%d lds" % (VDM, SB, SB + 3, S_DOFF, i * 1024))
        k.e("s_add_u32 s%d, s%d, 16384" % (S_DOFF, S_DOFF))
    dma("s_mov_b32 m0, s%d" % S_WB)
    k.e("s_lshl_b32 s34, s4, 6")
    k.e("s_add_u32 s34, s34, s5")
    k.e("s_lshl_b32 s34, s34, 11")
    for u in (0, 1):
        k.e("buffer_load_dwordx4 %s, v2, s[%d:%d], s34 offen offset:%d" % (vr(Q + 4 * u, 4), SA, SA + 3, u * 1024))
    dma("s_add_u32 m0, s%d, 16384" % S_WB)
    k.e("v_mov_b32 v%d, v2" % VKB)
    k.e("v_lshrrev_b32 v3, 5, v1")
    k.e("v_lshlrev_b32 v3, 2, v3")
    k.e("v_bfe_u32 v4, v1, 2, 2")
    k.e("v_add_u32 v3, v3, v4")
    k.e("v_lshlrev_b32 v3, 6, v3")
    k.e("v_bfe_u32 v4, v1, 4, 1")
    k.e("v_lshlrev_b32 v4, 5, v4")
    k.e("v_and_b32 v5, 3, v1")
    k.e("v_lshlrev_b32 v5, 3, v5")
    k.e("v_add3_u32 v3, v3, v4, v5")
    k.e("v_add_u32 v%d, 2048, v3" % VVB)
    k.e("v_mov_b32 v%d, v%d" % (VKC, VKB))
    k.e("v_mov_b32 v%d, v%d" % (VVC, VVB))
    k.e("v_add_u32 v%d, 16384, v%d" % (VKN, VKB))
    k.e("v_add_u32 v%d, 16384, v%d" % (VVN, VVB))
    k.e("s_mov_b32 s%d, 16384" % S_NB)
    for r in list(range(O, O + 16)) + list(range(P1, P1 + 8)) + list(range(VR + 8, VR + 16)):
        k.e("v_mov_b32 v%d, 0" % r)
    k.e("s_waitcnt vmcnt(4)")
    k.e("v_cndmask_b32 v%d, 0, v%d, s[%d:%d]" % (Q + 4, Q + 4, LOMASK, LOMASK + 1))
    for r in (5, 6, 7):
        k.e("v_mov_b32 v%d, 0" % (Q + r))
    k.e("s_barrier")
    k.stamp()

    def ldk(buf, va, tile):
        for u in (0, 1):
            k.e("ds_read_b128 %s, v%d offset:%d" % (vr(KR + 8 * buf + 4 * u, 4), va, tile * 4096 + u * 1024))

    def ldv(buf, va, tile):
        for u in (0, 1):
            for h in (0, 1):
                k.e("ds_read_b64_tr_b16 %s, v%d offset:%d" % (vr(VR + 8 * buf + 4 * u + 2 * h, 2), va, tile * 4096 + u * 1024 + h * 512))

    def qk(S, kb, part):
        if part == 0:
            return "v_mfma_f32_32x32x16_bf16 %s, %s, %s, 0" % (vr(S, 16), vr(KR + 8 * kb, 4), vr(Q, 4))
        return "v_mfma_f32_32x32x16_bf16 %s, %s, %s, %s" % (vr(S, 16), vr(KR + 8 * kb + 4, 4), vr(Q + 4, 4), vr(S, 16))

    def pv(vb, P, u):
        return "v_mfma_f32_32x32x16_bf16 %s, %s, %s, %s" % (vr(O, 16), vr(VR + 8 * vb + 4 * u, 4), vr(P + 4 * u, 4), vr(O, 16))

    def softmax_ops(S, P):
        e = lambda i: "v_exp_f32 v%d, v%d" % (S + i, S + i)
        c = lambda i: "v_cvt_pk_bf16_f32 v%d, v%d, v%d" % (P + i, S + 2 * i, S + 2 * i + 1)
        ops = [e(0), e(1), e(2), e(3), c(0)]
        for i in range(1, 7):
            ops += [e(2 * i + 2), e(2 * i + 3), c(i)]
        ops += [c(7)]
        return ops

    def phase(S, P, mf):
        ops = softmax_ops(S, P)
        for i, o in enumerate(ops):
            if i % 6 == 0 and i // 6 < len(mf):
                k.e(mf[i // 6])
            k.e(o)

    def rowmax(S, first, M):
        k.e("v_max3_f32 v2, v%d, v%d, v%d" % (S, S + 1, S + 2))
        for i in range(3, 15, 2):
            k.e("v_max3_f32 v2, v2, v%d, v%d" % (S + i, S + i + 1))
        if first:
            k.e("v_max_f32 v%d, v2, v%d" % (M, S + 15))
        else:
            k.e("v_max3_f32 v%d, v2, v%d, v%d" % (M, S + 15, M))

    def patch(M):
        k.e("v_mov_b32 v3, v%d" % M)
        k.e("v_mov_b32 v4, v%d" % M)
        k.e("s_nop 1")
        k.e("v_permlane32_swap_b32 v3, v4")
        k.e("s_nop 1")
        k.e("v_max_f32 v3, v3, v4")
        k.e("v_sub_f32 v3, 0, v3")
        k.e("v_cvt_pk_bf16_f32 v4, v3, v3")
        k.e("v_lshlrev_b32 v4, 16, v4")
        k.e("v_sub_f32 v3, v3, v4")
        k.e("v_cvt_pk_bf16_f32 v3, v4, v3")
        k.e("v_cndmask_b32 v%d, 0, v3, s[%d:%d]" % (Q + 5, LOMASK, LOMASK + 1))

    ldk(0, VKC, 0)
    ldk(1, VKC, 1)
    k.e("s_waitcnt lgkmcnt(0)")
    k.e(qk(S0, 0, 0))
    k.e(qk(S0, 0, 1))
    k.e("s_nop 7")
    k.e("s_nop 7")
    rowmax(S0, True, 6)
    patch(6)
    k.e("s_nop 1")
    k.e(qk(S0, 0, 0))
    k.e(qk(S0, 0, 1))
    k.e("s_nop 7")
    k.e("s_nop 7")
    k.stamp()
    k.e("s_mov_b32 s%d, 16" % S_CNT)
    k.label(N + "_aloop")
    for tt in range(4):
        k.e("s_waitcnt lgkmcnt(0)")
        if tt == 2:
            k.e("s_waitcnt vmcnt(0)")
            k.e("s_barrier")
            k.e("s_add_u32 s%d, s%d, 16384" % (S_T, S_NB))
            k.e("s_cmp_eq_u32 s%d, 49152" % S_T)
            k.e("s_cmov_b32 s%d, 0" % S_T)
            dma("s_add_u32 m0, s%d, s%d" % (S_T, S_WB))
        if tt + 2 < 4:
            ldk(tt & 1, VKC, tt + 2)
        else:
            ldk(tt & 1, VKN, tt - 2)
        ldv(tt & 1, VVC, tt)
        o = (tt + 1) & 1
        phase(SS[tt & 1], PP[tt & 1], [qk(SS[o], o, 0), qk(SS[o], o, 1), pv(o, PP[o], 0), pv(o, PP[o], 1)])
    k.e("v_mov_b32 v%d, v%d" % (VKC, VKN))
    k.e("v_mov_b32 v%d, v%d" % (VVC, VVN))
    k.e("s_mov_b32 s%d, s%d" % (S_NB, S_T))
    k.e("v_add_u32 v%d, s%d, v%d" % (VKN, S_NB, VKB))
    k.e("v_add_u32 v%d, s%d, v%d" % (VVN, S_NB, VVB))
    k.e("s_sub_u32 s%d, s%d, 1" % (S_CNT, S_CNT))
    k.e("s_cmp_lg_u32 s%d, 0" % S_CNT)
    k.e("s_cbranch_scc1 %s_aloop" % N)
    k.e("s_waitcnt lgkmcnt(0)")
    k.e(pv(1, P1, 0))
    k.e(pv(1, P1, 1))
    k.stamp()
    k.label(N + "_fin")
    k.e("s_waitcnt vmcnt(0) lgkmcnt(0)")
    k.e("s_nop 7")
    k.e("s_nop 7")
    k.e("v_mov_b32 v8, v%d" % (O + 10))
    k.e("v_mov_b32 v9, v%d" % (O + 10))
    k.e("s_nop 1")
    k.e("v_permlane32_swap_b32 v8, v9")
    k.e("s_nop 1")
    k.e("s_cmp_lg_u32 s%d, 0" % S_FLAG)
    k.e("s_cbranch_scc1 %s_store" % N)
    k.e("v_mov_b32 v3, %s" % f32(2.0 ** 40))
    k.e("v_cmp_nlt_f32 vcc, v8, v3")
    k.e("s_cbranch_vccnz %s_fallback" % N)
    k.label(N + "_store")
    k.e("v_rcp_f32 v8, v8")
    k.e("s_lshl_b32 s34, s5, 5")
    k.e("v_and_b32 v2, 31, v1")
    k.e("v_add_u32 v2, s34, v2")
    k.e("v_lshrrev_b32 v3, 4, v2")
    k.e("v_mul_u32_u24 v3, 18432, v3")
    k.e("v_and_b32 v2, 15, v2")
    k.e("v_lshlrev_b32 v2, 4, v2")
    k.e("v_add_u32 v2, v2, v3")
    k.e("s_mul_i32 s35, s4, 18")
    k.e("v_lshrrev_b32 v3, 5, v1")
    k.e("v_lshlrev_b32 v3, 2, v3")
    k.e("v_add_u32 v3, s35, v3")
    AD = S0
    for r, dd in enumerate((0, 2, 8, 10, 16)):
        k.e("v_add_u32 v4, %d, v3" % dd)
        k.e("v_lshrrev_b32 v5, 5, v4")
        k.e("v_lshlrev_b32 v5, 10, v5")
        k.e("v_bfe_u32 v6, v4, 3, 2")
        k.e("v_lshlrev_b32 v6, 8, v6")
        k.e("v_and_b32 v4, 7, v4")
        k.e("v_lshlrev_b32 v4, 1, v4")
        k.e("v_add3_u32 v4, v4, v5, v6")
        k.e("v_add_u32 v%d, v4, v2" % (AD + r))
    for r in range(10):
        k.e("v_mul_f32 v%d, v%d, v8" % (O + r, O + r))
    for r in range(5):
        k.e("v_cvt_pk_bf16_f32 v%d, v%d, v%d" % (O + r, O + 2 * r, O + 2 * r + 1))
    for r in range(4):
        k.e("buffer_store_dword v%d, v%d, s[%d:%d], 0 offen" % (O + r, AD + r, SO, SO + 3))
    k.e("s_mov_b64 exec, s[%d:%d]" % (LOMASK, LOMASK + 1))
    k.e("buffer_store_dword v%d, v%d, s[%d:%d], 0 offen" % (O + 4, AD + 4, SO, SO + 3))
    k.e("s_mov_b64 exec, -1")
    k.dump(kidx)
    k.e("s_branch %s" % nxt if nxt else "s_endpgm")
    k.label(N + "_fallback")
    k.e("s_mov_b32 s%d, 1" % S_FLAG)
    k.e("v_mov_b32 v%d, 0" % (Q + 5))
    k.e("v_mov_b32 v6, 0xff800000")
    k.e("s_add_u32 s38, s%d, 49152" % S_WB)
    k.e("v_lshlrev_b32 v12, 4, v1")
    k.e("v_add_u32 v13, s38, v%d" % VKB)
    k.e("v_add_u32 v14, s38, v%d" % VVB)
    for ps in (0, 1):
        k.e("s_mov_b32 s%d, s33" % S_DOFF)
        k.e("s_mov_b32 s%d, 64" % S_CNT)
        k.label("%s_fb%d" % (N, ps))
        k.e("s_mov_b32 m0, s38")
        k.e("s_nop 0")
        for i in range(4):
            k.e("buffer_load_dwordx4 v12, s[%d:%d], s%d offen offset:%d lds" % (SB, SB + 3, S_DOFF, i * 1024))
        k.e("s_add_u32 s%d, s%d, 4096" % (S_DOFF, S_DOFF))
        k.e("s_waitcnt vmcnt(0)")
        ldk(0, 13, 0)
        if ps:
            ldv(0, 14, 0)
        k.e("s_waitcnt lgkmcnt(0)")
        k.e(qk(S0, 0, 0))
        k.e(qk(S0, 0, 1))
        k.e("s_nop 7")
        k.e("s_nop 7")
        if ps == 0:
            rowmax(S0, False, 6)
        else:
            for o in softmax_ops(S0, P0):
                k.e(o)
            k.e("s_nop 1")
            k.e(pv(0, P0, 0))
            k.e(pv(0, P0, 1))
        k.e("s_sub_u32 s%d, s%d, 1" % (S_CNT, S_CNT))
        k.e("s_cmp_lg_u32 s%d, 0" % S_CNT)
        k.e("s_cbranch_scc1 %s_fb%d" % (N, ps))
        if ps == 0:
            patch(6)
            for r in range(16):
                k.e("v_mov_b32 v%d, 0" % (O + r))
            k.e("s_nop 1")
    k.e("s_branch %s_fin" % N)


def attn2(k, kidx, nxt=None, wait=False):
    OA, OB, SAq, SBq, PA, PB, QA, QB, KR, VR = 16, 32, 48, 64, 80, 88, 96, 104, 112, 128
    VKC, VVC, VKN, VVN, VKB, VVB, VDM = 144, 145, 146, 147, 148, 149, 150
    S_NB, S_DOFF, S_CNT, S_FLAG, S_T = 28, 29, 30, 31, 32
    LOMASK = 40
    k.c("---- attention: wg s3 = s2-256")
    k.e("s_and_b32 s3, s2, 255")
    k.e("s_and_b32 s4, s3, 7")
    k.e("s_lshr_b32 s5, s3, 6")
    k.e("s_lshl_b32 s5, s5, 3")
    k.e("s_add_u32 s4, s4, s5")
    k.e("s_bfe_u32 s5, s3, 0x30003")
    if wait:
        k.e("s_lshr_b32 s39, s4, 3")
        k.e("s_mul_i32 s39, s39, 48")
        await_flags(k, F_QKV, 39, 48, acquire=True)
        k.stamp()
    k.srd(SA, P_WS, WS_Q, 4 << 20)
    k.srd(SB, P_WS, WS_KV, 8 << 20)
    k.srd(SO, P_WS, WS_O, 128 * 24576)
    k.e("s_mov_b32 s%d, -1" % LOMASK)
    k.e("s_mov_b32 s%d, 0" % (LOMASK + 1))
    k.e("s_mov_b32 s%d, 0" % S_FLAG)
    k.e("s_lshl_b32 s%d, s%d, 12" % (S_WB, S_W))
    k.e("s_lshl_b32 s%d, s4, 18" % S_DOFF)
    k.e("s_mov_b32 s33, s%d" % S_DOFF)
    k.e("v_lshlrev_b32 v2, 4, v1")
    k.e("v_add_u32 v%d, s%d, v2" % (VDM, S_WB))
    def dma(m0expr):
        k.e(m0expr)
        k.e("s_nop 0")
        for i in range(4):
            k.e("buffer_load_dwordx4 v%d, s[%d:%d], s%d offen offset:%d lds" % (VDM, SB, SB + 3, S_DOFF, i * 1024))
        k.e("s_add_u32 s%d, s%d, 16384" % (S_DOFF, S_DOFF))
    dma("s_mov_b32 m0, s%d" % S_WB)
    dma("s_add_u32 m0, s%d, 16384" % S_WB)
    k.e("s_lshl_b32 s34, s4, 6")
    k.e("s_lshl_b32 s35, s5, 3")
    k.e("s_add_u32 s34, s34, s35")
    k.e("s_lshl_b32 s35, s%d, 1" % S_W)
    k.e("s_add_u32 s34, s34, s35")
    k.e("s_lshl_b32 s34, s34, 11")
    for X in (0, 1):
        for u in (0, 1):
            k.e("buffer_load_dwordx4 %s, v2, s[%d:%d], s34 offen offset:%d" % (vr(QA + 8 * X + 4 * u, 4), SA, SA + 3, X * 2048 + u * 1024))
    k.e("v_mov_b32 v%d, v2" % VKB)
    k.e("v_lshrrev_b32 v3, 5, v1")
    k.e("v_lshlrev_b32 v3, 2, v3")
    k.e("v_bfe_u32 v4, v1, 2, 2")
    k.e("v_add_u32 v3, v3, v4")
    k.e("v_lshlrev_b32 v3, 6, v3")
    k.e("v_bfe_u32 v4, v1, 4, 1")
    k.e("v_lshlrev_b32 v4, 5, v4")
    k.e("v_and_b32 v5, 3, v1")
    k.e("v_lshlrev_b32 v5, 3, v5")
    k.e("v_add3_u32 v3, v3, v4, v5")
    k.e("v_add_u32 v%d, 2048, v3" % VVB)
    k.e("v_mov_b32 v%d, v%d" % (VKC, VKB))
    k.e("v_mov_b32 v%d, v%d" % (VVC, VVB))
    k.e("v_add_u32 v%d, 16384, v%d" % (VKN, VKB))
    k.e("v_add_u32 v%d, 16384, v%d" % (VVN, VVB))
    k.e("s_mov_b32 s%d, 16384" % S_NB)
    for r in range(32):
        k.e("v_mov_b32 v%d, 0" % (OA + r))
    if "t4" in sys.argv:
        l = k.newlabel("an")
        k.e("s_cmp_lg_u32 s%d, 0" % S_W)
        k.e("s_cbranch_scc1 %s" % l)
        nonce_get(k)
        k.label(l)
    k.e("s_waitcnt vmcnt(0)")
    for X in (0, 1):
        q = QA + 8 * X + 4
        k.e("v_cndmask_b32 v%d, 0, v%d, s[%d:%d]" % (q, q, LOMASK, LOMASK + 1))
        for r in (1, 2, 3):
            k.e("v_mov_b32 v%d, 0" % (q + r))
    k.e("s_barrier")
    k.stamp()

    def ldk(buf, va, tile):
        for u in (0, 1):
            k.e("ds_read_b128 %s, v%d offset:%d" % (vr(KR + 8 * buf + 4 * u, 4), va, tile * 4096 + u * 1024))

    def ldv(buf, va, tile):
        for u in (0, 1):
            for h in (0, 1):
                k.e("ds_read_b64_tr_b16 %s, v%d offset:%d" % (vr(VR + 8 * buf + 4 * u + 2 * h, 2), va, tile * 4096 + u * 1024 + h * 512))

    def qk(S, kb, Q, part):
        if part == 0:
            return "v_mfma_f32_32x32x16_bf16 %s, %s, %s, 0" % (vr(S, 16), vr(KR + 8 * kb, 4), vr(Q, 4))
        return "v_mfma_f32_32x32x16_bf16 %s, %s, %s, %s" % (vr(S, 16), vr(KR + 8 * kb + 4, 4), vr(Q + 4, 4), vr(S, 16))

    def pv(O, vb, P, u):
        return "v_mfma_f32_32x32x16_bf16 %s, %s, %s, %s" % (vr(O, 16), vr(VR + 8 * vb + 4 * u, 4), vr(P + 4 * u, 4), vr(O, 16))

    def softmax_ops(S, P):
        e = lambda i: "v_exp_f32 v%d, v%d" % (S + i, S + i)
        c = lambda i: "v_cvt_pk_bf16_f32 v%d, v%d, v%d" % (P + i, S + 2 * i, S + 2 * i + 1)
        ops = [e(0), e(1), e(2), e(3), c(0)]
        for i in range(1, 7):
            ops += [e(2 * i + 2), e(2 * i + 3), c(i)]
        ops += [c(7)]
        return ops

    def phase(S, P, mf):
        ops = softmax_ops(S, P)
        for i, o in enumerate(ops):
            if i % 6 == 0 and i // 6 < len(mf) and "aXm" not in sys.argv:
                k.e(mf[i // 6])
            if "aXc" in sys.argv and "cvt" in o:
                continue
            if "aXe" in sys.argv and "exp" in o:
                continue
            k.e(o)

    def rowmax_patch(S, Q, first, M):
        k.e("v_max3_f32 v2, v%d, v%d, v%d" % (S, S + 1, S + 2))
        for i in range(3, 15, 2):
            k.e("v_max3_f32 v2, v2, v%d, v%d" % (S + i, S + i + 1))
        if first:
            k.e("v_max_f32 v%d, v2, v%d" % (M, S + 15))
        else:
            k.e("v_max3_f32 v%d, v2, v%d, v%d" % (M, S + 15, M))

    def patch(M, Q):
        k.e("v_mov_b32 v3, v%d" % M)
        k.e("v_mov_b32 v4, v%d" % M)
        k.e("s_nop 1")
        k.e("v_permlane32_swap_b32 v3, v4")
        k.e("s_nop 1")
        k.e("v_max_f32 v3, v3, v4")
        k.e("v_sub_f32 v3, 0, v3")
        k.e("v_cvt_pk_bf16_f32 v4, v3, v3")
        k.e("v_lshlrev_b32 v4, 16, v4")
        k.e("v_sub_f32 v3, v3, v4")
        k.e("v_cvt_pk_bf16_f32 v3, v4, v3")
        k.e("v_cndmask_b32 v%d, 0, v3, s[%d:%d]" % (Q + 5, LOMASK, LOMASK + 1))

    ldk(0, VKC, 0)
    ldk(1, VKC, 1)
    ldv(0, VVC, 0)
    k.e("s_waitcnt lgkmcnt(0)")
    for S, Q in ((SAq, QA), (SBq, QB)):
        k.e(qk(S, 0, Q, 0))
        k.e(qk(S, 0, Q, 1))
    k.e("s_nop 7")
    k.e("s_nop 7")
    rowmax_patch(SAq, QA, True, 6)
    rowmax_patch(SBq, QB, True, 7)
    patch(6, QA)
    patch(7, QB)
    k.e("s_nop 1")
    k.e(qk(SAq, 0, QA, 0))
    k.e(qk(SAq, 0, QA, 1))
    k.e("s_nop 7")
    k.e("s_nop 7")
    phase(SAq, PA, [qk(SBq, 0, QB, 0), qk(SBq, 0, QB, 1)])
    k.stamp()
    k.e("s_mov_b32 s%d, 16" % S_CNT)
    k.label("ka_loop")
    for tt in range(4):
        k.e("s_waitcnt lgkmcnt(0)")
        if tt == 2:
            k.e("s_waitcnt vmcnt(0)")
            if "aXb" not in sys.argv:
                k.e("s_barrier")
            k.e("s_add_u32 s%d, s%d, 16384" % (S_T, S_NB))
            k.e("s_cmp_eq_u32 s%d, 49152" % S_T)
            k.e("s_cmov_b32 s%d, 0" % S_T)
            dma("s_add_u32 m0, s%d, s%d" % (S_T, S_WB))
        if "aXl" in sys.argv:
            pass
        elif tt + 2 < 4:
            ldk(tt & 1, VKC, tt + 2)
        else:
            ldk(tt & 1, VKN, tt - 2)
        if "aXl" in sys.argv:
            pass
        elif tt + 1 < 4:
            ldv((tt + 1) & 1, VVC, tt + 1)
        else:
            ldv((tt + 1) & 1, VVN, 0)
        kb, vb = (tt + 1) & 1, tt & 1
        phase(SBq, PB, [qk(SAq, kb, QA, 0), qk(SAq, kb, QA, 1), pv(OA, vb, PA, 0), pv(OA, vb, PA, 1)])
        phase(SAq, PA, [qk(SBq, kb, QB, 0), qk(SBq, kb, QB, 1), pv(OB, vb, PB, 0), pv(OB, vb, PB, 1)])
    k.e("v_mov_b32 v%d, v%d" % (VKC, VKN))
    k.e("v_mov_b32 v%d, v%d" % (VVC, VVN))
    k.e("s_mov_b32 s%d, s%d" % (S_NB, S_T))
    k.e("v_add_u32 v%d, s%d, v%d" % (VKN, S_NB, VKB))
    k.e("v_add_u32 v%d, s%d, v%d" % (VVN, S_NB, VVB))
    k.e("s_sub_u32 s%d, s%d, 1" % (S_CNT, S_CNT))
    k.e("s_cmp_lg_u32 s%d, 0" % S_CNT)
    k.e("s_cbranch_scc1 ka_loop")
    k.stamp()
    k.label("ka_fin")
    k.e("s_waitcnt vmcnt(0) lgkmcnt(0)")
    k.e("s_nop 7")
    k.e("s_nop 7")
    for X, O in ((0, OA), (1, OB)):
        k.e("v_mov_b32 v%d, v%d" % (8 + 2 * X, O + 10))
        k.e("v_mov_b32 v%d, v%d" % (9 + 2 * X, O + 10))
    k.e("s_nop 1")
    k.e("v_permlane32_swap_b32 v8, v9")
    k.e("v_permlane32_swap_b32 v10, v11")
    k.e("s_nop 1")
    k.e("s_cmp_lg_u32 s%d, 0" % S_FLAG)
    k.e("s_cbranch_scc1 ka_store")
    k.e("v_max_f32 v2, v8, v10")
    k.e("v_mov_b32 v3, %s" % f32(2.0 ** 40))
    k.e("v_cmp_nlt_f32 vcc, v8, v3")
    k.e("s_nop 1")
    k.e("s_mov_b64 s[36:37], vcc")
    k.e("v_cmp_nlt_f32 vcc, v10, v3")
    k.e("s_nop 1")
    k.e("s_or_b64 s[36:37], vcc, s[36:37]")
    k.e("s_cbranch_scc1 ka_fallback")
    k.label("ka_store")
    k.e("v_rcp_f32 v8, v8")
    k.e("v_rcp_f32 v10, v10")
    if "t4" in sys.argv:
        k.e("s_lshl_b32 s34, s5, 8")
        k.e("s_lshl_b32 s35, s%d, 6" % S_W)
        k.e("s_add_u32 s34, s34, s35")
        k.e("s_mul_i32 s35, s4, 3")
        for r in (0, 1):
            if r == 0:
                k.e("v_and_b32 v2, 31, v1")
                k.e("v_add_u32 v2, s34, v2")
                k.e("v_lshrrev_b32 v3, 5, v1")
                k.e("v_add_u32 v3, s35, v3")
            else:
                k.e("v_add_u32 v2, s34, v1")
                k.e("v_mov_b32 v3, s35")
                k.e("v_add_u32 v3, 2, v3")
            k.e("v_lshrrev_b32 v4, 4, v2")
            k.e("v_mul_u32_u24 v4, 24576, v4")
            k.e("v_and_b32 v2, 15, v2")
            k.e("v_lshlrev_b32 v2, 4, v2")
            k.e("v_lshrrev_b32 v5, 2, v3")
            k.e("v_lshlrev_b32 v5, 10, v5")
            k.e("v_and_b32 v3, 3, v3")
            k.e("v_lshlrev_b32 v3, 8, v3")
            k.e("v_add3_u32 v2, v2, v4, v5")
            k.e("v_add_u32 v%d, v2, v3" % (52 + r))
        for X, O in ((0, OA), (1, OB)):
            for r in range(10):
                k.e("v_mul_f32 v%d, v%d, v%d" % (O + r, O + r, 8 + 2 * X))
            for r in range(5):
                k.e("v_cvt_pk_bf16_f32 v%d, v%d, v%d" % (O + r, O + 2 * r, O + 2 * r + 1))
        k.e("v_mov_b32 v48, v%d" % (OA + 4))
        for r in (49, 50, 51):
            k.e("v_mov_b32 v%d, 0" % r)
        k.e("s_nop 1")
        for O in (OA, OB):
            k.e("v_permlane32_swap_b32 v%d, v%d" % (O, O + 2))
            k.e("v_permlane32_swap_b32 v%d, v%d" % (O + 1, O + 3))
        k.e("v_permlane32_swap_b32 v48, v%d" % (OB + 4))
        k.e("s_mov_b32 s35, 49152")
        k.e("s_nop 1")
        k.e("buffer_store_dwordx4 %s, v52, s[%d:%d], 0 offen sc1" % (vr(OA, 4), SO, SO + 3))
        k.e("buffer_store_dwordx4 %s, v52, s[%d:%d], s35 offen sc1" % (vr(OB, 4), SO, SO + 3))
        k.e("buffer_store_dwordx4 v[48:51], v53, s[%d:%d], 0 offen sc1" % (SO, SO + 3))
        k.e("s_lshl_b32 s6, s5, 5")
        k.e("s_add_u32 s6, s6, s4")
        k.stamp()
        publish(k, F_O, 6)
    else:
        k.e("s_lshl_b32 s34, s5, 8")
        k.e("s_lshl_b32 s35, s%d, 6" % S_W)
        k.e("s_add_u32 s34, s34, s35")
        k.e("v_and_b32 v2, 31, v1")
        k.e("v_add_u32 v2, s34, v2")
        k.e("v_lshrrev_b32 v3, 4, v2")
        k.e("v_mul_u32_u24 v3, 18432, v3")
        k.e("v_and_b32 v2, 15, v2")
        k.e("v_lshlrev_b32 v2, 4, v2")
        k.e("v_add_u32 v2, v2, v3")
        k.e("s_mul_i32 s35, s4, 18")
        k.e("v_lshrrev_b32 v3, 5, v1")
        k.e("v_lshlrev_b32 v3, 2, v3")
        k.e("v_add_u32 v3, s35, v3")
        AD = 48
        for r, dd in enumerate((0, 2, 8, 10, 16)):
            k.e("v_add_u32 v4, %d, v3" % dd)
            k.e("v_lshrrev_b32 v5, 5, v4")
            k.e("v_lshlrev_b32 v5, 10, v5")
            k.e("v_bfe_u32 v6, v4, 3, 2")
            k.e("v_lshlrev_b32 v6, 8, v6")
            k.e("v_and_b32 v4, 7, v4")
            k.e("v_lshlrev_b32 v4, 1, v4")
            k.e("v_add3_u32 v4, v4, v5, v6")
            k.e("v_add_u32 v%d, v4, v2" % (AD + r))
        k.e("s_mov_b32 s35, 36864")
        for X, O in ((0, OA), (1, OB)):
            so = "0" if X == 0 else "s35"
            for r in range(10):
                k.e("v_mul_f32 v%d, v%d, v%d" % (O + r, O + r, 8 + 2 * X))
            for r in range(5):
                k.e("v_cvt_pk_bf16_f32 v%d, v%d, v%d" % (O + r, O + 2 * r, O + 2 * r + 1))
            for r in range(4):
                k.e("buffer_store_dword v%d, v%d, s[%d:%d], %s offen" % (O + r, AD + r, SO, SO + 3, so))
            k.e("s_mov_b64 exec, s[%d:%d]" % (LOMASK, LOMASK + 1))
            k.e("buffer_store_dword v%d, v%d, s[%d:%d], %s offen" % (O + 4, AD + 4, SO, SO + 3, so))
            k.e("s_mov_b64 exec, -1")
    k.dump(kidx)
    k.e("s_branch %s" % nxt if nxt else "s_endpgm")
    k.label("ka_fallback")
    k.e("s_mov_b32 s%d, 1" % S_FLAG)
    k.e("v_mov_b32 v%d, 0" % (QA + 5))
    k.e("v_mov_b32 v%d, 0" % (QB + 5))
    k.e("v_mov_b32 v6, 0xff800000")
    k.e("v_mov_b32 v7, 0xff800000")
    k.e("s_add_u32 s38, s%d, 49152" % S_WB)
    k.e("v_lshlrev_b32 v12, 4, v1")
    k.e("v_add_u32 v13, s38, v%d" % VKB)
    k.e("v_add_u32 v14, s38, v%d" % VVB)
    for ps in (0, 1):
        k.e("s_mov_b32 s%d, s33" % S_DOFF)
        k.e("s_mov_b32 s%d, 64" % S_CNT)
        k.label("ka_fb%d" % ps)
        k.e("s_mov_b32 m0, s38")
        k.e("s_nop 0")
        for i in range(4):
            k.e("buffer_load_dwordx4 v12, s[%d:%d], s%d offen offset:%d lds" % (SB, SB + 3, S_DOFF, i * 1024))
        k.e("s_add_u32 s%d, s%d, 4096" % (S_DOFF, S_DOFF))
        k.e("s_waitcnt vmcnt(0)")
        ldk(0, 13, 0)
        if ps:
            ldv(0, 14, 0)
        k.e("s_waitcnt lgkmcnt(0)")
        for S, Q in ((SAq, QA), (SBq, QB)):
            k.e(qk(S, 0, Q, 0))
            k.e(qk(S, 0, Q, 1))
        k.e("s_nop 7")
        k.e("s_nop 7")
        if ps == 0:
            rowmax_patch(SAq, QA, False, 6)
            rowmax_patch(SBq, QB, False, 7)
        else:
            for S, P in ((SAq, PA), (SBq, PB)):
                for o in softmax_ops(S, P):
                    k.e(o)
            k.e("s_nop 1")
            for O, P in ((OA, PA), (OB, PB)):
                k.e(pv(O, 0, P, 0))
                k.e(pv(O, 0, P, 1))
        k.e("s_sub_u32 s%d, s%d, 1" % (S_CNT, S_CNT))
        k.e("s_cmp_lg_u32 s%d, 0" % S_CNT)
        k.e("s_cbranch_scc1 ka_fb%d" % ps)
        if ps == 0:
            patch(6, QA)
            patch(7, QB)
            for r in range(32):
                k.e("v_mov_b32 v%d, 0" % (OA + r))
            k.e("s_nop 1")
    k.e("s_branch ka_fin")


def mixed_kernel(name, half, kidx, gemm, nv, lds):
    k = K(name)
    load_args(k)
    prologue_ids(k)
    k.e("s_cmp_ge_u32 s2, 512")
    k.e("s_cbranch_scc1 %s_exit" % name)
    k.e("s_waitcnt lgkmcnt(0)")
    if "noattn" in sys.argv:
        k.e("s_cmp_lt_u32 s2, 256")
        k.e("s_cbranch_scc1 %s_exit" % name)
    k.e("s_cmp_lt_u32 s2, 256")
    k.e("s_cbranch_scc1 %s_attn" % name)
    if "nogemm" in sys.argv:
        k.e("s_branch %s_exit" % name)
    k.priok = None
    for f in sys.argv:
        if f.startswith("prio"):
            k.priok = int(f[4:])
            k.e("s_setprio 3")
    gemm(k)
    k.label(name + "_attn")
    k.vm = []
    k.lg = []
    attn(k, half, kidx)
    k.label(name + "_exit")
    k.e("s_endpgm")
    return k, nv, lds, 512


def k2():
    return mixed_kernel("k2", 0, 1, k2_gemm1, 252, 65536)


NSLAB = 4


def k3_gemm2(k, fused=False):
    g = G(4, 3, 2, 1, 4)
    k.e("s_and_b32 s5, s2, 3")
    k.e("s_bfe_u32 s3, s2, 0x10002")
    k.e("s_lshl_b32 s3, s3, 3")
    k.e("s_bfe_u32 s4, s2, 0x30005")
    k.e("s_add_u32 s3, s3, s4")
    k.e("s_lshl_b32 s3, s3, 3")
    k.e("s_bfe_u32 s4, s2, 0x20003")
    k.e("s_lshr_b32 s6, s%d, 1" % S_W)
    k.e("s_and_b32 s7, s%d, 1" % S_W)
    k.e("s_lshl_b32 s28, s5, 1")
    k.e("s_add_u32 s28, s28, s6")
    k.srd(SA, P_WS, WS_H, SZ_H)
    k.srd(SB, P_W2, 0, 4608 * 576 * 2)
    k.e("s_mul_i32 s%d, s28, %d" % (S_BOFF, 576 * 1152))
    k.e("s_mul_i32 s29, s4, 288")
    k.e("s_add_u32 s%d, s%d, s29" % (S_BOFF, S_BOFF))
    k.e("s_mul_i32 s%d, s28, %d" % (S_AOFF, 18 * 1024))
    k.e("s_lshl_b32 s28, s7, 2")
    k.e("s_add_u32 s3, s3, s28")
    k.e("s_mul_i32 s28, s3, 147456")
    k.e("v_lshlrev_b32 v2, 4, v1")
    k.e("v_add_u32 v2, s28, v2")
    for i in range(4):
        k.e("v_add_u32 v%d, %d, v2" % (g.VA + i, i * 147456))
    gemm_setup_b(k, g, 1152, False)
    wf = None
    if fused:
        k.e("s_lshr_b32 s39, s3, 4")
        k.e("s_lshl_b32 s39, s39, 5")
        k.e("s_lshl_b32 s28, s5, 3")
        k.e("s_add_u32 s39, s39, s28")
        wf = lambda: (await_flags(k, F_H, 39, 8), k.stamp())
    gemm_main(k, g, 18, 1152, False, True, waitfn=wf)
    k.c("---- exchange halves through LDS, add, store f32 partial tile")
    k.srd(SO, P_WS, WS_P, NSLAB * SLAB)
    if "t9" in sys.argv:
        k.c("the wave that holds this workgroup's own tail rows keeps them (its stores are dropped)")
        k.e("s_and_b32 s28, s5, 1")
        k.e("s_lshl_b32 s28, s28, 1")
        k.e("s_lshr_b32 s29, s5, 1")
        k.e("s_or_b32 s28, s28, s29")
        k.e("s_cmp_eq_u32 s28, s%d" % S_W)
        k.e("s_cselect_b32 s37, 1, 0")
        k.e("s_cselect_b32 s%d, 0, s%d" % (SO + 2, SO + 2))
    k.e("v_lshlrev_b32 v2, 4, v1")
    k.e("s_mul_i32 s28, s%d, 18432" % S_W)
    k.e("v_add_u32 v3, s28, v2")
    k.e("s_xor_b32 s29, s%d, 2" % S_W)
    k.e("s_mul_i32 s29, s29, 18432")
    k.e("v_add_u32 v4, s29, v2")
    k.e("s_lshl_b32 s28, s6, 1")
    k.e("s_add_u32 s28, s28, s3")
    k.e("s_lshl_b32 s28, s28, 2")
    k.e("s_add_u32 s28, s28, s4")
    k.e("s_mul_i32 s28, s28, 9216")
    k.e("s_mul_i32 s29, s5, %d" % SLAB)
    k.e("s_add_u32 s28, s28, s29")
    k.e("s_barrier")
    k.e("s_cmp_lg_u32 s6, 0")
    k.e("s_cbranch_scc1 k3_hi")
    for kh in (0, 1):
        if kh:
            k.label("k3_hi")
        give = [g.acc(mi, j) for mi in ((2, 3) if kh == 0 else (0, 1)) for j in range(9)]
        keep = [g.acc(mi, j) for mi in ((0, 1) if kh == 0 else (2, 3)) for j in range(9)]
        for n, a in enumerate(give):
            k.e("ds_write_b128 v3, %s offset:%d" % (vr(a, 4), n * 1024))
        k.e("s_waitcnt lgkmcnt(0)")
        k.e("s_barrier")
        for n, a in enumerate(give):
            k.e("ds_read_b128 %s, v4 offset:%d" % (vr(a, 4), n * 1024))
            if n >= 8:
                m = n - 8
                k.e("s_waitcnt lgkmcnt(8)")
                k3_fin(k, keep, give, m)
        for m in range(10, 18):
            k.e("s_waitcnt lgkmcnt(%d)" % (17 - m))
            k3_fin(k, keep, give, m)
        k.dump(2)
        if "t8" in sys.argv:
            k3_tail4(k, kh)
        elif "t4" in sys.argv:
            k3_tail(k, kh)
        else:
            k.e("s_endpgm")


def k3_tail(k, kh):
    k.vm = []
    k.lg = []
    k.e("s_lshr_b32 s3, s3, 3")
    k.e("s_lshl_b32 s39, s3, 2")
    k.e("s_add_u32 s39, s39, s4")
    k.e("s_lshl_b32 s39, s39, 2")
    k.e("s_add_u32 s38, s39, s5")
    if "tp0" in sys.argv:
        k.e("s_setprio 0")
    publish(k, F_P, 38)
    k.stamp()
    DYN = "td" in sys.argv
    T5 = "t5" in sys.argv
    g = G(2, int(opt("tla", 4)), 1, 1, 4 if T5 else 3, AR=4 if DYN else 12 if "t6" in sys.argv else 13, PAD=True)
    STR = g.NBUF * g.BUF
    XT = 0 if T5 else 2 * STR
    XO = g.BUF if T5 else 0
    SG = 32
    k.e("s_lshl_b32 s3, s3, 3")
    k.e("s_lshl_b32 s28, s5, 1")
    k.e("s_add_u32 s3, s3, s28")
    k.srd(SG, P_WS, WS_G, 8192)
    k.e("s_mul_i32 s40, s4, 288")
    k.e("s_and_b32 s41, s%d, 1" % S_W)
    k.e("s_mul_i32 s43, s41, %d" % (STR if T5 else 9216))
    k.e("s_add_u32 s41, s41, s3")
    k.e("v_lshlrev_b32 v10, 4, v1")
    T9 = "t9" in sys.argv
    if T9:
        assert not T5
        sk = k.newlabel("own")
        k.e("s_cmp_eq_u32 s37, 0")
        k.e("s_cbranch_scc1 %s" % sk)
        k.e("v_add_u32 v9, %d, v10" % XT)
        for m in range(18):
            k.e("ds_write_b128 v9, %s offset:%d" % (vr(16 + 72 * kh + 4 * m, 4), m * 1024))
        k.e("s_waitcnt lgkmcnt(0)")
        k.label(sk)
        k.e("s_barrier")
    k.e("s_add_u32 s43, s43, %d" % XT)
    k.e("v_add_u32 v15, s43, v10")
    k.e("s_lshl_b32 s42, s41, 4")
    k.e("v_and_b32 v11, 15, v1")
    k.e("v_add_u32 v11, s42, v11")
    k.e("v_lshrrev_b32 v12, 4, v1")
    k.e("v_lshlrev_b32 v12, 3, v12")
    k.e("v_lshlrev_b32 v13, 2, v11")
    k.vmem("buffer_load_dword v14, v13, s[%d:%d], 0 offen" % (SG, SG + 3), "g")
    if kh == 0:
        k.srd(SA, P_WS, WS_O, 128 * 24576)
        k.srd(SB, P_WO, 0, 576 * 576 * 2)
        k.srd(SO, P_OUT, 0, SZ_X)
        k.e("s_mul_i32 s%d, s%d, %d" % (S_BOFF, S_W, 288 * 1152))
        k.e("s_add_u32 s%d, s%d, s40" % (S_BOFF, S_BOFF))
        k.e("s_mul_i32 s%d, s%d, %d" % (S_AOFF, S_W, 12 * 1024))
        k.e("v_mul_u32_u24 v11, 1152, v11")
        k.e("v_add_u32 v11, v11, v12")
        k.e("s_mul_i32 s28, s3, 24576")
        k.e("v_add_u32 v%d, s28, v10" % g.VA)
        k.e("v_add_u32 v%d, 24576, v%d" % (g.VA + 1, g.VA))
        k.e("s_mul_i32 s28, s%d, %d" % (S_W, STR))
        k.e("s_add_u32 s28, s28, %d" % XO)
        k.e("v_add_u32 v13, s28, v10")
        k.e("s_xor_b32 s28, s%d, 1" % S_W)
        k.e("s_mul_i32 s28, s28, %d" % STR)
        k.e("s_add_u32 s28, s28, %d" % XO)
        k.e("v_add_u32 v12, s28, v10")
        gemm_setup_b(k, g, 1152, True)
        k.e("s_lshr_b32 s38, s3, 4")
        k.e("s_lshl_b32 s38, s38, 5")
        if DYN:
            S_REM, S_SEL, S_RDY, S_B0, S_A0 = 36, 37, 39, 93, 94
            k.e("s_mov_b32 s%d, s%d" % (S_B0, S_BOFF))
            k.e("s_mov_b32 s%d, s%d" % (S_A0, S_AOFF))
            k.e("s_mov_b32 s%d, 0x1111" % S_REM)
            nonce_get(k)
            k.e("s_lshl_b32 s28, s%d, 4" % S_W)
            k.e("s_add_u32 s28, s28, s38")
            k.e("s_lshl_b32 s28, s28, 2")
            k.e("s_add_u32 s28, s28, %d" % F_O)
            k.e("v_lshlrev_b32 v9, 2, v1")
            k.e("v_add_u32 v9, s28, v9")
            for r in range(72):
                k.e("v_mov_b32 v%d, 0" % (g.ACC + r))
            k.e("s_mov_b32 s%d, %d" % (S_SP, SPIN))

            def poll(mask, out):
                lp = k.newlabel("tp")
                d = k.newlabel("tpd")
                k.e("s_mov_b64 exec, 0xffff")
                k.e("s_mov_b32 s%d, %d" % (S_SP, SPIN))
                k.label(lp)
                k.e("buffer_load_dword v2, v9, s[%d:%d], 0 offen sc1" % (SF, SF + 3))
                k.e("s_waitcnt vmcnt(0)")
                k.e("v_cmp_eq_u32 vcc, s%d, v2" % S_NONCE)
                k.e("s_nop 1")
                k.e("s_mov_b32 s28, vcc_lo")
                k.e("s_lshr_b32 s29, s28, 1")
                k.e("s_and_b32 s28, s28, s29")
                k.e("s_lshr_b32 s29, s28, 2")
                k.e("s_and_b32 s28, s28, s29")
                k.e("s_and_b32 s%d, s28, s%d" % (out, mask))
                k.e("s_cbranch_scc1 %s" % d)
                k.e("s_mov_b32 s%d, s%d" % (out, mask))
                k.e("s_sub_u32 s%d, s%d, 1" % (S_SP, S_SP))
                k.e("s_cbranch_scc1 %s" % d)
                k.e("s_sleep %d" % int(opt("slp", 1)))
                k.e("s_branch %s" % lp)
                k.label(d)
                k.e("s_mov_b64 exec, -1")
            k.label("kt_loop")
            k.vm = []
            k.lg = []
            k.e("s_mov_b32 s%d, s%d" % (S_RDY, S_REM))
            k.e("s_bcnt1_i32_b32 s28, s%d" % S_REM)
            k.e("s_cmp_eq_u32 s28, 1")
            k.e("s_cbranch_scc1 kt_have")
            poll(S_REM, S_RDY)
            k.label("kt_have")
            k.e("s_ff1_i32_b32 s28, s%d" % S_RDY)
            k.e("s_lshl_b32 s%d, 1, s28" % S_SEL)
            k.e("s_mul_i32 s29, s28, %d" % (18 * 1152))
            k.e("s_add_u32 s%d, s%d, s29" % (S_BOFF, S_B0))
            k.e("s_mul_i32 s29, s28, 768")
            k.e("s_add_u32 s%d, s%d, s29" % (S_AOFF, S_A0))
            gemm_main(k, g, 3, 1152, True, True, waitfn=lambda: (poll(S_SEL, S_RDY), k.stamp()), zero=False)
            k.e("s_andn2_b32 s%d, s%d, s%d" % (S_REM, S_REM, S_SEL))
            k.e("s_cbranch_scc1 kt_loop")
        elif "t6" in sys.argv:
            S_REM = 36

            def loader():
                lp = k.newlabel("tl")
                go = k.newlabel("tlg")
                nonce_get(k)
                k.e("s_lshl_b32 s28, s%d, 4" % S_W)
                k.e("s_add_u32 s28, s28, s38")
                k.e("s_lshl_b32 s28, s28, 2")
                k.e("s_add_u32 s28, s28, %d" % F_O)
                k.e("v_lshlrev_b32 v3, 2, v1")
                k.e("v_add_u32 v3, s28, v3")
                k.e("s_mov_b32 s%d, 0x1111" % S_REM)
                k.e("s_mov_b32 s%d, %d" % (S_SP, SPIN))
                k.label(lp)
                k.e("s_mov_b64 exec, 0xffff")
                k.e("buffer_load_dword v2, v3, s[%d:%d], 0 offen sc1" % (SF, SF + 3))
                k.e("s_waitcnt vmcnt(0)")
                k.e("v_cmp_eq_u32 vcc, s%d, v2" % S_NONCE)
                k.e("s_mov_b64 exec, -1")
                k.e("s_nop 0")
                k.e("s_mov_b32 s28, vcc_lo")
                k.e("s_lshr_b32 s29, s28, 1")
                k.e("s_and_b32 s28, s28, s29")
                k.e("s_lshr_b32 s29, s28, 2")
                k.e("s_and_b32 s28, s28, s29")
                k.e("s_and_b32 s29, s28, s%d" % S_REM)
                k.e("s_cbranch_scc1 %s" % go)
                k.e("s_mov_b32 s29, s%d" % S_REM)
                k.e("s_sub_u32 s%d, s%d, 1" % (S_SP, S_SP))
                k.e("s_cbranch_scc1 %s" % go)
                k.e("s_sleep %d" % int(opt("slp", 1)))
                k.e("s_branch %s" % lp)
                k.label(go)
                for gr in range(4):
                    sk = k.newlabel("tls")
                    k.e("s_bitcmp1_b32 s29, %d" % (4 * gr))
                    k.e("s_cbranch_scc0 %s" % sk)
                    k.e("s_add_u32 s30, s%d, %d" % (S_AOFF, gr * 3072))
                    for ks in range(3):
                        for i in range(2):
                            k.e("buffer_load_dwordx4 %s, v%d, s[%d:%d], s30 offen offset:%d sc1" % (vr(g.a(3 * gr + ks, i), 4), g.VA + i, SA, SA + 3, ks * 1024))
                    k.label(sk)
                k.e("s_andn2_b32 s%d, s%d, s29" % (S_REM, S_REM))
                k.e("s_cbranch_scc1 %s" % lp)
                k.stamp()
                k.e("s_waitcnt vmcnt(0)")
                k.vm = []
            for r in range(72):
                k.e("v_mov_b32 v%d, 0" % (g.ACC + r))
            if "t3" in sys.argv:
                for n in range(27):
                    k.e("ds_write_b128 v13, %s offset:%d" % (vr(g.ACC, 4), n * 1024))
                k.e("s_waitcnt lgkmcnt(0)")
            gemm_main(k, g, 12, 1152, True, True, waitfn=loader, aext=True, zero=False, lazy="t7" in sys.argv,
                      atchunk=(lambda c: k.e("s_barrier") if c == 9 else None) if T5 else None)
        else:
            gemm_main(k, g, 12, 1152, True, True, waitfn=lambda: (await_solo(k, F_O, 38, 32), k.stamp()),
                      atchunk=(lambda c: k.e("s_barrier") if c == 9 else None) if T5 else None)
        k.wait(vm='*')
        k.e("s_cmp_lg_u32 s%d, 0" % S_W)
        k.e("s_cbranch_scc1 kt_w1")
        T = 88
        for w in (0, 1):
            if w:
                k.label("kt_w1")
            for jj in range(9):
                k.e("ds_write_b128 v13, %s offset:%d" % (vr(g.acc(1 - w, jj), 4), jj * 1024))
            k.e("s_waitcnt lgkmcnt(0)")
            k.e("s_barrier")
            for jj in range(9):
                k.e("ds_read_b128 %s, v12 offset:%d" % (vr(g.acc(1 - w, jj), 4), jj * 1024))
            for jj in range(9):
                k.e("ds_read_b128 %s, v15 offset:%d" % (vr(T + 4 * jj, 4), jj * 1024))
            for jj in range(9):
                a = g.acc(w, jj)
                b = g.acc(1 - w, jj)
                k.e("s_waitcnt lgkmcnt(%d)" % min(15, 17 - jj))
                k.e("v_pk_add_f32 %s, %s, %s" % (vr(a, 2), vr(a, 2), vr(b, 2)))
                k.e("v_pk_add_f32 %s, %s, %s" % (vr(a + 2, 2), vr(a + 2, 2), vr(b + 2, 2)))
                rnd2(k, a, a + 1)
                rnd2(k, a + 2, a + 3)
                for r in range(4):
                    k.e("v_mul_f32 v%d, v14, v%d" % (a + r, a + r))
                rnd2(k, a, a + 1)
                rnd2(k, a + 2, a + 3)
            for jj in range(9):
                a = g.acc(w, jj)
                b = T + 4 * jj
                k.e("s_waitcnt lgkmcnt(%d)" % (8 - jj))
                k.e("v_pk_add_f32 %s, %s, %s" % (vr(a, 2), vr(a, 2), vr(b, 2)))
                k.e("v_pk_add_f32 %s, %s, %s" % (vr(a + 2, 2), vr(a + 2, 2), vr(b + 2, 2)))
                k.e("v_cvt_pk_bf16_f32 v%d, v%d, v%d" % (a, a, a + 1))
                k.e("v_cvt_pk_bf16_f32 v%d, v%d, v%d" % (a + 1, a + 2, a + 3))
                k.e("buffer_store_dwordx2 %s, v11, s[%d:%d], s40 offen offset:%d" % (vr(a, 2), SO, SO + 3, jj * 32))
            ns = k.nstamp
            k.dump(3)
            k.nstamp = ns
            k.e("s_endpgm")
        return
    SP = SA
    SL, BIAS = 16, 160
    k.srd(SP, P_WS, WS_P, NSLAB * SLAB)
    k.srd(SX, P_B2, 0, 1152)
    k.srd(SB, P_WO, 0, 576 * 576 * 2)
    for jj in range(9):
        k.e("buffer_load_dwordx2 %s, v12, s[%d:%d], s40 offen offset:%d" % (vr(BIAS + 2 * jj, 2), SX, SX + 3, jj * 32))
    k.c("pull this die's copy of Wo into its L2 (read only, results unused)")
    k.e("s_bfe_u32 s28, s2, 0x50003")
    k.e("s_lshl_b32 s28, s28, 1")
    k.e("s_and_b32 s29, s%d, 1" % S_W)
    k.e("s_add_u32 s28, s28, s29")
    k.e("s_lshl_b32 s28, s28, 10")
    for i in range(11):
        k.e("buffer_load_dwordx4 %s, v10, s[%d:%d], s28 offen" % (vr(SL, 4), SB, SB + 3))
        if i < 10:
            k.e("s_add_u32 s28, s28, 65536")
    await_solo(k, F_P, 39, 4)
    k.e("s_lshl_b32 s42, s41, 2")
    k.e("s_add_u32 s42, s42, s4")
    k.e("s_mul_i32 s42, s42, 9216")
    for sl in range(4 if T9 else 0):
        lo = k.newlabel("slo")
        dn = k.newlabel("sld")
        k.e("s_cmp_eq_u32 s5, %d" % sl)
        k.e("s_cbranch_scc1 %s" % lo)
        k.e("s_add_u32 s28, s42, %d" % (sl * SLAB))
        k.e("s_add_u32 s29, s28, 4096")
        k.e("s_add_u32 s30, s28, 8192")
        for jj in range(9):
            k.e("buffer_load_dwordx4 %s, v10, s[%d:%d], s%d offen offset:%d sc1" % (vr(SL + (sl * 9 + jj) * 4, 4), SP, SP + 3, 28 + jj // 4, (jj % 4) * 1024))
        k.e("s_branch %s" % dn)
        k.label(lo)
        for jj in range(9):
            k.e("ds_read_b128 %s, v15 offset:%d" % (vr(SL + (sl * 9 + jj) * 4, 4), jj * 1024))
        k.label(dn)
    for n in range(0 if T9 else 36):
        sl, jj = divmod(n, 9)
        k.e("buffer_load_dwordx4 %s, v10, s[%d:%d], s42 offen offset:%d sc1%s" % (vr(SL + n * 4, 4), SP, SP + 3, (jj % 4) * 1024, " nt" if "tnt" in sys.argv else ""))
        if jj % 4 == 3:
            k.e("s_add_u32 s42, s42, 4096")
        if jj == 8:
            k.e("s_add_u32 s42, s42, %d" % (SLAB - 8192))
    k.e("v_sub_f32 v6, 1.0, v14")
    bf16_round(k, 6, 6, 6)
    k.e("s_waitcnt vmcnt(0) lgkmcnt(0)")
    BT = 180
    for jj in range(9):
        b = SL + jj * 4
        k.e("v_lshlrev_b32 v%d, 16, v%d" % (BT, BIAS + 2 * jj))
        k.e("v_and_b32 v%d, 0xffff0000, v%d" % (BT + 1, BIAS + 2 * jj))
        k.e("v_lshlrev_b32 v%d, 16, v%d" % (BT + 2, BIAS + 1 + 2 * jj))
        k.e("v_and_b32 v%d, 0xffff0000, v%d" % (BT + 3, BIAS + 1 + 2 * jj))
        for x, y in ((b, b + 36), (b + 72, b + 108), (b, b + 72)):
            for h in (0, 2):
                k.e("v_pk_add_f32 %s, %s, %s" % (vr(x + h, 2), vr(x + h, 2), vr(y + h, 2)))
        rnd2(k, b, b + 1)
        rnd2(k, b + 2, b + 3)
        for h in (0, 2):
            k.e("v_pk_add_f32 %s, %s, %s" % (vr(b + h, 2), vr(b + h, 2), vr(BT + h, 2)))
        rnd2(k, b, b + 1)
        rnd2(k, b + 2, b + 3)
        for r in range(4):
            k.e("v_mul_f32 v%d, v6, v%d" % (b + r, b + r))
        rnd2(k, b, b + 1)
        rnd2(k, b + 2, b + 3)
        if not T5:
            k.e("ds_write_b128 v15, %s offset:%d" % (vr(b, 4), jj * 1024))
    if T5:
        k.e("s_barrier")
        for jj in range(9):
            k.e("ds_write_b128 v15, %s offset:%d" % (vr(SL + jj * 4, 4), jj * 1024))
    k.e("s_waitcnt lgkmcnt(0)")
    k.e("s_barrier")
    k.e("s_endpgm")


def k3_tail4(k, kh):
    k.vm = []
    k.lg = []
    k.e("s_lshr_b32 s3, s3, 3")
    k.e("s_lshl_b32 s39, s3, 2")
    k.e("s_add_u32 s39, s39, s4")
    k.e("s_lshl_b32 s39, s39, 2")
    k.e("s_add_u32 s38, s39, s5")
    if "tpe" in sys.argv:
        k.e("s_setprio 0")
    publish(k, F_P, 38)
    k.srd(SF, P_DBG, 0, 256)
    k.e("buffer_load_dword v0, off, s[%d:%d], 0 sc1" % (SF, SF + 3))
    k.stamp()
    g = G(2, 7, 1, 1, 2, AR=11, PAD=True)
    R = g.A + 48
    CT = g.FREE
    assert CT == 238
    STR = g.NBUF * g.BUF
    SG, S_REM = 32, 36
    HALF = 8 * 288
    def loader(single):
        lp = k.newlabel("tl")
        go = k.newlabel("tlg")
        dn = k.newlabel("tld")
        if single or not kh:
            if not kh:
                nonce_fast(k)
            k.e("s_lshl_b32 s28, s%d, 3" % S_W)
            k.e("s_add_u32 s28, s28, s38")
            k.e("s_lshl_b32 s28, s28, 2")
            k.e("s_add_u32 s28, s28, %d" % F_O)
            k.e("v_lshlrev_b32 v3, 2, v1")
            k.e("v_add_u32 v3, s28, v3")
            k.e("s_mov_b32 s%d, 0x11" % S_REM)
            k.e("s_mov_b32 s%d, %d" % (S_SP, SPIN))
        else:
            k.e("s_cmp_eq_u32 s%d, 0" % S_REM)
            k.e("s_cbranch_scc1 %s" % dn)
        k.label(lp)
        k.e("s_mov_b64 exec, 0xff")
        k.e("buffer_load_dword v2, v3, s[%d:%d], 0 offen sc1" % (SF, SF + 3))
        k.e("s_waitcnt vmcnt(0)")
        k.e("v_cmp_eq_u32 vcc, s%d, v2" % S_NONCE)
        k.e("s_mov_b64 exec, -1")
        k.e("s_nop 0")
        k.e("s_mov_b32 s28, vcc_lo")
        k.e("s_lshr_b32 s29, s28, 1")
        k.e("s_and_b32 s28, s28, s29")
        k.e("s_lshr_b32 s29, s28, 2")
        k.e("s_and_b32 s28, s28, s29")
        k.e("s_and_b32 s29, s28, s%d" % S_REM)
        if not single:
            k.e("s_cbranch_scc1 %s" % go)
            k.e("s_mov_b32 s29, s%d" % S_REM)
            k.e("s_sub_u32 s%d, s%d, 1" % (S_SP, S_SP))
            k.e("s_cbranch_scc1 %s" % go)
            k.e("s_sleep %d" % int(opt("slp", 1)))
            k.e("s_branch %s" % lp)
            k.label(go)
        for gr in range(2):
            sk = k.newlabel("tls")
            k.e("s_bitcmp1_b32 s29, %d" % (4 * gr))
            k.e("s_cbranch_scc0 %s" % sk)
            k.e("s_add_u32 s30, s%d, %d" % (S_AOFF, gr * 3072))
            for ks in range(3):
                for i in range(2):
                    k.e("buffer_load_dwordx4 %s, v%d, s[%d:%d], s30 offen offset:%d sc1" % (vr(g.a(3 * gr + ks, i), 4), g.VA + i, SA, SA + 3, ks * 1024))
            k.label(sk)
        k.e("s_andn2_b32 s%d, s%d, s29" % (S_REM, S_REM))
        if not single:
            k.e("s_cbranch_scc1 %s" % lp)
        k.label(dn)

    k.e("s_lshl_b32 s3, s3, 3")
    k.e("s_lshl_b32 s28, s5, 1")
    k.e("s_add_u32 s3, s3, s28")
    k.e("s_mul_i32 s40, s4, 288")
    k.e("v_lshlrev_b32 v10, 4, v1")
    k.srd(SB, P_WO, 0, 576 * 576 * 2)
    k.e("s_mul_i32 s%d, s%d, %d" % (S_BOFF, S_W, 144 * 1152))
    k.e("s_add_u32 s%d, s%d, s40" % (S_BOFF, S_BOFF))
    k.e("s_mul_i32 s%d, s%d, %d" % (S_AOFF, S_W, 6 * 1024))
    k.e("s_mul_i32 s28, s3, 24576")
    k.e("v_add_u32 v%d, s28, v10" % g.VA)
    k.e("v_add_u32 v%d, 24576, v%d" % (g.VA + 1, g.VA))
    k.e("s_mul_i32 s28, s%d, %d" % (S_W, STR))
    k.e("v_add_u32 v13, s28, v10")
    gemm_setup_b(k, g, 1152, True)
    for c in (0, 1):
        for op in gemm_dma_ops(k, g, c, 1152):
            op()
    if "tp0" in sys.argv:
        k.e("s_setprio 0")
    k.e("s_lshr_b32 s38, s3, 4")
    k.e("s_lshl_b32 s38, s38, 5")
    if kh:
        SP = SA
        SL, BIAS = 16, 238
        Q = [16 + 4 * i for i in range(18)] + [136 + 4 * i for i in range(18)]
        k.srd(SG, P_WS, WS_G, 8192)
        k.e("s_and_b32 s41, s%d, 1" % S_W)
        k.e("s_add_u32 s41, s41, s3")
        k.e("s_lshl_b32 s42, s41, 4")
        k.e("v_and_b32 v11, 15, v1")
        k.e("v_add_u32 v11, s42, v11")
        k.e("v_lshrrev_b32 v12, 4, v1")
        k.e("v_lshlrev_b32 v12, 3, v12")
        k.e("v_lshlrev_b32 v15, 2, v11")
        k.e("buffer_load_dword v14, v15, s[%d:%d], 0 offen" % (SG, SG + 3))
        k.e("v_mul_u32_u24 v11, 1152, v11")
        k.e("v_add_u32 v11, v11, v12")
        k.srd(SP, P_WS, WS_P, NSLAB * SLAB)
        k.srd(SX, P_B2, 0, 1152)
        k.srd(SO, P_OUT, 0, SZ_X)
        for jj in range(9):
            k.e("buffer_load_dwordx2 %s, v12, s[%d:%d], s40 offen offset:%d" % (vr(BIAS + 2 * jj, 2), SX, SX + 3, jj * 32))
        k.c("pull this die's copy of Wo into its L2 (read only, results unused)")
        k.e("s_bfe_u32 s28, s2, 0x50003")
        k.e("s_lshl_b32 s28, s28, 1")
        k.e("s_and_b32 s29, s%d, 1" % S_W)
        k.e("s_add_u32 s28, s28, s29")
        k.e("s_lshl_b32 s28, s28, 10")
        for i in range(11):
            k.e("buffer_load_dwordx4 %s, v10, s[%d:%d], s28 offen" % (vr(SL, 4), SB, SB + 3))
            if i < 10:
                k.e("s_add_u32 s28, s28, 65536")
        await_solo(k, F_P, 39, 4, True)
        k.stamp()
        k.e("s_lshl_b32 s42, s41, 2")
        k.e("s_add_u32 s42, s42, s4")
        k.e("s_mul_i32 s42, s42, 9216")
        for n in range(36):
            sl, jj = divmod(n, 9)
            k.e("buffer_load_dwordx4 %s, v10, s[%d:%d], s42 offen offset:%d sc1" % (vr(Q[4 * jj + sl], 4), SP, SP + 3, (jj % 4) * 1024))
            if jj % 4 == 3:
                k.e("s_add_u32 s42, s42, 4096")
            if jj == 8:
                k.e("s_add_u32 s42, s42, %d" % (SLAB - 8192))
        k.e("v_sub_f32 v6, 1.0, v14")
        bf16_round(k, 6, 6, 6)
        k.srd(SA, P_WS, WS_O, 128 * 24576)
        loader(True)
        k.stamp()
        k.vm = []
        for jj in range(9):
            b, b1, b2, b3 = Q[4 * jj:4 * jj + 4]
            k.e("v_lshlrev_b32 v4, 16, v%d" % (BIAS + 2 * jj))
            k.e("v_and_b32 v5, 0xffff0000, v%d" % (BIAS + 2 * jj))
            k.e("v_lshlrev_b32 v8, 16, v%d" % (BIAS + 1 + 2 * jj))
            k.e("v_and_b32 v9, 0xffff0000, v%d" % (BIAS + 1 + 2 * jj))
            for x, y in ((b, b1), (b2, b3), (b, b2)):
                for h in (0, 2):
                    k.e("v_pk_add_f32 %s, %s, %s" % (vr(x + h, 2), vr(x + h, 2), vr(y + h, 2)))
            rnd2(k, b, b + 1)
            rnd2(k, b + 2, b + 3)
            k.e("v_pk_add_f32 %s, %s, v[4:5]" % (vr(b, 2), vr(b, 2)))
            k.e("v_pk_add_f32 %s, %s, v[8:9]" % (vr(b + 2, 2), vr(b + 2, 2)))
            rnd2(k, b, b + 1)
            rnd2(k, b + 2, b + 3)
            for r in range(4):
                k.e("v_mul_f32 v%d, v6, v%d" % (b + r, b + r))
            k.e("v_cvt_pk_bf16_f32 v%d, v%d, v%d" % (CT + 2 * jj, b, b + 1))
            k.e("v_cvt_pk_bf16_f32 v%d, v%d, v%d" % (CT + 2 * jj + 1, b + 2, b + 3))
    else:
        k.srd(SA, P_WS, WS_O, 128 * 24576)
        k.wait(vm='*')
    k.c("first weight chunk goes to registers, its buffer takes the third")
    for j in range(9):
        k.e("ds_read_b64_tr_b16 %s, v%d offset:%d" % (vr(R + 4 * j, 2), g.VL, j * 32))
        k.e("ds_read_b64_tr_b16 %s, v%d offset:%d" % (vr(R + 4 * j + 2, 2), g.VL, j * 32 + HALF))
    for r in range(72):
        k.e("v_mov_b32 v%d, 0" % (g.ACC + r))
    k.e("s_waitcnt lgkmcnt(0)")
    for op in gemm_dma_ops(k, g, 2, 1152):
        op()
    k.stamp()
    loader(False)
    if not kh:
        k.stamp()
    tiles = [(c, j) for c in (1, 2, 0, 3, 4, 5) for j in range(9)]
    LA = g.LA

    def bread(n):
        c, j = tiles[n]
        if c == 0:
            return
        if j == 0 and c >= 3:
            while q:
                q.pop(0)()
            k.wait(vm=("D", c))
        off = (c % 2) * g.BUF + j * 32
        b = g.b(n)
        k.ds("ds_read_b64_tr_b16 %s, v%d offset:%d" % (vr(b, 2), g.VL, off), ("B", n))
        k.ds("ds_read_b64_tr_b16 %s, v%d offset:%d" % (vr(b + 2, 2), g.VL, off + HALF), ("B", n))
    q = []
    k.vm = []
    k.lg = []
    for n in range(LA):
        bread(n)
    k.e("s_waitcnt vmcnt(0)")
    k.stamp()
    for n, (c, j) in enumerate(tiles):
        if n + LA < len(tiles):
            bread(n + LA)
        if q:
            q.pop(0)()
        if c:
            k.wait(lg=("B", n))
        b = g.b(n) if c else R + 4 * j
        for i in range(2):
            a = g.acc(i, j)
            k.e("v_mfma_f32_16x16x32_bf16 %s, %s, %s, %s" % (vr(a, 4), vr(b, 4), vr(g.a(c, i), 4), vr(a, 4)))
        if j == 8 and 1 <= c <= 3:
            q += gemm_dma_ops(k, g, c + 2, 1152)
    assert not q
    k.e("s_nop 7")
    k.e("s_nop 7")
    k.stamp()
    if kh == 0:
        for n in range(18):
            k.e("ds_write_b128 v13, %s offset:%d" % (vr(g.ACC + 4 * n, 4), n * 1024))
        k.e("s_waitcnt lgkmcnt(0)")
        k.e("s_barrier")
        k.dump(3, 7 if "d2" in sys.argv else 0)
        k.e("s_endpgm")
        return
    k.e("s_cmp_lg_u32 s%d, 2" % S_W)
    k.e("s_cbranch_scc1 kt_w3")
    T = 88
    for w in (0, 1):
        if w:
            k.label("kt_w3")
        for jj in range(9):
            k.e("ds_write_b128 v13, %s offset:%d" % (vr(g.acc(1 - w, jj), 4), (1 - w) * 9216 + jj * 1024))
        k.e("s_waitcnt lgkmcnt(0)")
        k.e("s_barrier")
        for jj in range(9):
            for n, src in enumerate((0, 1, 3 - w)):
                k.e("ds_read_b128 %s, v10 offset:%d" % (vr(T + 12 * jj + 4 * n, 4), src * STR + w * 9216 + jj * 1024))
        for jj in range(9):
            a = g.acc(w, jj)
            p = T + 12 * jj
            k.e("s_waitcnt lgkmcnt(%d)" % min(15, 24 - 3 * jj))
            for h in (0, 2):
                k.e("v_pk_add_f32 %s, %s, %s" % (vr(p + h, 2), vr(p + h, 2), vr(p + 4 + h, 2)))
                k.e("v_pk_add_f32 %s, %s, %s" % (vr(a + h, 2), vr(a + h, 2), vr(p + 8 + h, 2)))
            for h in (0, 2):
                k.e("v_pk_add_f32 %s, %s, %s" % (vr(a + h, 2), vr(a + h, 2), vr(p + h, 2)))
            rnd2(k, a, a + 1)
            rnd2(k, a + 2, a + 3)
            for r in range(4):
                k.e("v_mul_f32 v%d, v14, v%d" % (a + r, a + r))
            rnd2(k, a, a + 1)
            rnd2(k, a + 2, a + 3)
            k.e("v_lshlrev_b32 v%d, 16, v%d" % (p, CT + 2 * jj))
            k.e("v_and_b32 v%d, 0xffff0000, v%d" % (p + 1, CT + 2 * jj))
            k.e("v_lshlrev_b32 v%d, 16, v%d" % (p + 2, CT + 2 * jj + 1))
            k.e("v_and_b32 v%d, 0xffff0000, v%d" % (p + 3, CT + 2 * jj + 1))
            for h in (0, 2):
                k.e("v_pk_add_f32 %s, %s, %s" % (vr(a + h, 2), vr(a + h, 2), vr(p + h, 2)))
            k.e("v_cvt_pk_bf16_f32 v%d, v%d, v%d" % (a, a, a + 1))
            k.e("v_cvt_pk_bf16_f32 v%d, v%d, v%d" % (a + 1, a + 2, a + 3))
            k.e("buffer_store_dwordx2 %s, v11, s[%d:%d], s40 offen offset:%d" % (vr(a, 2), SO, SO + 3, jj * 32))
        if "d2" in sys.argv:
            ns = k.nstamp
            k.e("s_waitcnt vmcnt(0)")
            k.dump(3, 2)
            k.nstamp = ns
        k.e("s_endpgm")


def k3():
    return mixed_kernel("k3", 1, 2, k3_gemm2, 236, 73728)


def k23():
    k = K("k2")
    load_args(k)
    prologue_ids(k)
    k.e("s_cmp_ge_u32 s2, 512")
    k.e("s_cbranch_scc1 k2_exit")
    k.e("s_waitcnt lgkmcnt(0)")
    nonce_write(k)
    k.e("s_cmp_lt_u32 s2, 256")
    k.e("s_cbranch_scc1 k2_attn")
    k.priok = None
    if "gp" in sys.argv:
        k.e("s_setprio 3")
    k2_gemm1(k, True)
    k.priok = int(opt("g2p", -1))
    k3_gemm2(k, True)
    k.label("k2_attn")
    k.vm = []
    k.lg = []
    k.nstamp = 1
    if "a1" in sys.argv:
        attn(k, 0, 1, "k2_attn2")
        k.label("k2_attn2")
        k.e("s_barrier")
        attn(k, 1, 2)
    else:
        attn2(k, 1)
    k.label("k2_exit")
    k.e("s_endpgm")
    return k, 256 if "t8" in sys.argv else 252, 73728, 512


def k3_fin(k, keep, give, m):
    a, b = keep[m], give[m]
    k.e("v_pk_add_f32 %s, %s, %s" % (vr(a, 2), vr(a, 2), vr(b, 2)))
    k.e("v_pk_add_f32 %s, %s, %s" % (vr(a + 2, 2), vr(a + 2, 2), vr(b + 2, 2)))
    j = m % 9
    k.e("buffer_store_dwordx4 %s, v2, s[%d:%d], s28 offen offset:%d%s" % (vr(a, 4), SO, SO + 3, (j % 4) * 1024, " sc1"))
    if j % 4 == 3:
        k.e("s_add_u32 s28, s28, 4096")
    if j == 8:
        k.e("s_add_u32 s28, s28, %d" % (36864 - 8192))


def rnd2(k, x, y):
    k.e("v_cvt_pk_bf16_f32 v7, v%d, v%d" % (x, y))
    k.e("v_lshlrev_b32 v%d, 16, v7" % x)
    k.e("v_and_b32 v%d, 0xffff0000, v7" % y)


def k4():
    k = K("k4")
    load_args(k)
    prologue_ids(k)
    k.e("s_cmp_ge_u32 s2, 256")
    k.e("s_cbranch_scc1 k4_exit")
    k.e("s_waitcnt lgkmcnt(0)")
    g = G(2, 4, 1, 1, 4, AR=int(opt("oar", 3)))
    XCH = 8 * g.BUF
    SG = 36
    k.e("s_and_b32 s4, s2, 3")
    k.e("s_lshr_b32 s3, s2, 2")
    k.e("s_lshl_b32 s3, s3, 1")
    k.srd(SG, P_WS, WS_G, 8192)
    k.e("s_mul_i32 s40, s4, 288")
    k.e("s_and_b32 s41, s%d, 1" % S_W)
    k.e("s_mul_i32 s43, s41, %d" % (STR if T5 else 9216))
    k.e("s_add_u32 s41, s41, s3")
    k.e("v_lshlrev_b32 v10, 4, v1")
    k.e("s_add_u32 s43, s43, %d" % XCH)
    k.e("v_add_u32 v15, s43, v10")
    k.e("s_lshl_b32 s42, s41, 4")
    k.e("v_and_b32 v11, 15, v1")
    k.e("v_add_u32 v11, s42, v11")
    k.e("v_lshrrev_b32 v12, 4, v1")
    k.e("v_lshlrev_b32 v12, 3, v12")
    k.e("v_lshlrev_b32 v13, 2, v11")
    k.vmem("buffer_load_dword v14, v13, s[%d:%d], 0 offen" % (SG, SG + 3), "g")
    k.e("s_cmp_ge_u32 s%d, 2" % S_W)
    k.e("s_cbranch_scc1 k4_help")
    k.srd(SA, P_WS, WS_O, SZ_X)
    k.srd(SB, P_WO, 0, 576 * 576 * 2)
    k.srd(SO, P_OUT, 0, SZ_X)
    k.e("s_mul_i32 s%d, s%d, %d" % (S_BOFF, S_W, 288 * 1152))
    k.e("s_add_u32 s%d, s%d, s40" % (S_BOFF, S_BOFF))
    k.e("s_mul_i32 s%d, s%d, %d" % (S_AOFF, S_W, 9 * 1024))
    k.e("v_mul_u32_u24 v11, 1152, v11")
    k.e("v_add_u32 v11, v11, v12")
    k.e("s_mul_i32 s28, s3, 18432")
    k.e("v_add_u32 v%d, s28, v10" % g.VA)
    k.e("v_add_u32 v%d, 18432, v%d" % (g.VA + 1, g.VA))
    k.e("s_xor_b32 s28, s%d, 1" % S_W)
    k.e("s_mul_i32 s28, s28, 9216")
    k.e("s_add_u32 s28, s28, %d" % XCH)
    k.e("v_add_u32 v13, s28, v10")
    gemm_setup_b(k, g, 1152, True)
    if "k4nog" in sys.argv:
        k.e("s_barrier")
        k.stamp()
    else:
        gemm_main(k, g, 9, 1152, True, True, pre=lambda: k.e("s_barrier"))
    k.wait(vm='*')
    k.e("s_cmp_lg_u32 s%d, 0" % S_W)
    k.e("s_cbranch_scc1 k4_w1")
    T = 88
    for w in (0, 1):
        if w:
            k.label("k4_w1")
        for jj in range(9):
            k.e("ds_write_b128 v13, %s offset:%d" % (vr(g.acc(1 - w, jj), 4), 18432 + jj * 1024))
        k.e("s_waitcnt lgkmcnt(0)")
        k.e("s_barrier")
        for jj in range(9):
            k.e("ds_read_b128 %s, v15 offset:%d" % (vr(g.acc(1 - w, jj), 4), 18432 + jj * 1024))
        for jj in range(9):
            k.e("ds_read_b128 %s, v15 offset:%d" % (vr(T + 4 * jj, 4), jj * 1024))
        for jj in range(9):
            a = g.acc(w, jj)
            b = g.acc(1 - w, jj)
            k.e("s_waitcnt lgkmcnt(%d)" % min(15, 17 - jj))
            k.e("v_pk_add_f32 %s, %s, %s" % (vr(a, 2), vr(a, 2), vr(b, 2)))
            k.e("v_pk_add_f32 %s, %s, %s" % (vr(a + 2, 2), vr(a + 2, 2), vr(b + 2, 2)))
            rnd2(k, a, a + 1)
            rnd2(k, a + 2, a + 3)
            for r in range(4):
                k.e("v_mul_f32 v%d, v14, v%d" % (a + r, a + r))
            rnd2(k, a, a + 1)
            rnd2(k, a + 2, a + 3)
        for jj in range(9):
            a = g.acc(w, jj)
            b = T + 4 * jj
            k.e("s_waitcnt lgkmcnt(%d)" % (8 - jj))
            k.e("v_pk_add_f32 %s, %s, %s" % (vr(a, 2), vr(a, 2), vr(b, 2)))
            k.e("v_pk_add_f32 %s, %s, %s" % (vr(a + 2, 2), vr(a + 2, 2), vr(b + 2, 2)))
            k.e("v_cvt_pk_bf16_f32 v%d, v%d, v%d" % (a, a, a + 1))
            k.e("v_cvt_pk_bf16_f32 v%d, v%d, v%d" % (a + 1, a + 2, a + 3))
            k.e("buffer_store_dwordx2 %s, v11, s[%d:%d], s40 offen offset:%d" % (vr(a, 2), SO, SO + 3, jj * 32))
        k.dump(3)
        k.e("s_endpgm")
    k.label("k4_help")
    k.vm = []
    k.lg = []
    SP = 32
    SL, BIAS = 16, 160
    k.srd(SP, P_WS, WS_P, NSLAB * SLAB)
    k.srd(SX, P_B2, 0, 1152)
    k.e("s_lshl_b32 s42, s41, 2")
    k.e("s_add_u32 s42, s42, s4")
    k.e("s_mul_i32 s42, s42, 9216")
    k.e("s_barrier")
    for n in range(36 if "k4nos" not in sys.argv else 0):
        sl, jj = divmod(n, 9)
        k.e("buffer_load_dwordx4 %s, v10, s[%d:%d], s42 offen offset:%d%s" % (vr(SL + n * 4, 4), SP, SP + 3, (jj % 4) * 1024, pol("pl")))
        if jj % 4 == 3:
            k.e("s_add_u32 s42, s42, 4096")
        if jj == 8:
            k.e("s_add_u32 s42, s42, %d" % (SLAB - 8192))
    for jj in range(9):
        k.e("buffer_load_dwordx2 %s, v12, s[%d:%d], s40 offen offset:%d" % (vr(BIAS + 2 * jj, 2), SX, SX + 3, jj * 32))
    k.e("s_waitcnt vmcnt(0)")
    k.e("v_sub_f32 v6, 1.0, v14")
    bf16_round(k, 6, 6, 6)
    BT = 180
    for jj in range(9):
        b = SL + jj * 4
        k.e("v_lshlrev_b32 v%d, 16, v%d" % (BT, BIAS + 2 * jj))
        k.e("v_and_b32 v%d, 0xffff0000, v%d" % (BT + 1, BIAS + 2 * jj))
        k.e("v_lshlrev_b32 v%d, 16, v%d" % (BT + 2, BIAS + 1 + 2 * jj))
        k.e("v_and_b32 v%d, 0xffff0000, v%d" % (BT + 3, BIAS + 1 + 2 * jj))
        for x, y in ((b, b + 36), (b + 72, b + 108), (b, b + 72)):
            for h in (0, 2):
                k.e("v_pk_add_f32 %s, %s, %s" % (vr(x + h, 2), vr(x + h, 2), vr(y + h, 2)))
        rnd2(k, b, b + 1)
        rnd2(k, b + 2, b + 3)
        for h in (0, 2):
            k.e("v_pk_add_f32 %s, %s, %s" % (vr(b + h, 2), vr(b + h, 2), vr(BT + h, 2)))
        rnd2(k, b, b + 1)
        rnd2(k, b + 2, b + 3)
        for r in range(4):
            k.e("v_mul_f32 v%d, v6, v%d" % (b + r, b + r))
        rnd2(k, b, b + 1)
        rnd2(k, b + 2, b + 3)
        k.e("ds_write_b128 v15, %s offset:%d" % (vr(b, 4), jj * 1024))
    k.e("s_waitcnt lgkmcnt(0)")
    k.e("s_barrier")
    k.label("k4_exit")
    k.e("s_endpgm")
    return k, 184, XCH + 36864, 256


def emit(kernels):
    out = []
    hdr = open("cdna_kernels/%s.s.ref" % NAME).read().split("\n")
    for l in hdr:
        if l.startswith("; @launch") or l.startswith("; Override") or l.startswith("; grid="):
            continue
        if l.startswith(";"):
            out.append(l)
    for k, nv, lds, nwg in kernels:
        out.append("; @launch kernel=%s_kernel grid=(%d,1,1) block=(%d,1,1) lds=%d" % (k.name, nwg, k.block, lds))
    out.append('.amdgcn_target "amdgcn-amd-amdhsa--gfx950"')
    out.append(".text")
    for k, nv, lds, nwg in kernels:
        out.append(".globl %s_kernel" % k.name)
        out.append(".p2align 8")
        out.append(".type %s_kernel,@function" % k.name)
        out.append("%s_kernel:" % k.name)
        out += k.L
    out.append('.section .rodata,"a"')
    for k, nv, lds, nwg in kernels:
        out.append(".p2align 6")
        out.append(".amdhsa_kernel %s_kernel" % k.name)
        out.append("  .amdhsa_next_free_vgpr %d" % nv)
        out.append("  .amdhsa_next_free_sgpr 102")
        out.append("  .amdhsa_accum_offset %d" % ((nv + 3) // 4 * 4))
        out.append("  .amdhsa_group_segment_fixed_size 0")
        out.append("  .amdhsa_kernarg_size 96")
        out.append("  .amdhsa_user_sgpr_count 2")
        out.append("  .amdhsa_user_sgpr_kernarg_segment_ptr 1")
        out.append("  .amdhsa_system_sgpr_workgroup_id_x 1")
        out.append(".end_amdhsa_kernel")
    return "\n".join(out) + "\n"


def k123():
    k = K("k2")
    load_args(k)
    prologue_ids(k)
    k.e("s_cmp_ge_u32 s2, 512")
    k.e("s_cbranch_scc1 k2_exit")
    k.e("s_waitcnt lgkmcnt(0)")
    nonce_write(k)
    k.e("s_cmp_ge_u32 s2, 256")
    k.e("s_cbranch_scc1 k2_g0")
    k.e("s_mov_b32 s3, s2")
    k.e("s_cmp_lt_u32 s2, 192")
    k.e("s_cbranch_scc1 k2_q")
    k.e("s_sub_u32 s3, s2, 192")
    k1_ln(k, True)
    k.label("k2_q")
    if "qp" in sys.argv:
        k.e("s_setprio 3")
    qkv_tile(k)
    k.dump(0)
    if "qp" in sys.argv:
        k.e("s_setprio 0")
    k.label("k2_attn")
    k.vm = []
    k.lg = []
    if "a1" in sys.argv:
        attn(k, 0, 1, "k2_attn2", wait=True)
        k.label("k2_attn2")
        k.e("s_barrier")
        attn(k, 1, 2)
    else:
        attn2(k, 1, wait=True)
    k.label("k2_g0")
    k.e("s_cmp_lg_u32 s%d, 0" % S_W)
    k.e("s_cbranch_scc1 k2_g")
    nonce_get(k)
    k.label("k2_g")
    k.vm = []
    k.lg = []
    k.nstamp = 1
    k.priok = None
    k2_gemm1(k, 2)
    k3_gemm2(k, True)
    k.label("k2_exit")
    k.e("s_endpgm")
    return k, 256 if "t8" in sys.argv else 252, 73728, 512


def klist():
    if "old" in sys.argv:
        return [k1(), k2(), k3(), k4()]
    if "t4" in sys.argv:
        return [k1(), k23()]
    if "s1" in sys.argv:
        return [k1(), k23(), k4()]
    return [k123(), k4()]


if __name__ == "__main__":
    if "diag" in sys.argv:
        DIAG = True
        open("diag%s.s" % "".join(a.replace("=", "").replace("+", "") for a in sys.argv[1:] if a != "diag"), "w").write(emit(klist()))
        sys.exit(0)
    ks = klist()
    open("cdna_kernels/%s.s" % NAME, "w").write(emit(ks))
    print("written")
```

```python
import math, struct, sys

NAME = "gated_mix__softmax_full_mha__mixer_channel_mlp__prompt"

def f32(x):
    return "0x%08x" % struct.unpack("<I", struct.pack("<f", x))[0]

WS_Y = 0x0
WS_G = 0x240000
WS_Q = 0x400000
WS_KV = 0x800000
WS_H = 0x1000000
WS_O = 0x2400000
WS_P = 0x2800000
WS_F = 0x300000
F_H, F_QKV, F_LN, F_O, F_P = 0x0, 0x1000, 0x2000, 0x3000, 0x4000
WS_DIAG = 0x6000000
DIAG = False
SLAB = 2048 * 576 * 4
SZ_X = 2048 * 576 * 2
SZ_H = 2048 * 4608 * 2


class K:
    def __init__(self, name):
        self.name = name
        self.L = []
        self.vm = []
        self.lg = []
        self.nlabel = 0
        self.nstamp = 0
        self.block = 256

    def e(self, s):
        self.L.append("    " + s)

    def c(self, s):
        self.L.append("    ; " + s)

    def label(self, l):
        self.L.append(l + ":")

    def newlabel(self, p="L"):
        self.nlabel += 1
        return "%s_%s_%d" % (self.name[:6], p, self.nlabel)

    def vmem(self, s, tag=None):
        self.e(s)
        self.vm.append(tag)

    def ds(self, s, tag=None):
        self.e(s)
        self.lg.append(tag)

    def wait(self, vm=None, lg=None):
        parts = []
        if vm is not None:
            if vm == '*':
                n = 0
            else:
                idx = [i for i, t in enumerate(self.vm) if t == vm]
                n = len(self.vm) - 1 - idx[-1] if idx else None
            if n is not None:
                assert n <= 63
                parts.append("vmcnt(%d)" % n)
                self.vm = self.vm[len(self.vm) - n:] if n else []
        if lg is not None:
            if lg == '*':
                n = 0
            else:
                idx = [i for i, t in enumerate(self.lg) if t == lg]
                n = len(self.lg) - 1 - idx[-1] if idx else None
            if n is not None:
                assert n <= 15
                parts.append("lgkmcnt(%d)" % n)
                self.lg = self.lg[len(self.lg) - n:] if n else []
        if parts:
            self.e("s_waitcnt " + " ".join(parts))

    def stamp(self):
        if not DIAG:
            return
        i = self.nstamp
        self.nstamp += 1
        assert i < 8
        self.e("s_waitcnt lgkmcnt(0)")
        self.e("s_memtime s[%d:%d]" % (44 + 2 * i, 45 + 2 * i))
        if i == 0:
            self.e("s_memrealtime s[60:61]")
        self.e("s_waitcnt lgkmcnt(0)")
        self.lg = []

    def dump(self, kidx, wave=0):
        if not DIAG:
            return
        self.stamp()
        self.e("s_memrealtime s[62:63]")
        self.e("s_waitcnt lgkmcnt(0)")
        l = self.newlabel("nd")
        self.e("s_cmp_lg_u32 s%d, %d" % (S_W, wave))
        self.e("s_cbranch_scc1 %s" % l)
        self.srd(88, P_WS, WS_DIAG + kidx * 65536, 65536)
        self.e("s_lshl_b32 s92, s2, 6")
        self.e("v_mov_b32 v2, s92")
        for i in range(self.nstamp):
            self.e("v_mov_b32 v3, s%d" % (44 + 2 * i))
            self.e("buffer_store_dword v3, v2, s[88:91], 0 offen offset:%d" % (4 * i))
        for i in (0, 1):
            self.e("v_mov_b32 v3, s%d" % (60 + 2 * i))
            self.e("buffer_store_dword v3, v2, s[88:91], 0 offen offset:%d" % (56 + 4 * i))
        self.label(l)
        self.nstamp = 1

    def sel(self, d, a, b):
        self.e("s_mov_b32 s%d, %s" % (d, b))
        self.e("s_cmov_b32 s%d, %s" % (d, a))

    def srd(self, d, ptr, off, size):
        if off:
            self.e("s_add_u32 s%d, s%d, 0x%x" % (d, ptr, off))
            self.e("s_addc_u32 s%d, s%d, 0" % (d + 1, ptr + 1))
        else:
            self.e("s_mov_b32 s%d, s%d" % (d, ptr))
            self.e("s_mov_b32 s%d, s%d" % (d + 1, ptr + 1))
        self.e("s_mov_b32 s%d, 0x%x" % (d + 2, size))
        self.e("s_mov_b32 s%d, 0x00020000" % (d + 3))


def pol(tag):
    return "".join(" " + f.split("=")[1].replace("+", " ") for f in sys.argv if f.startswith(tag + "="))


def opt(name, default):
    for f in sys.argv:
        if f.startswith(name + "="):
            return f.split("=")[1]
    return default


def vr(a, n=1):
    return "v%d" % a if n == 1 else "v[%d:%d]" % (a, a + n - 1)


def sr(a, n=1):
    return "s%d" % a if n == 1 else "s[%d:%d]" % (a, a + n - 1)


P_X, P_WQKV, P_WO, P_BX, P_W1, P_B1, P_W2, P_B2, P_GW, P_OUT, P_DBG, P_WS = [64 + 2 * i for i in range(12)]


def load_args(k):
    k.e("s_load_dwordx8 s[64:71], s[0:1], 0")
    k.e("s_load_dwordx8 s[72:79], s[0:1], 32")
    k.e("s_load_dwordx8 s[80:87], s[0:1], 64")


SF, S_NONCE, S_SP = 96, 100, 101
SPIN = 1 << 18


def nonce_write(k):
    l = k.newlabel("nw")
    k.e("s_or_b32 s28, s2, s%d" % S_W)
    k.e("s_cmp_lg_u32 s28, 0")
    k.e("s_cbranch_scc1 %s" % l)
    k.e("s_memrealtime s[28:29]")
    k.srd(SF, P_DBG, 0, 256)
    k.e("s_waitcnt lgkmcnt(0)")
    k.e("s_or_b32 s28, s28, 1")
    k.e("v_mov_b32 v2, s28")
    k.e("v_mov_b32 v3, 0")
    k.e("s_mov_b64 exec, 1")
    k.e("buffer_store_dword v2, v3, s[%d:%d], 0 offen sc1" % (SF, SF + 3))
    k.e("s_mov_b64 exec, -1")
    k.label(l)


def nonce_get(k):
    l = k.newlabel("ng")
    d = k.newlabel("ngd")
    k.srd(SF, P_DBG, 0, 256)
    k.e("v_mov_b32 v3, 0")
    k.e("s_mov_b32 s%d, %d" % (S_SP, SPIN))
    k.label(l)
    k.e("buffer_load_dword v2, v3, s[%d:%d], 0 offen sc1" % (SF, SF + 3))
    k.e("s_waitcnt vmcnt(0)")
    k.e("v_readfirstlane_b32 s%d, v2" % S_NONCE)
    k.e("s_cmp_lg_u32 s%d, 0" % S_NONCE)
    k.e("s_cbranch_scc1 %s" % d)
    k.e("s_sub_u32 s%d, s%d, 1" % (S_SP, S_SP))
    k.e("s_cbranch_scc1 %s" % d)
    k.e("s_sleep 1")
    k.e("s_branch %s" % l)
    k.label(d)
    k.srd(SF, P_WS, WS_F, 0x10000)


def nonce_fast(k):
    sl = k.newlabel("nfs")
    d = k.newlabel("nfd")
    k.e("s_waitcnt vmcnt(39)")
    k.e("v_readfirstlane_b32 s95, v0")
    k.e("s_nop 3")
    k.e("s_cmp_eq_u32 s95, 0")
    k.e("s_cbranch_scc1 %s" % sl)
    k.e("s_mov_b32 s%d, s95" % S_NONCE)
    k.srd(SF, P_WS, WS_F, 0x10000)
    k.e("s_branch %s" % d)
    k.label(sl)
    nonce_get(k)
    k.label(d)


def publish(k, base, s_idx, first=False):
    k.e("s_waitcnt vmcnt(0)")
    k.vm = []
    k.e("s_barrier")
    l = k.newlabel("pb")
    k.e("s_cmp_lg_u32 s%d, 0" % S_W)
    k.e("s_cbranch_scc1 %s" % l)
    if first == "fast":
        nonce_fast(k)
    elif first:
        nonce_get(k)
    k.e("s_lshl_b32 s28, s%d, 2" % s_idx)
    k.e("s_add_u32 s28, s28, %d" % base)
    k.e("v_mov_b32 v3, s28")
    k.e("v_mov_b32 v2, s%d" % S_NONCE)
    k.e("s_mov_b64 exec, 1")
    k.e("buffer_store_dword v2, v3, s[%d:%d], 0 offen sc1" % (SF, SF + 3))
    k.e("s_mov_b64 exec, -1")
    k.label(l)


def await_flags(k, base, s_idx, n, first=False, acquire=False, wide=False):
    l = k.newlabel("aw")
    lp = k.newlabel("awl")
    d = k.newlabel("awd")
    k.e("s_cmp_lg_u32 s%d, 0" % S_W)
    k.e("s_cbranch_scc1 %s" % l)
    if first:
        nonce_get(k)
    k.e("s_lshl_b32 s28, s%d, 2" % s_idx)
    k.e("s_add_u32 s28, s28, %d" % base)
    k.e("v_lshlrev_b32 v3, %d, v1" % (3 if wide else 2))
    k.e("v_add_u32 v3, s28, v3")
    if wide:
        n //= 2
    k.e("s_mov_b32 s28, %d" % ((1 << min(n, 32)) - 1))
    k.e("s_mov_b32 s29, %d" % ((1 << max(n - 32, 0)) - 1))
    k.e("s_mov_b64 exec, s[28:29]")
    k.e("s_mov_b32 s%d, %d" % (S_SP, SPIN))
    k.label(lp)
    if wide:
        k.e("buffer_load_dwordx2 v[4:5], v3, s[%d:%d], 0 offen sc1" % (SF, SF + 3))
        k.e("s_waitcnt vmcnt(0)")
        k.e("v_xor_b32 v4, s%d, v4" % S_NONCE)
        k.e("v_xor_b32 v5, s%d, v5" % S_NONCE)
        k.e("v_or_b32 v2, v4, v5")
        k.e("v_cmp_ne_u32 vcc, 0, v2")
    else:
        k.e("buffer_load_dword v2, v3, s[%d:%d], 0 offen sc1" % (SF, SF + 3))
        k.e("s_waitcnt vmcnt(0)")
        k.e("v_cmp_ne_u32 vcc, s%d, v2" % S_NONCE)
    k.e("s_cbranch_vccz %s" % d)
    k.e("s_sub_u32 s%d, s%d, 1" % (S_SP, S_SP))
    k.e("s_cbranch_scc1 %s" % d)
    k.e("s_sleep 1")
    k.e("s_branch %s" % lp)
    k.label(d)
    k.e("s_mov_b64 exec, -1")
    if acquire:
        k.e("buffer_inv sc1")
        k.e("s_waitcnt vmcnt(0)")
    k.label(l)
    k.e("s_barrier")


def await_solo(k, base, s_idx, n, fast=False):
    lp = k.newlabel("asl")
    d = k.newlabel("asd")
    (nonce_fast if fast else nonce_get)(k)
    k.e("s_lshl_b32 s28, s%d, 2" % s_idx)
    k.e("s_add_u32 s28, s28, %d" % base)
    k.e("v_lshlrev_b32 v3, 2, v1")
    k.e("v_add_u32 v3, s28, v3")
    k.e("s_mov_b32 s28, %d" % ((1 << min(n, 32)) - 1))
    k.e("s_mov_b32 s29, %d" % ((1 << max(n - 32, 0)) - 1))
    k.e("s_mov_b64 exec, s[28:29]")
    k.e("s_mov_b32 s%d, %d" % (S_SP, SPIN))
    k.label(lp)
    k.e("buffer_load_dword v2, v3, s[%d:%d], 0 offen sc1" % (SF, SF + 3))
    k.e("s_waitcnt vmcnt(0)")
    k.e("v_cmp_ne_u32 vcc, s%d, v2" % S_NONCE)
    k.e("s_cbranch_vccz %s" % d)
    k.e("s_sub_u32 s%d, s%d, 1" % (S_SP, S_SP))
    k.e("s_cbranch_scc1 %s" % d)
    k.e("s_sleep %d" % int(opt("slp", 1)))
    k.e("s_branch %s" % lp)
    k.label(d)
    k.e("s_mov_b64 exec, -1")


BUF = 20480
SA, SB, SO, SX = 8, 12, 16, 20
S_WB, S_BOFF, S_AOFF, S_W = 24, 25, 26, 27


class G:
    def __init__(self, MT, LA=2, TW=4, CK=2, NBUF=3, NJ=9, AR=3, PAD=False):
        self.PAD = PAD
        self.MT = MT
        self.AR = AR
        self.NJ = NJ
        self.LA = LA
        self.TW = TW
        self.CK = CK
        self.NBUF = NBUF
        self.NP = -(-9 * CK // TW)
        self.BUF = 20480 if TW == 4 else 9216 * CK
        self.ACC = 16
        self.A = self.ACC + MT * NJ * 4
        self.B = self.A + AR * MT * 4
        self.VA = self.B + 4 * (LA + 1)
        self.VD = self.VA + MT
        self.VL = self.VD + self.NP * (3 if PAD else 1)
        self.FREE = self.VL + 1

    def acc(self, i, j):
        return self.ACC + (i * self.NJ + j) * 4

    def a(self, ks, i):
        return self.A + ((ks % self.AR) * self.MT + i) * 4

    def b(self, t):
        return self.B + (t % (self.LA + 1)) * 4


def gemm_setup_b(k, g, rsb, bitswap):
    k.c("DMA source offsets")
    if g.TW == 4:
        k.e("s_mul_i32 s%d, s%d, 5120" % (S_WB, S_W))
        k.e("s_mul_i32 s28, s%d, 320" % S_W)
    elif g.TW == 1:
        k.e("s_mul_i32 s31, s%d, %d" % (S_W, g.NBUF * g.BUF))
        k.e("s_mov_b32 s%d, s31" % S_WB)
        k.e("s_mov_b32 s28, 0")
    else:
        P0 = 9 * g.CK - g.NP
        k.e("s_and_b32 s28, s%d, 1" % S_W)
        k.e("s_lshr_b32 s31, s%d, 1" % S_W)
        k.e("s_mul_i32 s31, s31, %d" % (g.NBUF * g.BUF))
        k.e("s_mul_i32 s%d, s28, %d" % (S_WB, P0 * 1024))
        k.e("s_add_u32 s%d, s%d, s31" % (S_WB, S_WB))
        k.e("s_mul_i32 s28, s28, %d" % (P0 * 64))
    for i in range(g.NP):
        k.e("s_add_u32 s29, s28, %d" % (i * 64))
        if i >= 3 and g.TW == 4:
            k.e("s_cmp_ge_u32 s29, 1152")
            k.e("s_cselect_b32 s30, 128, 0")
            k.e("s_sub_u32 s29, s29, s30")
        k.e("v_add_u32 v2, s29, v1")
        k.e("v_mul_u32_u24 v3, 3641, v2")
        k.e("v_lshrrev_b32 v3, 16, v3")
        k.e("v_mul_u32_u24 v4, 18, v3")
        k.e("v_sub_u32 v4, v2, v4")
        if bitswap:
            k.e("v_and_b32 v5, 0x33, v3")
            k.e("v_and_b32 v6, 4, v3")
            k.e("v_lshlrev_b32 v6, 1, v6")
            k.e("v_and_b32 v7, 8, v3")
            k.e("v_lshrrev_b32 v7, 1, v7")
            k.e("v_or3_b32 v3, v5, v6, v7")
        k.e("v_lshlrev_b32 v4, 4, v4")
        if g.PAD:
            for b in range(3):
                k.e("v_add_u32 v5, %d, v3" % (32 * b))
                k.e("v_mul_u32_u24 v6, 2731, v5")
                k.e("v_lshrrev_b32 v6, 16, v6")
                k.e("v_mul_u32_u24 v7, 24, v6")
                k.e("v_sub_u32 v5, v5, v7")
                if "t3" in sys.argv:
                    k.e("v_cmp_lt_u32 vcc, 17, v5")
                k.e("v_min_u32 v5, 17, v5")
                k.e("v_mul_u32_u24 v6, 18, v6")
                k.e("v_add_u32 v5, v5, v6")
                k.e("v_mul_u32_u24 v5, %d, v5" % rsb)
                k.e("v_add_u32 v5, v5, v4")
                k.e("v_subrev_u32 v%d, %d, v5" % (g.VD + b * g.NP + i, (i % 4) * 1024))
                if "t3" in sys.argv:
                    assert g.NBUF == 3
                    k.e("v_mov_b32 v8, 0x80000000")
                    k.e("v_cndmask_b32 v%d, v%d, v8, vcc" % (g.VD + b * g.NP + i, g.VD + b * g.NP + i))
            continue
        k.e("v_mul_u32_u24 v3, %d, v3" % rsb)
        k.e("v_add_u32 v3, v3, v4")
        if i % 4:
            k.e("v_subrev_u32 v%d, %d, v3" % (g.VD + i, (i % 4) * 1024))
        else:
            k.e("v_mov_b32 v%d, v3" % (g.VD + i))
    k.c("LDS tr-read lane address")
    k.e("v_lshrrev_b32 v2, 4, v1")
    k.e("v_and_b32 v3, 15, v1")
    k.e("v_lshrrev_b32 v4, 2, v3")
    if bitswap:
        k.e("v_lshrrev_b32 v5, 1, v2")
        k.e("v_lshlrev_b32 v5, 4, v5")
        k.e("v_and_b32 v6, 1, v2")
        k.e("v_lshlrev_b32 v6, 2, v6")
        k.e("v_add3_u32 v4, v4, v5, v6")
    else:
        k.e("v_lshlrev_b32 v5, 2, v2")
        k.e("v_add_u32 v4, v4, v5")
    k.e("v_mul_u32_u24 v4, 288, v4")
    k.e("v_and_b32 v3, 3, v3")
    k.e("v_lshlrev_b32 v3, 3, v3")
    k.e("v_add_u32 v%d, v4, v3" % g.VL)
    if g.TW != 4:
        k.e("v_add_u32 v%d, s31, v%d" % (g.VL, g.VL))


def gemm_dma_ops(k, g, c, rsb):
    buf = c % g.NBUF
    ops = []
    for i in range(g.NP):
        def op(i=i):
            k.e("s_add_u32 m0, s%d, %d" % (S_WB, buf * g.BUF + (i // 4) * 4096))
            k.e("s_nop 0")
            vd = g.VD + i + (c % 3) * g.NP * g.PAD
            k.vmem("buffer_load_dwordx4 v%d, s[%d:%d], s%d offen offset:%d lds" % (vd, SB, SB + 3, S_BOFF, (i % 4) * 1024), ("D", c))
            if i == g.NP - 1 and g.PAD:
                if c % 3 == 2:
                    k.e("s_add_u32 s%d, s%d, %d" % (S_BOFF, S_BOFF, 72 * rsb))
            elif i == g.NP - 1:
                k.e("s_add_u32 s%d, s%d, %d" % (S_BOFF, S_BOFF, 32 * g.CK * rsb))
        ops.append(op)
    return ops


def gemm_main(k, g, KS, rsb, bitswap, afrag, extra=None, pre=None, waitfn=None, zero=True, atchunk=None, aext=False, lazy=False):
    MT = g.MT
    NJ = g.NJ
    NC = KS // g.CK
    HALF = (8 if bitswap else 16) * 288
    SPREAD = "nospread" not in sys.argv

    def aload_ops(ks):
        ops = []
        for i in range(0 if aext else MT):
            def op(i=i):
                if afrag:
                    k.vmem("buffer_load_dwordx4 %s, v%d, s[%d:%d], s%d offen%s" % (vr(g.a(ks, i), 4), g.VA + i, SA, SA + 3, S_AOFF, " sc1" if waitfn else ""), ("A", ks))
                    if i == MT - 1:
                        k.e("s_add_u32 s%d, s%d, 1024" % (S_AOFF, S_AOFF))
                else:
                    k.vmem("buffer_load_dwordx4 %s, v%d, s[%d:%d], s%d offen offset:%d" % (vr(g.a(ks, i), 4), g.VA + i, SA, SA + 3, S_AOFF, ks * 64), ("A", ks))
            ops.append(op)
        return ops

    def bread(t):
        ks, j = divmod(t, NJ)
        off = ((ks // g.CK) % g.NBUF) * g.BUF + (ks % g.CK) * 9216 + j * 32
        b = g.b(t)
        k.ds("ds_read_b64_tr_b16 %s, v%d offset:%d" % (vr(b, 2), g.VL, off), ("B", t))
        k.ds("ds_read_b64_tr_b16 %s, v%d offset:%d" % (vr(b + 2, 2), g.VL, off + HALF), ("B", t))

    k.stamp()
    if waitfn is None:
        ops = gemm_dma_ops(k, g, 0, rsb) + aload_ops(0) + gemm_dma_ops(k, g, 1, rsb) + aload_ops(1)
        for c in range(2, g.NBUF):
            ops += gemm_dma_ops(k, g, c, rsb)
        for ks in range(2, g.AR - 1):
            ops += aload_ops(ks)
    else:
        ops = []
        for c in range(g.NBUF):
            ops += gemm_dma_ops(k, g, c, rsb)
        ops += [waitfn]
        for ks in range(g.AR - 1):
            ops += aload_ops(ks)
    q = []
    for op in ops:
        op()
    if pre is not None:
        pre()
    k.c("zero accumulators")
    for r in range(MT * NJ * 4 if zero else 0):
        k.e("v_mov_b32 v%d, 0" % (g.ACC + r))
    k.wait(vm=("D", 0))
    if g.TW > 1:
        k.e("s_barrier")
    k.stamp()
    for t in range(g.LA):
        bread(t)
    NTS = KS * NJ
    for t in range(NTS if lazy else 0):
        assert g.TW == 1 and g.CK == 1 and aext and MT == 2
        ks, j = divmod(t, NJ)
        k.wait(lg=("B", t))
        a = g.acc(0, j)
        k.e("v_mfma_f32_16x16x32_bf16 %s, %s, %s, %s" % (vr(a, 4), vr(g.b(t), 4), vr(g.a(ks, 0), 4), vr(a, 4)))
        tn = t + g.LA
        if tn < NTS:
            if tn % NJ == 0:
                while q:
                    q.pop(0)()
                k.wait(vm=("D", tn // NJ))
            bread(tn)
        a = g.acc(1, j)
        k.e("v_mfma_f32_16x16x32_bf16 %s, %s, %s, %s" % (vr(a, 4), vr(g.b(t), 4), vr(g.a(ks, 1), 4), vr(a, 4)))
        if j == NJ - 1:
            if atchunk is not None:
                atchunk(ks + 1)
            if ks + g.NBUF < NC:
                q += gemm_dma_ops(k, g, ks + g.NBUF, rsb)
        if q:
            q.pop(0)()
    for t in range(0 if lazy else NTS):
        ks, j = divmod(t, NJ)
        if j == 0 and ks + g.AR - 1 < KS and "xA" not in sys.argv:
            q = aload_ops(ks + g.AR - 1) + q
        if extra is not None:
            extra(ks, j)
        if j == 0 and getattr(k, "priok", None) == ks:
            k.e("s_setprio 0")
        tn = t + g.LA
        if tn < NTS:
            if tn % (NJ * g.CK) == 0:
                c = tn // (NJ * g.CK)
                while any(True for _ in q):
                    q.pop(0)()
                k.wait(vm=("D", c), lg='*')
                if "xB" not in sys.argv and g.TW > 1:
                    k.e("s_barrier")
                if atchunk is not None:
                    atchunk(c)
                if c + g.NBUF - 1 < NC and "xD" not in sys.argv:
                    q += gemm_dma_ops(k, g, c + g.NBUF - 1, rsb)
            bread(tn)
        if q:
            q.pop(0)()
            while q and not SPREAD:
                q.pop(0)()
        k.wait(lg=("B", t), vm=("A", ks) if j == 0 else None)
        for i in range(MT):
            a = g.acc(i, j)
            k.e("v_mfma_f32_16x16x32_bf16 %s, %s, %s, %s" % (vr(a, 4), vr(g.b(t), 4), vr(g.a(ks, i), 4), vr(a, 4)))
    assert not q
    k.e("s_nop 7")
    k.e("s_nop 7")
    k.stamp()


def prologue_ids(k):
    k.stamp()
    k.e("v_and_b32 v1, 63, v0")
    k.e("v_lshrrev_b32 v2, 6, v0")
    k.e("s_nop 0")
    k.e("v_readfirstlane_b32 s%d, v2" % S_W)


def a_offsets_rowmajor(k, g, s_m0, stride):
    k.e("s_mul_i32 s28, s%d, %d" % (S_W, 16 * g.MT))
    k.e("s_add_u32 s28, s28, s%d" % s_m0)
    k.e("v_and_b32 v2, 15, v1")
    k.e("v_add_u32 v2, s28, v2")
    k.e("v_mul_u32_u24 v2, %d, v2" % stride)
    k.e("v_lshrrev_b32 v3, 4, v1")
    k.e("v_lshlrev_b32 v3, 4, v3")
    k.e("v_add_u32 v2, v2, v3")
    for i in range(g.MT):
        k.e("v_add_u32 v%d, %d, v2" % (g.VA + i, i * 16 * stride))


def a_offsets_frag(k, g, s_mt, tile_bytes):
    k.e("s_mul_i32 s28, s%d, %d" % (S_W, g.MT))
    k.e("s_add_u32 s28, s28, s%d" % s_mt)
    k.e("s_mul_i32 s28, s28, %d" % tile_bytes)
    k.e("v_lshlrev_b32 v2, 4, v1")
    k.e("v_add_u32 v2, s28, v2")
    for i in range(g.MT):
        k.e("v_add_u32 v%d, %d, v2" % (g.VA + i, i * tile_bytes))


def bf16_round(k, d, s, t):
    k.e("v_cvt_pk_bf16_f32 v%d, v%d, v%d" % (t, s, s))
    k.e("v_lshlrev_b32 v%d, 16, v%d" % (d, t))


def red8(k, v, t):
    k.e("s_nop 1")
    k.e("v_add_f32_dpp v%d, v%d, v%d quad_perm:[1,0,3,2] row_mask:0xf bank_mask:0xf" % (t, v, v))
    k.e("s_nop 1")
    k.e("v_add_f32_dpp v%d, v%d, v%d quad_perm:[2,3,0,1] row_mask:0xf bank_mask:0xf" % (v, t, t))
    k.e("s_nop 1")
    k.e("v_add_f32_dpp v%d, v%d, v%d row_half_mirror row_mask:0xf bank_mask:0xf" % (t, v, v))
    k.e("v_mov_b32 v%d, v%d" % (v, t))


def k1_ln(k, fused=False):
    k.c("---- LN / gate part")
    k.srd(SA, P_X, 0, SZ_X)
    k.srd(SB, P_GW, 0, 1152)
    k.srd(SO, P_WS, WS_Y, SZ_X)
    k.srd(SX, P_WS, WS_G, 8192)
    X, GW, F = 16, 52, 88
    if "pf0" in sys.argv:
        k.e("s_and_b32 s28, s3, 7")
        k.e("s_lshl_b32 s28, s28, 7")
        k.e("s_bfe_u32 s29, s3, 0x10005")
        k.e("s_lshl_b32 s29, s29, 10")
        k.e("s_add_u32 s28, s28, s29")
        k.e("s_bfe_u32 s29, s3, 0x20003")
        k.e("s_lshl_b32 s29, s29, 5")
        k.e("s_add_u32 s28, s28, s29")
    else:
        k.e("s_lshl_b32 s28, s3, 5")
    k.e("s_lshl_b32 s29, s%d, 3" % S_W)
    k.e("s_add_u32 s28, s28, s29")
    k.e("v_lshrrev_b32 v2, 3, v1")
    k.e("v_add_u32 v2, s28, v2")
    k.e("v_and_b32 v3, 7, v1")
    k.e("v_lshlrev_b32 v4, 4, v3")
    k.e("v_mul_u32_u24 v5, 1152, v2")
    k.e("v_add_u32 v5, v5, v4")
    for i in range(9):
        k.vmem("buffer_load_dwordx4 %s, v5, s[%d:%d], 0 offen offset:%d" % (vr(X + 4 * i, 4), SA, SA + 3, i * 128))
    for i in range(9):
        k.vmem("buffer_load_dwordx4 %s, v4, s[%d:%d], 0 offen offset:%d" % (vr(GW + 4 * i, 4), SB, SB + 3, i * 128), "ln")
    if "pf0" in sys.argv:
        k.srd(32, P_WQKV, 0, 576 * 1728 * 2)
        k.e("s_lshr_b32 s28, s3, 3")
        k.e("s_lshl_b32 s28, s28, 2")
        k.e("s_add_u32 s28, s28, s%d" % S_W)
        k.e("s_lshl_b32 s28, s28, 10")
        k.e("v_lshlrev_b32 v6, 4, v1")
        k.e("v_add_u32 v6, s28, v6")
        for i in range(61):
            k.e("s_mov_b32 s28, %d" % (i * 32768))
            k.vmem("buffer_load_dwordx4 %s, v6, s[32:35], s28 offen" % vr(160 + 4 * (i % 8), 4))
    k.wait(vm="ln")
    for i in range(36):
        k.e("v_lshlrev_b32 v%d, 16, v%d" % (F + 2 * i, X + i))
        k.e("v_and_b32 v%d, 0xffff0000, v%d" % (F + 2 * i + 1, X + i))
    k.e("v_add_f32 v6, v%d, v%d" % (F, F + 1))
    k.e("v_add_f32 v7, v%d, v%d" % (F + 2, F + 3))
    for i in range(2, 36):
        k.e("v_add_f32 v%d, v%d, v%d" % (6 + (i & 1), 6 + (i & 1), F + 2 * i))
        k.e("v_add_f32 v%d, v%d, v%d" % (6 + (i & 1), 6 + (i & 1), F + 2 * i + 1))
    k.e("v_add_f32 v6, v6, v7")
    red8(k, 6, 7)
    k.e("v_mul_f32 v6, %s, v6" % f32(1.0 / 576))
    k.e("v_mov_b32 v10, 0")
    k.e("v_mov_b32 v11, 0")
    for i in range(36):
        k.e("v_lshlrev_b32 v8, 16, v%d" % (GW + i))
        k.e("v_and_b32 v9, 0xffff0000, v%d" % (GW + i))
        k.e("v_mul_f32 v8, v8, v%d" % (F + 2 * i))
        k.e("v_mul_f32 v9, v9, v%d" % (F + 2 * i + 1))
        k.e("v_cvt_pk_bf16_f32 v8, v8, v9")
        k.e("v_and_b32 v9, 0xffff0000, v8")
        k.e("v_lshlrev_b32 v8, 16, v8")
        k.e("v_add_f32 v10, v10, v8")
        k.e("v_add_f32 v11, v11, v9")
    k.e("v_add_f32 v10, v10, v11")
    red8(k, 10, 11)
    bf16_round(k, 10, 10, 10)
    k.e("v_mul_f32 v10, %s, v10" % f32(-math.log2(math.e)))
    k.e("v_exp_f32 v10, v10")
    k.e("s_nop 0")
    k.e("v_add_f32 v10, 1.0, v10")
    k.e("v_rcp_f32 v10, v10")
    k.e("s_nop 0")
    bf16_round(k, 10, 10, 10)
    k.e("v_lshlrev_b32 v11, 2, v2")
    k.e("v_cmp_eq_u32 vcc, 0, v3")
    k.e("s_and_saveexec_b64 s[30:31], vcc")
    k.vmem("buffer_store_dword v10, v11, s[%d:%d], 0 offen" % (SX, SX + 3))
    k.e("s_mov_b64 exec, s[30:31]")
    if "pf5" in sys.argv:
        k.e("s_lshl_b32 s6, s3, 2")
        k.e("s_add_u32 s6, s6, s%d" % S_W)
        k.e("s_lshl_b32 s6, s6, 10")
        k.e("v_lshlrev_b32 v200, 4, v1")
        k.e("v_add_u32 v200, s6, v200")
        k.srd(36, P_W1, 0, 4608 * 576 * 2)
        k.srd(40, P_WO, 0, 576 * 576 * 2)
        k.srd(32, P_W2, 0, 4608 * 576 * 2)
    mark0 = len(k.L)
    k.e("v_mov_b32 v8, 0")
    k.e("v_mov_b32 v9, 0")
    for i in range(72):
        k.e("v_sub_f32 v12, v%d, v6" % (F + i))
        k.e("v_fma_f32 v%d, v12, v12, v%d" % (8 + (i & 1), 8 + (i & 1)))
    k.e("v_add_f32 v8, v8, v9")
    red8(k, 8, 9)
    k.e("v_mul_f32 v8, %s, v8" % f32(1.0 / 576))
    bf16_round(k, 8, 8, 8)
    k.e("v_add_f32 v8, %s, v8" % f32(1e-5))
    bf16_round(k, 8, 8, 8)
    k.e("v_sqrt_f32 v8, v8")
    k.e("s_nop 0")
    bf16_round(k, 8, 8, 8)
    k.e("v_rcp_f32 v9, v8")
    bf16_round(k, 6, 6, 6)
    for i in range(36):
        a, b = F + 2 * i, F + 2 * i + 1
        k.e("v_sub_f32 v%d, v%d, v6" % (a, a))
        k.e("v_sub_f32 v%d, v%d, v6" % (b, b))
        k.e("v_cvt_pk_bf16_f32 v12, v%d, v%d" % (a, b))
        k.e("v_lshlrev_b32 v%d, 16, v12" % a)
        k.e("v_and_b32 v%d, 0xffff0000, v12" % b)
        for x, q, e in ((a, 12, 13), (b, 14, 15)):
            k.e("v_mul_f32 v%d, v%d, v9" % (q, x))
            k.e("v_fma_f32 v%d, -v%d, v8, v%d" % (e, q, x))
            k.e("v_fma_f32 v%d, v%d, v9, v%d" % (q, e, q))
        k.e("v_cvt_pk_bf16_f32 v%d, v12, v14" % (X + i))
    if "pf5" in sys.argv:
        body = k.L[mark0:]
        del k.L[mark0:]
        pf = [(36, i) for i in range(21)] + [(40, i) for i in range(3)]
        if "pf2" not in sys.argv:
            pf += [(32, i) for i in range(21)]
        step = len(body) // len(pf)
        for n, l in enumerate(body):
            if n % step == 0 and n // step < len(pf) and "s_nop" not in l and "s_nop" not in body[n - 1]:
                srd, i = pf[n // step]
                k.e("s_mov_b32 s6, %d" % (i * 262144))
                k.vmem("buffer_load_dwordx4 %s, v200, s[%d:%d], s6 offen" % (vr(160 + 4 * (i % 8), 4), srd, srd + 3))
            k.L.append(l)
    k.e("v_lshrrev_b32 v5, 4, v2")
    k.e("v_mul_u32_u24 v5, 18432, v5")
    k.e("v_lshrrev_b32 v4, 2, v3")
    k.e("v_lshlrev_b32 v4, 10, v4")
    k.e("v_add_u32 v5, v5, v4")
    k.e("v_and_b32 v4, 3, v3")
    k.e("v_lshlrev_b32 v4, 8, v4")
    k.e("v_add_u32 v5, v5, v4")
    k.e("v_and_b32 v4, 15, v2")
    k.e("v_lshlrev_b32 v4, 4, v4")
    k.e("v_add_u32 v5, v5, v4")
    for i in range(9):
        k.e("s_mov_b32 s28, %d" % ((i >> 1) * 4096))
        k.vmem("buffer_store_dwordx4 %s, v5, s[%d:%d], s28 offen offset:%d%s" % (vr(X + 4 * i, 4), SO, SO + 3, (i & 1) * 2048, " sc1"))
    if "pf1" in sys.argv:
        k.c("---- pull the later kernels' weights towards the chip (read only, results unused)")
        k.e("s_lshl_b32 s28, s3, 2")
        k.e("s_add_u32 s28, s28, s%d" % S_W)
        k.e("s_lshl_b32 s28, s28, 10")
        k.e("v_lshlrev_b32 v4, 4, v1")
        k.e("v_add_u32 v4, s28, v4")
        for ptr, nb in ((P_W1, 4608 * 576 * 2), (P_WO, 576 * 576 * 2), (P_W2, 4608 * 576 * 2))[:1 if "pf4" in sys.argv else 2 if "pf2" in sys.argv else 3]:
            k.srd(SB, ptr, 0, nb)
            for i in range(-(-nb // 262144)):
                k.e("s_mov_b32 s28, %d" % (i * 262144))
                k.e("buffer_load_dwordx4 %s, v4, s[%d:%d], s28 offen" % (vr(88 + 4 * (i % 8), 4), SB, SB + 3))
        k.e("s_waitcnt vmcnt(0)")
        k.vm = []
    if fused:
        k.stamp()
        publish(k, F_LN, 3, first=True)
    k.dump(0)
    if fused:
        k.e("s_branch %s_attn" % k.name)
    else:
        k.e("s_endpgm")


def k1():
    k = K("k1")
    load_args(k)
    prologue_ids(k)
    NPF = int(opt("npf", 64)) if "pf4" in sys.argv else 0
    k.e("s_cmp_ge_u32 s2, %d" % (256 + NPF))
    k.e("s_cbranch_scc1 k1_exit")
    k.e("s_waitcnt lgkmcnt(0)")
    k.e("s_mov_b32 s3, s2")
    k.e("s_cmp_lt_u32 s2, 192")
    k.e("s_cbranch_scc1 k1_q")
    if NPF:
        k.e("s_cmp_lt_u32 s2, 256")
        k.e("s_cbranch_scc1 k1_ln")
        k.c("---- pull the later kernels' weights towards the chip (read only, results unused)")
        k.e("s_sub_u32 s3, s2, 256")
        k.e("s_lshl_b32 s28, s3, 2")
        k.e("s_add_u32 s28, s28, s%d" % S_W)
        k.e("s_lshl_b32 s28, s28, 10")
        k.e("v_lshlrev_b32 v4, 4, v1")
        k.e("v_add_u32 v4, s28, v4")
        for ptr, nb in ((P_W2, 4608 * 576 * 2), (P_WO, 576 * 576 * 2)):
            k.srd(SB, ptr, 0, nb)
            for i in range(-(-nb // (NPF * 4096))):
                k.e("s_mov_b32 s28, %d" % (i * NPF * 4096))
                k.e("buffer_load_dwordx4 %s, v4, s[%d:%d], s28 offen" % (vr(16 + 4 * (i % 8), 4), SB, SB + 3))
        k.e("s_waitcnt vmcnt(0)")
        k.e("s_endpgm")
        k.label("k1_ln")
    k.e("s_sub_u32 s3, s2, 192")
    k1_ln(k, False)
    k.label("k1_q")
    qkv_tile(k, False)
    k.dump(0)
    k.label("k1_exit")
    k.e("s_endpgm")
    return k, 248, 65536, 256 + NPF


def k1_body(k, fused):
    g = G(2)
    SC = " sc1" if fused else ""
    k.e("s_cmp_lt_u32 s2, 192")
    k.e("s_cbranch_scc1 k1_gemm")
    k.e("s_sub_u32 s3, s2, 192")
    k1_ln(k, fused)
    k.label("k1_gemm")
    k.vm = []
    k.lg = []
    k.e("s_and_b32 s3, s2, 15")
    k.e("s_lshl_b32 s3, s3, 7")
    k.e("s_lshr_b32 s4, s2, 4")
    k.srd(SA, P_X, 0, SZ_X)
    k.srd(SB, P_WQKV, 0, 576 * 1728 * 2)
    k.e("s_mul_i32 s%d, s4, 288" % S_BOFF)
    k.e("s_mov_b32 s%d, 0" % S_AOFF)
    a_offsets_rowmajor(k, g, 3, 1152)
    gemm_setup_b(k, g, 3456, True)
    gemm_main(k, g, 18, 3456, True, False)
    k.c("---- QKV epilogue")
    k.e("s_lshr_b32 s5, s4, 2")
    k.e("s_and_b32 s6, s4, 3")
    k.e("s_lshl_b32 s6, s6, 3")
    k.e("s_cmp_eq_u32 s5, 0")
    k.sel(28, "0x%x" % WS_Q, "0x%x" % WS_KV)
    k.sel(29, "0x%x" % (4 << 20), "0x%x" % (8 << 20))
    k.sel(32, 131072, 262144)
    k.sel(33, 2048, 4096)
    k.sel(38, f32(18 ** -0.5 * math.log2(math.e)), "1.0")
    k.e("s_add_u32 s%d, s%d, s28" % (SO, P_WS))
    k.e("s_addc_u32 s%d, s%d, 0" % (SO + 1, P_WS + 1))
    k.e("s_mov_b32 s%d, s29" % (SO + 2))
    k.e("s_mov_b32 s%d, 0x00020000" % (SO + 3))
    k.e("s_cmp_eq_u32 s5, 2")
    k.sel(34, 32, 1024)
    k.sel(35, 16, 512)
    k.sel(36, 2048, 0)
    k.sel(37, 64, 16)
    T = g.A
    k.e("s_lshl_b32 s28, s%d, 5" % S_W)
    k.e("s_add_u32 s28, s28, s3")
    k.e("s_lshr_b32 s28, s28, 5")
    k.e("s_mul_i32 s28, s28, s33")
    k.e("s_add_u32 s28, s28, s36")
    k.e("s_mul_i32 s29, s6, s32")
    k.e("s_add_u32 s28, s28, s29")
    k.e("v_and_b32 v2, 15, v1")
    k.e("v_mul_lo_u32 v10, v2, s37")
    k.e("v_add_u32 v10, s28, v10")
    k.e("s_lshl_b32 s29, s37, 4")
    k.e("v_add_u32 v11, s29, v10")
    k.e("v_lshrrev_b32 v3, 4, v1")
    k.e("v_lshlrev_b32 v3, 2, v3")
    for j in range(9):
        for pp in range(2):
            k.e("v_add_u32 v4, %d, v3" % (16 * j + 2 * pp))
            k.e("v_mul_u32_u24 v5, 3641, v4")
            k.e("v_lshrrev_b32 v5, 16, v5")
            k.e("v_mul_u32_u24 v6, 18, v5")
            k.e("v_sub_u32 v6, v4, v6")
            k.e("v_mul_lo_u32 v5, v5, s32")
            k.e("v_lshrrev_b32 v7, 4, v6")
            k.e("v_mul_lo_u32 v7, v7, s34")
            k.e("v_add_u32 v5, v5, v7")
            k.e("v_bfe_u32 v7, v6, 3, 1")
            k.e("v_mul_lo_u32 v7, v7, s35")
            k.e("v_add_u32 v5, v5, v7")
            k.e("v_and_b32 v7, 7, v6")
            k.e("v_lshlrev_b32 v7, 1, v7")
            k.e("v_add_u32 v5, v5, v7")
            for mi in range(2):
                a = g.acc(mi, j) + 2 * pp
                d = T + (j * 4 + pp * 2 + mi) % 16 * 2
                k.e("v_mul_f32 v%d, s38, v%d" % (a, a))
                k.e("v_mul_f32 v%d, s38, v%d" % (a + 1, a + 1))
                k.e("v_cvt_pk_bf16_f32 v%d, v%d, v%d" % (a, a, a + 1))
                k.e("v_add_u32 v%d, v5, v%d" % (a + 1, 10 + mi))
                k.vmem("buffer_store_dword v%d, v%d, s[%d:%d], 0 offen%s" % (a, a + 1, SO, SO + 3, SC))
    if fused:
        k.stamp()
    else:
        k.dump(0)
    k.e("s_cmp_eq_u32 s5, 0")
    k.e("s_cbranch_scc1 k1_done")
    k.e("v_and_b32 v2, 127, v0")
    k.e("v_add_u32 v2, s3, v2")
    k.e("v_lshrrev_b32 v3, 5, v2")
    k.e("v_mul_lo_u32 v3, v3, s33")
    k.e("v_and_b32 v2, 31, v2")
    k.e("v_mul_lo_u32 v2, v2, s37")
    k.e("v_add_u32 v2, v2, v3")
    k.e("v_lshrrev_b32 v3, 7, v0")
    k.e("v_lshlrev_b32 v3, 2, v3")
    k.e("v_add_u32 v3, s6, v3")
    k.e("v_mul_lo_u32 v3, v3, s32")
    k.e("v_add_u32 v2, v2, v3")
    k.e("s_add_u32 s28, s34, s36")
    k.e("v_add_u32 v2, s28, v2")
    k.e("v_add_u32 v3, s35, v2")
    k.e("v_add_u32 v2, 4, v2")
    k.e("v_mov_b32 v4, 0x3f803f80")
    for r in (5, 6, 8, 9, 10, 11):
        k.e("v_mov_b32 v%d, 0" % r)
    k.e("s_mov_b32 s28, 0")
    for h in range(4):
        k.vmem("buffer_store_dwordx3 v[4:6], v2, s[%d:%d], s28 offen%s" % (SO, SO + 3, SC))
        k.vmem("buffer_store_dwordx4 v[8:11], v3, s[%d:%d], s28 offen%s" % (SO, SO + 3, SC))
        k.e("s_add_u32 s28, s28, s32")
    k.label("k1_done")
    if fused:
        k.e("s_and_b32 s6, s4, 3")
        k.e("s_mul_i32 s6, s6, 48")
        k.e("s_lshl_b32 s5, s5, 4")
        k.e("s_add_u32 s6, s6, s5")
        k.e("s_lshr_b32 s3, s3, 7")
        k.e("s_add_u32 s6, s6, s3")
        publish(k, F_QKV, 6, first=True)
        k.dump(0)


def qkv_tile(k, fused=True):
    g = G(2, int(opt("qla", 2)), AR=int(opt("qar", 3)))
    AD = g.FREE
    k.vm = []
    k.lg = []
    k.e("s_lshr_b32 s4, s3, 4")
    k.e("s_and_b32 s3, s3, 15")
    k.srd(SA, P_X, 0, SZ_X)
    k.srd(SB, P_WQKV, 0, 576 * 1728 * 2)
    k.e("s_mul_i32 s%d, s4, 288" % S_BOFF)
    k.e("s_mov_b32 s%d, 0" % S_AOFF)
    k.e("s_lshl_b32 s28, s3, 2")
    k.e("s_add_u32 s33, s28, s%d" % S_W)
    k.e("s_lshl_b32 s28, s33, 5")
    k.e("v_and_b32 v2, 15, v1")
    k.e("v_add_u32 v2, s28, v2")
    k.e("v_mul_u32_u24 v2, 1152, v2")
    k.e("v_lshrrev_b32 v3, 4, v1")
    k.e("v_lshlrev_b32 v3, 4, v3")
    k.e("v_add_u32 v%d, v2, v3" % g.VA)
    k.e("v_add_u32 v%d, %d, v%d" % (g.VA + 1, 16 * 1152, g.VA))
    gemm_setup_b(k, g, 3456, True)

    def pre():
        k.c("epilogue addresses (in the shadow of the first loads)")
        k.e("s_lshr_b32 s5, s4, 2")
        k.e("s_cmp_eq_u32 s5, 2")
        k.sel(34, 32, 1024)
        k.sel(35, 16, 512)
        k.sel(37, 64, 16)
        k.e("s_lshl_b32 s28, s%d, 14" % S_W)
        k.e("v_and_b32 v2, 15, v1")
        k.e("v_mul_lo_u32 v10, v2, s37")
        k.e("v_add_u32 v10, s28, v10")
        k.e("s_lshl_b32 s29, s37, 4")
        k.e("v_lshrrev_b32 v3, 4, v1")
        k.e("v_lshlrev_b32 v3, 2, v3")
        for j in range(9):
            for pp in range(2):
                k.e("v_add_u32 v4, %d, v3" % (16 * j + 2 * pp))
                k.e("v_mul_u32_u24 v5, 3641, v4")
                k.e("v_lshrrev_b32 v5, 16, v5")
                k.e("v_mul_u32_u24 v6, 18, v5")
                k.e("v_sub_u32 v6, v4, v6")
                k.e("v_lshlrev_b32 v5, 11, v5")
                k.e("v_lshrrev_b32 v7, 4, v6")
                k.e("v_mul_lo_u32 v7, v7, s34")
                k.e("v_add_u32 v5, v5, v7")
                k.e("v_bfe_u32 v7, v6, 3, 1")
                k.e("v_mul_lo_u32 v7, v7, s35")
                k.e("v_add_u32 v5, v5, v7")
                k.e("v_and_b32 v7, 7, v6")
                k.e("v_lshlrev_b32 v7, 1, v7")
                k.e("v_add3_u32 v%d, v5, v7, v10" % (AD + (j * 2 + pp) * 2))
                k.e("v_add_u32 v%d, s29, v%d" % (AD + (j * 2 + pp) * 2 + 1, AD + (j * 2 + pp) * 2))
        k.e("v_and_b32 v2, 31, v1")
        k.e("v_mul_lo_u32 v2, v2, s37")
        k.e("v_lshrrev_b32 v3, 5, v1")
        k.e("v_lshlrev_b32 v3, 11, v3")
        k.e("s_add_u32 s29, s28, s34")
        k.e("v_add3_u32 v%d, v2, v3, s29" % (AD + 36))
        k.e("v_add_u32 v%d, s35, v%d" % (AD + 37, AD + 36))
        k.e("v_lshlrev_b32 v2, 4, v1")
        k.e("v_add_u32 v%d, s28, v2" % (AD + 38))
    gemm_main(k, g, 18, 3456, True, False, pre=pre)
    if "pf3" in sys.argv:
        k.c("---- pull the later kernels' weights towards the chip (read only, results unused)")
        k.e("s_lshl_b32 s28, s2, 2")
        k.e("s_add_u32 s28, s28, s%d" % S_W)
        k.e("s_lshl_b32 s28, s28, 10")
        k.e("v_lshlrev_b32 v%d, 4, v1" % g.VD)
        k.e("v_add_u32 v%d, s28, v%d" % (g.VD, g.VD))
        for ptr, nb in ((P_W1, 4608 * 576 * 2), (P_WO, 576 * 576 * 2), (P_W2, 4608 * 576 * 2)):
            k.srd(SB, ptr, 0, nb)
            for i in range(-(-nb // 786432)):
                k.e("s_mov_b32 s28, %d" % (i * 786432))
                k.vmem("buffer_load_dwordx4 %s, v%d, s[%d:%d], s28 offen" % (vr(g.B, 4), g.VD, SB, SB + 3))
    k.c("---- QKV epilogue through LDS")
    k.e("s_cmp_eq_u32 s5, 0")
    k.sel(28, "0x%x" % WS_Q, "0x%x" % WS_KV)
    k.sel(29, "0x%x" % (4 << 20), "0x%x" % (8 << 20))
    k.sel(32, 131072, 262144)
    k.sel(31, 2048, 4096)
    k.sel(38, f32(18 ** -0.5 * math.log2(math.e)), "1.0")
    k.e("s_add_u32 s%d, s%d, s28" % (SO, P_WS))
    k.e("s_addc_u32 s%d, s%d, 0" % (SO + 1, P_WS + 1))
    k.e("s_mov_b32 s%d, s29" % (SO + 2))
    k.e("s_mov_b32 s%d, 0x00020000" % (SO + 3))
    k.e("s_mul_i32 s31, s31, s33")
    k.e("s_and_b32 s28, s4, 3")
    k.e("s_lshl_b32 s28, s28, 3")
    k.e("s_mul_i32 s28, s28, s32")
    k.e("s_add_u32 s31, s31, s28")
    k.e("s_cmp_eq_u32 s5, 2")
    k.sel(28, 2048, 0)
    k.e("s_add_u32 s31, s31, s28")
    k.e("v_mov_b32 v4, 0x3f803f80")
    for r in (6, 7, 8, 9, 10, 11):
        k.e("v_mov_b32 v%d, 0" % r)
    k.e("s_barrier")
    for h in (0, 4096, 8192, 12288):
        k.ds("ds_write_b32 v%d, v4 offset:%d" % (AD + 36, 4 + h))
        k.ds("ds_write_b64 v%d, v[6:7] offset:%d" % (AD + 36, 8 + h))
        k.ds("ds_write_b128 v%d, v[8:11] offset:%d" % (AD + 37, h))
    for j in range(9):
        for pp in range(2):
            for mi in range(2):
                a = g.acc(mi, j) + 2 * pp
                k.e("v_mul_f32 v%d, s38, v%d" % (a, a))
                k.e("v_mul_f32 v%d, s38, v%d" % (a + 1, a + 1))
                k.e("v_cvt_pk_bf16_f32 v%d, v%d, v%d" % (a, a, a + 1))
                k.ds("ds_write_b32 v%d, v%d" % (AD + (j * 2 + pp) * 2 + mi, a))
    k.wait(lg='*')
    k.e("v_lshlrev_b32 v2, 4, v1")
    for i0 in (0, 8):
        for i in range(i0, i0 + 8):
            k.ds("ds_read_b128 %s, v%d offset:%d" % (vr(g.ACC + 4 * i, 4), AD + 38, i * 1024), ("R", i))
        for i in range(i0, i0 + 8):
            k.wait(lg=("R", i))
            k.vmem("buffer_store_dwordx4 %s, v2, s[%d:%d], s31 offen offset:%d sc1" % (vr(g.ACC + 4 * i, 4), SO, SO + 3, (i & 1) * 1024))
            if i & 1:
                k.e("s_add_u32 s31, s31, s32")
    if fused:
        k.stamp()
        k.e("s_and_b32 s6, s4, 3")
        k.e("s_mul_i32 s6, s6, 48")
        k.e("s_lshl_b32 s5, s5, 4")
        k.e("s_add_u32 s6, s6, s5")
        k.e("s_add_u32 s6, s6, s3")
        publish(k, F_QKV, 6, first=True)


def k2_gemm1(k, fused=False):
    g = G(4, 3)
    BIAS = g.FREE
    k.c("---- GEMM1: wg s3 = s2-256 in 0..255")
    k.e("s_and_b32 s3, s2, 255")
    k.e("s_and_b32 s4, s3, 7")
    k.e("s_lshl_b32 s4, s4, 2")
    k.e("s_bfe_u32 s5, s3, 0x20003")
    k.e("s_add_u32 s4, s4, s5")
    k.e("s_lshr_b32 s3, s3, 5")
    k.e("s_lshl_b32 s3, s3, 4")
    k.srd(SA, P_WS, WS_Y, SZ_X)
    k.srd(SB, P_W1, 0, 576 * 4608 * 2)
    k.srd(SO, P_WS, WS_H, SZ_H)
    k.srd(SX, P_B1, 0, 9216)
    k.e("s_mul_i32 s%d, s4, 288" % S_BOFF)
    k.e("s_mov_b32 s%d, 0" % S_AOFF)
    k.e("v_lshrrev_b32 v2, 4, v1")
    k.e("v_lshlrev_b32 v2, 3, v2")
    for j in range(9):
        k.vmem("buffer_load_dwordx2 %s, v2, s[%d:%d], s%d offen offset:%d" % (vr(BIAS + 2 * j, 2), SX, SX + 3, S_BOFF, j * 32), "bias")
    a_offsets_frag(k, g, 3, 18432)
    gemm_setup_b(k, g, 9216, True)
    wf = None
    if fused == 2:
        k.e("s_lshr_b32 s39, s3, 1")
        wf = lambda: (await_flags(k, F_LN, 39, 8), k.stamp())
    gemm_main(k, g, 18, 9216, True, True, waitfn=wf)
    if "pf2" in sys.argv:
        k.c("---- pull this die's share of W2 into its L2 (read only, results unused)")
        k.srd(SB, P_W2, 0, 4608 * 576 * 2)
        k.e("s_and_b32 s28, s2, 3")
        k.e("s_mul_i32 s28, s28, %d" % (1152 * 1152))
        k.e("s_bfe_u32 s29, s2, 0x50003")
        k.e("s_lshl_b32 s29, s29, 2")
        k.e("s_add_u32 s29, s29, s%d" % S_W)
        k.e("s_lshl_b32 s29, s29, 10")
        k.e("s_add_u32 s28, s28, s29")
        k.e("v_lshlrev_b32 v%d, 4, v1" % g.VD)
        for i in range(11):
            k.vmem("buffer_load_dwordx4 %s, v%d, s[%d:%d], s28 offen" % (vr(g.B, 4), g.VD, SB, SB + 3))
            if i < 10:
                k.e("s_add_u32 s28, s28, 131072")
    k.c("---- GELU epilogue")
    if "ge" in sys.argv:
        k.e("s_setprio 3")
    c0 = -2.0 * math.log2(math.e) * math.sqrt(2.0 / math.pi)
    c1 = c0 * 0.044715
    T = g.A
    if "an" in sys.argv and fused:
        l = k.newlabel("an")
        k.e("s_cmp_lg_u32 s%d, 0" % S_W)
        k.e("s_cbranch_scc1 %s" % l)
        k.srd(SF, P_DBG, 0, 256)
        k.e("buffer_load_dword v0, off, s[%d:%d], 0 sc1" % (SF, SF + 3))
        k.label(l)
    for r, c in ((8, c1), (9, c1), (10, c0), (11, c0), (12, 1.0), (13, 1.0)):
        k.e("v_mov_b32 v%d, %s" % (r, f32(c)))
    k.e("s_lshl_b32 s29, s%d, 2" % S_W)
    k.e("s_add_u32 s28, s3, s29")
    k.e("s_mul_i32 s28, s28, 147456")
    k.e("v_lshlrev_b32 v2, 4, v1")
    k.e("v_add_u32 v2, s28, v2")
    for mi in range(4):
        k.e("v_add_u32 v%d, %d, v2" % (g.VA + mi, mi * 147456))
    k.e("s_mul_i32 s30, s4, 9")
    k.e("s_and_b32 s31, s4, 1")
    k.e("s_cmp_lg_u32 s31, 0")
    k.e("s_cbranch_scc1 %s_gelu1" % k.name)
    for par in (0, 1):
        if par:
            k.label("%s_gelu1" % k.name)
        groups = [(0, 1), (2, 3), (4, 5), (6, 7), (8,)] if par == 0 else [(0,), (1, 2), (3, 4), (5, 6), (7, 8)]
        n = 0
        for grp in groups:
            k.e("s_add_u32 s31, s30, %d" % grp[0])
            k.e("s_lshr_b32 s32, s31, 1")
            k.e("s_lshl_b32 s32, s32, 10")
            if len(grp) == 1 and par == 1:
                k.e("s_add_u32 s32, s32, 8")
            bregs = ((4, 6), (14, 2))
            for j, (b0, b1) in zip(grp, bregs):
                b = BIAS + 2 * j
                k.e("v_lshlrev_b32 v%d, 16, v%d" % (b0, b))
                k.e("v_and_b32 v%d, 0xffff0000, v%d" % (b0 + 1, b))
                k.e("v_lshlrev_b32 v%d, 16, v%d" % (b1, b + 1))
                k.e("v_and_b32 v%d, 0xffff0000, v%d" % (b1 + 1, b + 1))
            for mp in range(2):
                prs = []
                slots = []
                for q in range(2):
                    t = T + ((n % 2) * 2 + q) * 12
                    slots.append(t)
                    for jj, j in enumerate(grp):
                        a = g.acc(2 * mp + q, j)
                        prs += [(a, t + 4 * jj, bregs[jj][0]), (a + 2, t + 4 * jj + 2, bregs[jj][1])]
                n += 1
                for a, t, bb in prs:
                    k.e("v_pk_add_f32 %s, %s, %s" % (vr(a, 2), vr(a, 2), vr(bb, 2)))
                for a, t, bb in prs:
                    k.e("v_pk_mul_f32 %s, %s, %s" % (vr(t, 2), vr(a, 2), vr(a, 2)))
                for a, t, bb in prs:
                    k.e("v_pk_fma_f32 %s, %s, v[8:9], v[10:11]" % (vr(t, 2), vr(t, 2)))
                for a, t, bb in prs:
                    k.e("v_pk_mul_f32 %s, %s, %s" % (vr(t, 2), vr(t, 2), vr(a, 2)))
                for a, t, bb in prs:
                    k.e("v_exp_f32 v%d, v%d" % (t, t))
                    k.e("v_exp_f32 v%d, v%d" % (t + 1, t + 1))
                for a, t, bb in prs:
                    k.e("v_pk_add_f32 %s, %s, v[12:13]" % (vr(t, 2), vr(t, 2)))
                for a, t, bb in prs:
                    k.e("v_rcp_f32 v%d, v%d" % (t, t))
                    k.e("v_rcp_f32 v%d, v%d" % (t + 1, t + 1))
                for a, t, bb in prs:
                    k.e("v_pk_mul_f32 %s, %s, %s" % (vr(t, 2), vr(t, 2), vr(a, 2)))
                for q in range(2):
                    t = slots[q]
                    for jj in range(len(grp)):
                        k.e("v_cvt_pk_bf16_f32 v%d, v%d, v%d" % (t + 8 + 2 * jj, t + 4 * jj, t + 4 * jj + 1))
                        k.e("v_cvt_pk_bf16_f32 v%d, v%d, v%d" % (t + 9 + 2 * jj, t + 4 * jj + 2, t + 4 * jj + 3))
                    k.vmem("buffer_store_dwordx%d %s, v%d, s[%d:%d], s32 offen sc1" % (2 * len(grp), vr(t + 8, 2 * len(grp)), g.VA + 2 * mp + q, SO, SO + 3))
        if par == 0:
            k.e("s_branch %s_gelu_end" % k.name)
    k.label("%s_gelu_end" % k.name)
    k.dump(1)
    if fused:
        k.e("s_lshr_b32 s3, s3, 4")
        k.e("s_lshl_b32 s3, s3, 5")
        k.e("s_add_u32 s3, s3, s4")
        if "ge0" in sys.argv:
            k.e("s_setprio 0")
        publish(k, F_H, 3, first="fast" if "an" in sys.argv else (fused == 1))
    else:
        k.e("s_endpgm")


def attn(k, half, kidx, nxt=None, wait=False):
    N = k.name + "h%d" % half
    O, S0, S1, P0, P1, Q, KR, VR = 16, 32, 48, 64, 72, 80, 88, 104
    SS, PP = (S0, S1), (P0, P1)
    VKC, VVC, VKN, VVN, VKB, VVB, VDM = 120, 121, 122, 123, 124, 125, 126
    S_NB, S_DOFF, S_CNT, S_FLAG, S_T = 28, 29, 30, 31, 32
    LOMASK = 40
    k.c("---- attention: wg s3 in 0..255")
    k.e("s_and_b32 s3, s2, 255")
    k.e("s_and_b32 s4, s3, 7")
    k.e("s_lshr_b32 s5, s3, 6")
    k.e("s_lshl_b32 s5, s5, 3")
    k.e("s_add_u32 s4, s4, s5")
    k.e("s_bfe_u32 s5, s3, 0x30003")
    k.e("s_lshl_b32 s5, s5, 2")
    k.e("s_add_u32 s5, s5, s%d" % S_W)
    k.e("s_add_u32 s5, s5, %d" % (half * 32))
    if wait:
        k.e("s_lshr_b32 s39, s4, 3")
        k.e("s_mul_i32 s39, s39, 48")
        await_flags(k, F_QKV, 39, 48, acquire=True)
        k.stamp()
    k.srd(SA, P_WS, WS_Q, 4 << 20)
    k.srd(SB, P_WS, WS_KV, 8 << 20)
    k.srd(SO, P_WS, WS_O, SZ_X)
    k.e("s_mov_b32 s%d, -1" % LOMASK)
    k.e("s_mov_b32 s%d, 0" % (LOMASK + 1))
    k.e("s_mov_b32 s%d, 0" % S_FLAG)
    k.e("s_lshl_b32 s%d, s%d, 12" % (S_WB, S_W))
    k.e("s_lshl_b32 s%d, s4, 18" % S_DOFF)
    k.e("s_mov_b32 s33, s%d" % S_DOFF)
    k.e("v_lshlrev_b32 v2, 4, v1")
    k.e("v_add_u32 v%d, s%d, v2" % (VDM, S_WB))

    def dma(m0expr):
        k.e(m0expr)
        k.e("s_nop 0")
        for i in range(4):
            k.e("buffer_load_dwordx4 v%d, s[%d:%d], s%d offen offset:%d lds" % (VDM, SB, SB + 3, S_DOFF, i * 1024))
        k.e("s_add_u32 s%d, s%d, 16384" % (S_DOFF, S_DOFF))
    dma("s_mov_b32 m0, s%d" % S_WB)
    k.e("s_lshl_b32 s34, s4, 6")
    k.e("s_add_u32 s34, s34, s5")
    k.e("s_lshl_b32 s34, s34, 11")
    for u in (0, 1):
        k.e("buffer_load_dwordx4 %s, v2, s[%d:%d], s34 offen offset:%d" % (vr(Q + 4 * u, 4), SA, SA + 3, u * 1024))
    dma("s_add_u32 m0, s%d, 16384" % S_WB)
    k.e("v_mov_b32 v%d, v2" % VKB)
    k.e("v_lshrrev_b32 v3, 5, v1")
    k.e("v_lshlrev_b32 v3, 2, v3")
    k.e("v_bfe_u32 v4, v1, 2, 2")
    k.e("v_add_u32 v3, v3, v4")
    k.e("v_lshlrev_b32 v3, 6, v3")
    k.e("v_bfe_u32 v4, v1, 4, 1")
    k.e("v_lshlrev_b32 v4, 5, v4")
    k.e("v_and_b32 v5, 3, v1")
    k.e("v_lshlrev_b32 v5, 3, v5")
    k.e("v_add3_u32 v3, v3, v4, v5")
    k.e("v_add_u32 v%d, 2048, v3" % VVB)
    k.e("v_mov_b32 v%d, v%d" % (VKC, VKB))
    k.e("v_mov_b32 v%d, v%d" % (VVC, VVB))
    k.e("v_add_u32 v%d, 16384, v%d" % (VKN, VKB))
    k.e("v_add_u32 v%d, 16384, v%d" % (VVN, VVB))
    k.e("s_mov_b32 s%d, 16384" % S_NB)
    for r in list(range(O, O + 16)) + list(range(P1, P1 + 8)) + list(range(VR + 8, VR + 16)):
        k.e("v_mov_b32 v%d, 0" % r)
    k.e("s_waitcnt vmcnt(4)")
    k.e("v_cndmask_b32 v%d, 0, v%d, s[%d:%d]" % (Q + 4, Q + 4, LOMASK, LOMASK + 1))
    for r in (5, 6, 7):
        k.e("v_mov_b32 v%d, 0" % (Q + r))
    k.e("s_barrier")
    k.stamp()

    def ldk(buf, va, tile):
        for u in (0, 1):
            k.e("ds_read_b128 %s, v%d offset:%d" % (vr(KR + 8 * buf + 4 * u, 4), va, tile * 4096 + u * 1024))

    def ldv(buf, va, tile):
        for u in (0, 1):
            for h in (0, 1):
                k.e("ds_read_b64_tr_b16 %s, v%d offset:%d" % (vr(VR + 8 * buf + 4 * u + 2 * h, 2), va, tile * 4096 + u * 1024 + h * 512))

    def qk(S, kb, part):
        if part == 0:
            return "v_mfma_f32_32x32x16_bf16 %s, %s, %s, 0" % (vr(S, 16), vr(KR + 8 * kb, 4), vr(Q, 4))
        return "v_mfma_f32_32x32x16_bf16 %s, %s, %s, %s" % (vr(S, 16), vr(KR + 8 * kb + 4, 4), vr(Q + 4, 4), vr(S, 16))

    def pv(vb, P, u):
        return "v_mfma_f32_32x32x16_bf16 %s, %s, %s, %s" % (vr(O, 16), vr(VR + 8 * vb + 4 * u, 4), vr(P + 4 * u, 4), vr(O, 16))

    def softmax_ops(S, P):
        e = lambda i: "v_exp_f32 v%d, v%d" % (S + i, S + i)
        c = lambda i: "v_cvt_pk_bf16_f32 v%d, v%d, v%d" % (P + i, S + 2 * i, S + 2 * i + 1)
        ops = [e(0), e(1), e(2), e(3), c(0)]
        for i in range(1, 7):
            ops += [e(2 * i + 2), e(2 * i + 3), c(i)]
        ops += [c(7)]
        return ops

    def phase(S, P, mf):
        ops = softmax_ops(S, P)
        for i, o in enumerate(ops):
            if i % 6 == 0 and i // 6 < len(mf):
                k.e(mf[i // 6])
            k.e(o)

    def rowmax(S, first, M):
        k.e("v_max3_f32 v2, v%d, v%d, v%d" % (S, S + 1, S + 2))
        for i in range(3, 15, 2):
            k.e("v_max3_f32 v2, v2, v%d, v%d" % (S + i, S + i + 1))
        if first:
            k.e("v_max_f32 v%d, v2, v%d" % (M, S + 15))
        else:
            k.e("v_max3_f32 v%d, v2, v%d, v%d" % (M, S + 15, M))

    def patch(M):
        k.e("v_mov_b32 v3, v%d" % M)
        k.e("v_mov_b32 v4, v%d" % M)
        k.e("s_nop 1")
        k.e("v_permlane32_swap_b32 v3, v4")
        k.e("s_nop 1")
        k.e("v_max_f32 v3, v3, v4")
        k.e("v_sub_f32 v3, 0, v3")
        k.e("v_cvt_pk_bf16_f32 v4, v3, v3")
        k.e("v_lshlrev_b32 v4, 16, v4")
        k.e("v_sub_f32 v3, v3, v4")
        k.e("v_cvt_pk_bf16_f32 v3, v4, v3")
        k.e("v_cndmask_b32 v%d, 0, v3, s[%d:%d]" % (Q + 5, LOMASK, LOMASK + 1))

    ldk(0, VKC, 0)
    ldk(1, VKC, 1)
    k.e("s_waitcnt lgkmcnt(0)")
    k.e(qk(S0, 0, 0))
    k.e(qk(S0, 0, 1))
    k.e("s_nop 7")
    k.e("s_nop 7")
    rowmax(S0, True, 6)
    patch(6)
    k.e("s_nop 1")
    k.e(qk(S0, 0, 0))
    k.e(qk(S0, 0, 1))
    k.e("s_nop 7")
    k.e("s_nop 7")
    k.stamp()
    k.e("s_mov_b32 s%d, 16" % S_CNT)
    k.label(N + "_aloop")
    for tt in range(4):
        k.e("s_waitcnt lgkmcnt(0)")
        if tt == 2:
            k.e("s_waitcnt vmcnt(0)")
            k.e("s_barrier")
            k.e("s_add_u32 s%d, s%d, 16384" % (S_T, S_NB))
            k.e("s_cmp_eq_u32 s%d, 49152" % S_T)
            k.e("s_cmov_b32 s%d, 0" % S_T)
            dma("s_add_u32 m0, s%d, s%d" % (S_T, S_WB))
        if tt + 2 < 4:
            ldk(tt & 1, VKC, tt + 2)
        else:
            ldk(tt & 1, VKN, tt - 2)
        ldv(tt & 1, VVC, tt)
        o = (tt + 1) & 1
        phase(SS[tt & 1], PP[tt & 1], [qk(SS[o], o, 0), qk(SS[o], o, 1), pv(o, PP[o], 0), pv(o, PP[o], 1)])
    k.e("v_mov_b32 v%d, v%d" % (VKC, VKN))
    k.e("v_mov_b32 v%d, v%d" % (VVC, VVN))
    k.e("s_mov_b32 s%d, s%d" % (S_NB, S_T))
    k.e("v_add_u32 v%d, s%d, v%d" % (VKN, S_NB, VKB))
    k.e("v_add_u32 v%d, s%d, v%d" % (VVN, S_NB, VVB))
    k.e("s_sub_u32 s%d, s%d, 1" % (S_CNT, S_CNT))
    k.e("s_cmp_lg_u32 s%d, 0" % S_CNT)
    k.e("s_cbranch_scc1 %s_aloop" % N)
    k.e("s_waitcnt lgkmcnt(0)")
    k.e(pv(1, P1, 0))
    k.e(pv(1, P1, 1))
    k.stamp()
    k.label(N + "_fin")
    k.e("s_waitcnt vmcnt(0) lgkmcnt(0)")
    k.e("s_nop 7")
    k.e("s_nop 7")
    k.e("v_mov_b32 v8, v%d" % (O + 10))
    k.e("v_mov_b32 v9, v%d" % (O + 10))
    k.e("s_nop 1")
    k.e("v_permlane32_swap_b32 v8, v9")
    k.e("s_nop 1")
    k.e("s_cmp_lg_u32 s%d, 0" % S_FLAG)
    k.e("s_cbranch_scc1 %s_store" % N)
    k.e("v_mov_b32 v3, %s" % f32(2.0 ** 40))
    k.e("v_cmp_nlt_f32 vcc, v8, v3")
    k.e("s_cbranch_vccnz %s_fallback" % N)
    k.label(N + "_store")
    k.e("v_rcp_f32 v8, v8")
    k.e("s_lshl_b32 s34, s5, 5")
    k.e("v_and_b32 v2, 31, v1")
    k.e("v_add_u32 v2, s34, v2")
    k.e("v_lshrrev_b32 v3, 4, v2")
    k.e("v_mul_u32_u24 v3, 18432, v3")
    k.e("v_and_b32 v2, 15, v2")
    k.e("v_lshlrev_b32 v2, 4, v2")
    k.e("v_add_u32 v2, v2, v3")
    k.e("s_mul_i32 s35, s4, 18")
    k.e("v_lshrrev_b32 v3, 5, v1")
    k.e("v_lshlrev_b32 v3, 2, v3")
    k.e("v_add_u32 v3, s35, v3")
    AD = S0
    for r, dd in enumerate((0, 2, 8, 10, 16)):
        k.e("v_add_u32 v4, %d, v3" % dd)
        k.e("v_lshrrev_b32 v5, 5, v4")
        k.e("v_lshlrev_b32 v5, 10, v5")
        k.e("v_bfe_u32 v6, v4, 3, 2")
        k.e("v_lshlrev_b32 v6, 8, v6")
        k.e("v_and_b32 v4, 7, v4")
        k.e("v_lshlrev_b32 v4, 1, v4")
        k.e("v_add3_u32 v4, v4, v5, v6")
        k.e("v_add_u32 v%d, v4, v2" % (AD + r))
    for r in range(10):
        k.e("v_mul_f32 v%d, v%d, v8" % (O + r, O + r))
    for r in range(5):
        k.e("v_cvt_pk_bf16_f32 v%d, v%d, v%d" % (O + r, O + 2 * r, O + 2 * r + 1))
    for r in range(4):
        k.e("buffer_store_dword v%d, v%d, s[%d:%d], 0 offen" % (O + r, AD + r, SO, SO + 3))
    k.e("s_mov_b64 exec, s[%d:%d]" % (LOMASK, LOMASK + 1))
    k.e("buffer_store_dword v%d, v%d, s[%d:%d], 0 offen" % (O + 4, AD + 4, SO, SO + 3))
    k.e("s_mov_b64 exec, -1")
    k.dump(kidx)
    k.e("s_branch %s" % nxt if nxt else "s_endpgm")
    k.label(N + "_fallback")
    k.e("s_mov_b32 s%d, 1" % S_FLAG)
    k.e("v_mov_b32 v%d, 0" % (Q + 5))
    k.e("v_mov_b32 v6, 0xff800000")
    k.e("s_add_u32 s38, s%d, 49152" % S_WB)
    k.e("v_lshlrev_b32 v12, 4, v1")
    k.e("v_add_u32 v13, s38, v%d" % VKB)
    k.e("v_add_u32 v14, s38, v%d" % VVB)
    for ps in (0, 1):
        k.e("s_mov_b32 s%d, s33" % S_DOFF)
        k.e("s_mov_b32 s%d, 64" % S_CNT)
        k.label("%s_fb%d" % (N, ps))
        k.e("s_mov_b32 m0, s38")
        k.e("s_nop 0")
        for i in range(4):
            k.e("buffer_load_dwordx4 v12, s[%d:%d], s%d offen offset:%d lds" % (SB, SB + 3, S_DOFF, i * 1024))
        k.e("s_add_u32 s%d, s%d, 4096" % (S_DOFF, S_DOFF))
        k.e("s_waitcnt vmcnt(0)")
        ldk(0, 13, 0)
        if ps:
            ldv(0, 14, 0)
        k.e("s_waitcnt lgkmcnt(0)")
        k.e(qk(S0, 0, 0))
        k.e(qk(S0, 0, 1))
        k.e("s_nop 7")
        k.e("s_nop 7")
        if ps == 0:
            rowmax(S0, False, 6)
        else:
            for o in softmax_ops(S0, P0):
                k.e(o)
            k.e("s_nop 1")
            k.e(pv(0, P0, 0))
            k.e(pv(0, P0, 1))
        k.e("s_sub_u32 s%d, s%d, 1" % (S_CNT, S_CNT))
        k.e("s_cmp_lg_u32 s%d, 0" % S_CNT)
        k.e("s_cbranch_scc1 %s_fb%d" % (N, ps))
        if ps == 0:
            patch(6)
            for r in range(16):
                k.e("v_mov_b32 v%d, 0" % (O + r))
            k.e("s_nop 1")
    k.e("s_branch %s_fin" % N)


def attn2(k, kidx, nxt=None, wait=False):
    OA, OB, SAq, SBq, PA, PB, QA, QB, KR, VR = 16, 32, 48, 64, 80, 88, 96, 104, 112, 128
    VKC, VVC, VKN, VVN, VKB, VVB, VDM = 144, 145, 146, 147, 148, 149, 150
    S_NB, S_DOFF, S_CNT, S_FLAG, S_T = 28, 29, 30, 31, 32
    LOMASK = 40
    k.c("---- attention: wg s3 = s2-256")
    k.e("s_and_b32 s3, s2, 255")
    k.e("s_and_b32 s4, s3, 7")
    k.e("s_lshr_b32 s5, s3, 6")
    k.e("s_lshl_b32 s5, s5, 3")
    k.e("s_add_u32 s4, s4, s5")
    k.e("s_bfe_u32 s5, s3, 0x30003")
    if wait:
        k.e("s_lshr_b32 s39, s4, 3")
        k.e("s_mul_i32 s39, s39, 48")
        await_flags(k, F_QKV, 39, 48, acquire=True)
        k.stamp()
    k.srd(SA, P_WS, WS_Q, 4 << 20)
    k.srd(SB, P_WS, WS_KV, 8 << 20)
    k.srd(SO, P_WS, WS_O, 128 * 24576)
    k.e("s_mov_b32 s%d, -1" % LOMASK)
    k.e("s_mov_b32 s%d, 0" % (LOMASK + 1))
    k.e("s_mov_b32 s%d, 0" % S_FLAG)
    k.e("s_lshl_b32 s%d, s%d, 12" % (S_WB, S_W))
    k.e("s_lshl_b32 s%d, s4, 18" % S_DOFF)
    k.e("s_mov_b32 s33, s%d" % S_DOFF)
    k.e("v_lshlrev_b32 v2, 4, v1")
    k.e("v_add_u32 v%d, s%d, v2" % (VDM, S_WB))
    def dma(m0expr):
        k.e(m0expr)
        k.e("s_nop 0")
        for i in range(4):
            k.e("buffer_load_dwordx4 v%d, s[%d:%d], s%d offen offset:%d lds" % (VDM, SB, SB + 3, S_DOFF, i * 1024))
        k.e("s_add_u32 s%d, s%d, 16384" % (S_DOFF, S_DOFF))
    dma("s_mov_b32 m0, s%d" % S_WB)
    dma("s_add_u32 m0, s%d, 16384" % S_WB)
    k.e("s_lshl_b32 s34, s4, 6")
    k.e("s_lshl_b32 s35, s5, 3")
    k.e("s_add_u32 s34, s34, s35")
    k.e("s_lshl_b32 s35, s%d, 1" % S_W)
    k.e("s_add_u32 s34, s34, s35")
    k.e("s_lshl_b32 s34, s34, 11")
    for X in (0, 1):
        for u in (0, 1):
            k.e("buffer_load_dwordx4 %s, v2, s[%d:%d], s34 offen offset:%d" % (vr(QA + 8 * X + 4 * u, 4), SA, SA + 3, X * 2048 + u * 1024))
    k.e("v_mov_b32 v%d, v2" % VKB)
    k.e("v_lshrrev_b32 v3, 5, v1")
    k.e("v_lshlrev_b32 v3, 2, v3")
    k.e("v_bfe_u32 v4, v1, 2, 2")
    k.e("v_add_u32 v3, v3, v4")
    k.e("v_lshlrev_b32 v3, 6, v3")
    k.e("v_bfe_u32 v4, v1, 4, 1")
    k.e("v_lshlrev_b32 v4, 5, v4")
    k.e("v_and_b32 v5, 3, v1")
    k.e("v_lshlrev_b32 v5, 3, v5")
    k.e("v_add3_u32 v3, v3, v4, v5")
    k.e("v_add_u32 v%d, 2048, v3" % VVB)
    k.e("v_mov_b32 v%d, v%d" % (VKC, VKB))
    k.e("v_mov_b32 v%d, v%d" % (VVC, VVB))
    k.e("v_add_u32 v%d, 16384, v%d" % (VKN, VKB))
    k.e("v_add_u32 v%d, 16384, v%d" % (VVN, VVB))
    k.e("s_mov_b32 s%d, 16384" % S_NB)
    for r in range(32):
        k.e("v_mov_b32 v%d, 0" % (OA + r))
    if "t4" in sys.argv and "an" not in sys.argv:
        l = k.newlabel("an")
        k.e("s_cmp_lg_u32 s%d, 0" % S_W)
        k.e("s_cbranch_scc1 %s" % l)
        nonce_get(k)
        k.label(l)
    k.e("s_waitcnt vmcnt(0)")
    for X in (0, 1):
        q = QA + 8 * X + 4
        k.e("v_cndmask_b32 v%d, 0, v%d, s[%d:%d]" % (q, q, LOMASK, LOMASK + 1))
        for r in (1, 2, 3):
            k.e("v_mov_b32 v%d, 0" % (q + r))
    k.e("s_barrier")
    k.stamp()

    def ldk(buf, va, tile):
        for u in (0, 1):
            k.e("ds_read_b128 %s, v%d offset:%d" % (vr(KR + 8 * buf + 4 * u, 4), va, tile * 4096 + u * 1024))

    def ldv(buf, va, tile):
        for u in (0, 1):
            for h in (0, 1):
                k.e("ds_read_b64_tr_b16 %s, v%d offset:%d" % (vr(VR + 8 * buf + 4 * u + 2 * h, 2), va, tile * 4096 + u * 1024 + h * 512))

    def qk(S, kb, Q, part):
        if part == 0:
            return "v_mfma_f32_32x32x16_bf16 %s, %s, %s, 0" % (vr(S, 16), vr(KR + 8 * kb, 4), vr(Q, 4))
        return "v_mfma_f32_32x32x16_bf16 %s, %s, %s, %s" % (vr(S, 16), vr(KR + 8 * kb + 4, 4), vr(Q + 4, 4), vr(S, 16))

    def pv(O, vb, P, u):
        return "v_mfma_f32_32x32x16_bf16 %s, %s, %s, %s" % (vr(O, 16), vr(VR + 8 * vb + 4 * u, 4), vr(P + 4 * u, 4), vr(O, 16))

    def softmax_ops(S, P):
        e = lambda i: "v_exp_f32 v%d, v%d" % (S + i, S + i)
        c = lambda i: "v_cvt_pk_bf16_f32 v%d, v%d, v%d" % (P + i, S + 2 * i, S + 2 * i + 1)
        ops = [e(0), e(1), e(2), e(3), c(0)]
        for i in range(1, 7):
            ops += [e(2 * i + 2), e(2 * i + 3), c(i)]
        ops += [c(7)]
        return ops

    def phase(S, P, mf):
        ops = softmax_ops(S, P)
        for i, o in enumerate(ops):
            if i % 6 == 0 and i // 6 < len(mf) and "aXm" not in sys.argv:
                k.e(mf[i // 6])
            if "aXc" in sys.argv and "cvt" in o:
                continue
            if "aXe" in sys.argv and "exp" in o:
                continue
            k.e(o)

    def rowmax_patch(S, Q, first, M):
        k.e("v_max3_f32 v2, v%d, v%d, v%d" % (S, S + 1, S + 2))
        for i in range(3, 15, 2):
            k.e("v_max3_f32 v2, v2, v%d, v%d" % (S + i, S + i + 1))
        if first:
            k.e("v_max_f32 v%d, v2, v%d" % (M, S + 15))
        else:
            k.e("v_max3_f32 v%d, v2, v%d, v%d" % (M, S + 15, M))

    def patch(M, Q):
        k.e("v_mov_b32 v3, v%d" % M)
        k.e("v_mov_b32 v4, v%d" % M)
        k.e("s_nop 1")
        k.e("v_permlane32_swap_b32 v3, v4")
        k.e("s_nop 1")
        k.e("v_max_f32 v3, v3, v4")
        k.e("v_sub_f32 v3, 0, v3")
        k.e("v_cvt_pk_bf16_f32 v4, v3, v3")
        k.e("v_lshlrev_b32 v4, 16, v4")
        k.e("v_sub_f32 v3, v3, v4")
        k.e("v_cvt_pk_bf16_f32 v3, v4, v3")
        k.e("v_cndmask_b32 v%d, 0, v3, s[%d:%d]" % (Q + 5, LOMASK, LOMASK + 1))

    ldk(0, VKC, 0)
    ldk(1, VKC, 1)
    ldv(0, VVC, 0)
    k.e("s_waitcnt lgkmcnt(0)")
    for S, Q in ((SAq, QA), (SBq, QB)):
        k.e(qk(S, 0, Q, 0))
        k.e(qk(S, 0, Q, 1))
    k.e("s_nop 7")
    k.e("s_nop 7")
    rowmax_patch(SAq, QA, True, 6)
    rowmax_patch(SBq, QB, True, 7)
    patch(6, QA)
    patch(7, QB)
    k.e("s_nop 1")
    k.e(qk(SAq, 0, QA, 0))
    k.e(qk(SAq, 0, QA, 1))
    k.e("s_nop 7")
    k.e("s_nop 7")
    phase(SAq, PA, [qk(SBq, 0, QB, 0), qk(SBq, 0, QB, 1)])
    k.stamp()
    k.e("s_mov_b32 s%d, 16" % S_CNT)
    k.label("ka_loop")
    for tt in range(4):
        k.e("s_waitcnt lgkmcnt(0)")
        if tt == 2:
            k.e("s_waitcnt vmcnt(0)")
            if "aXb" not in sys.argv:
                k.e("s_barrier")
            k.e("s_add_u32 s%d, s%d, 16384" % (S_T, S_NB))
            k.e("s_cmp_eq_u32 s%d, 49152" % S_T)
            k.e("s_cmov_b32 s%d, 0" % S_T)
            dma("s_add_u32 m0, s%d, s%d" % (S_T, S_WB))
        if "aXl" in sys.argv:
            pass
        elif tt + 2 < 4:
            ldk(tt & 1, VKC, tt + 2)
        else:
            ldk(tt & 1, VKN, tt - 2)
        if "aXl" in sys.argv:
            pass
        elif tt + 1 < 4:
            ldv((tt + 1) & 1, VVC, tt + 1)
        else:
            ldv((tt + 1) & 1, VVN, 0)
        kb, vb = (tt + 1) & 1, tt & 1
        phase(SBq, PB, [qk(SAq, kb, QA, 0), qk(SAq, kb, QA, 1), pv(OA, vb, PA, 0), pv(OA, vb, PA, 1)])
        phase(SAq, PA, [qk(SBq, kb, QB, 0), qk(SBq, kb, QB, 1), pv(OB, vb, PB, 0), pv(OB, vb, PB, 1)])
    k.e("v_mov_b32 v%d, v%d" % (VKC, VKN))
    k.e("v_mov_b32 v%d, v%d" % (VVC, VVN))
    k.e("s_mov_b32 s%d, s%d" % (S_NB, S_T))
    k.e("v_add_u32 v%d, s%d, v%d" % (VKN, S_NB, VKB))
    k.e("v_add_u32 v%d, s%d, v%d" % (VVN, S_NB, VVB))
    k.e("s_sub_u32 s%d, s%d, 1" % (S_CNT, S_CNT))
    k.e("s_cmp_lg_u32 s%d, 0" % S_CNT)
    k.e("s_cbranch_scc1 ka_loop")
    k.stamp()
    k.label("ka_fin")
    k.e("s_waitcnt vmcnt(0) lgkmcnt(0)")
    k.e("s_nop 7")
    k.e("s_nop 7")
    for X, O in ((0, OA), (1, OB)):
        k.e("v_mov_b32 v%d, v%d" % (8 + 2 * X, O + 10))
        k.e("v_mov_b32 v%d, v%d" % (9 + 2 * X, O + 10))
    k.e("s_nop 1")
    k.e("v_permlane32_swap_b32 v8, v9")
    k.e("v_permlane32_swap_b32 v10, v11")
    k.e("s_nop 1")
    k.e("s_cmp_lg_u32 s%d, 0" % S_FLAG)
    k.e("s_cbranch_scc1 ka_store")
    k.e("v_max_f32 v2, v8, v10")
    k.e("v_mov_b32 v3, %s" % f32(2.0 ** 40))
    k.e("v_cmp_nlt_f32 vcc, v8, v3")
    k.e("s_nop 1")
    k.e("s_mov_b64 s[36:37], vcc")
    k.e("v_cmp_nlt_f32 vcc, v10, v3")
    k.e("s_nop 1")
    k.e("s_or_b64 s[36:37], vcc, s[36:37]")
    k.e("s_cbranch_scc1 ka_fallback")
    k.label("ka_store")
    if "an" in sys.argv:
        l = k.newlabel("an")
        k.e("s_cmp_lg_u32 s%d, 0" % S_W)
        k.e("s_cbranch_scc1 %s" % l)
        k.srd(SF, P_DBG, 0, 256)
        k.e("buffer_load_dword v0, off, s[%d:%d], 0 sc1" % (SF, SF + 3))
        k.label(l)
    k.e("v_rcp_f32 v8, v8")
    k.e("v_rcp_f32 v10, v10")
    if "t4" in sys.argv:
        k.e("s_lshl_b32 s34, s5, 8")
        k.e("s_lshl_b32 s35, s%d, 6" % S_W)
        k.e("s_add_u32 s34, s34, s35")
        k.e("s_mul_i32 s35, s4, 3")
        for r in (0, 1):
            if r == 0:
                k.e("v_and_b32 v2, 31, v1")
                k.e("v_add_u32 v2, s34, v2")
                k.e("v_lshrrev_b32 v3, 5, v1")
                k.e("v_add_u32 v3, s35, v3")
            else:
                k.e("v_add_u32 v2, s34, v1")
                k.e("v_mov_b32 v3, s35")
                k.e("v_add_u32 v3, 2, v3")
            k.e("v_lshrrev_b32 v4, 4, v2")
            k.e("v_mul_u32_u24 v4, 24576, v4")
            k.e("v_and_b32 v2, 15, v2")
            k.e("v_lshlrev_b32 v2, 4, v2")
            k.e("v_lshrrev_b32 v5, 2, v3")
            k.e("v_lshlrev_b32 v5, 10, v5")
            k.e("v_and_b32 v3, 3, v3")
            k.e("v_lshlrev_b32 v3, 8, v3")
            k.e("v_add3_u32 v2, v2, v4, v5")
            k.e("v_add_u32 v%d, v2, v3" % (52 + r))
        for X, O in ((0, OA), (1, OB)):
            for r in range(10):
                k.e("v_mul_f32 v%d, v%d, v%d" % (O + r, O + r, 8 + 2 * X))
            for r in range(5):
                k.e("v_cvt_pk_bf16_f32 v%d, v%d, v%d" % (O + r, O + 2 * r, O + 2 * r + 1))
        k.e("v_mov_b32 v48, v%d" % (OA + 4))
        for r in (49, 50, 51):
            k.e("v_mov_b32 v%d, 0" % r)
        k.e("s_nop 1")
        for O in (OA, OB):
            k.e("v_permlane32_swap_b32 v%d, v%d" % (O, O + 2))
            k.e("v_permlane32_swap_b32 v%d, v%d" % (O + 1, O + 3))
        k.e("v_permlane32_swap_b32 v48, v%d" % (OB + 4))
        k.e("s_mov_b32 s35, 49152")
        k.e("s_nop 1")
        k.e("buffer_store_dwordx4 %s, v52, s[%d:%d], 0 offen sc1" % (vr(OA, 4), SO, SO + 3))
        k.e("buffer_store_dwordx4 %s, v52, s[%d:%d], s35 offen sc1" % (vr(OB, 4), SO, SO + 3))
        k.e("buffer_store_dwordx4 v[48:51], v53, s[%d:%d], 0 offen sc1" % (SO, SO + 3))
        k.e("s_lshl_b32 s6, s5, 5")
        k.e("s_add_u32 s6, s6, s4")
        k.stamp()
        publish(k, F_O, 6, first="fast" if "an" in sys.argv else False)
    else:
        k.e("s_lshl_b32 s34, s5, 8")
        k.e("s_lshl_b32 s35, s%d, 6" % S_W)
        k.e("s_add_u32 s34, s34, s35")
        k.e("v_and_b32 v2, 31, v1")
        k.e("v_add_u32 v2, s34, v2")
        k.e("v_lshrrev_b32 v3, 4, v2")
        k.e("v_mul_u32_u24 v3, 18432, v3")
        k.e("v_and_b32 v2, 15, v2")
        k.e("v_lshlrev_b32 v2, 4, v2")
        k.e("v_add_u32 v2, v2, v3")
        k.e("s_mul_i32 s35, s4, 18")
        k.e("v_lshrrev_b32 v3, 5, v1")
        k.e("v_lshlrev_b32 v3, 2, v3")
        k.e("v_add_u32 v3, s35, v3")
        AD = 48
        for r, dd in enumerate((0, 2, 8, 10, 16)):
            k.e("v_add_u32 v4, %d, v3" % dd)
            k.e("v_lshrrev_b32 v5, 5, v4")
            k.e("v_lshlrev_b32 v5, 10, v5")
            k.e("v_bfe_u32 v6, v4, 3, 2")
            k.e("v_lshlrev_b32 v6, 8, v6")
            k.e("v_and_b32 v4, 7, v4")
            k.e("v_lshlrev_b32 v4, 1, v4")
            k.e("v_add3_u32 v4, v4, v5, v6")
            k.e("v_add_u32 v%d, v4, v2" % (AD + r))
        k.e("s_mov_b32 s35, 36864")
        for X, O in ((0, OA), (1, OB)):
            so = "0" if X == 0 else "s35"
            for r in range(10):
                k.e("v_mul_f32 v%d, v%d, v%d" % (O + r, O + r, 8 + 2 * X))
            for r in range(5):
                k.e("v_cvt_pk_bf16_f32 v%d, v%d, v%d" % (O + r, O + 2 * r, O + 2 * r + 1))
            for r in range(4):
                k.e("buffer_store_dword v%d, v%d, s[%d:%d], %s offen" % (O + r, AD + r, SO, SO + 3, so))
            k.e("s_mov_b64 exec, s[%d:%d]" % (LOMASK, LOMASK + 1))
            k.e("buffer_store_dword v%d, v%d, s[%d:%d], %s offen" % (O + 4, AD + 4, SO, SO + 3, so))
            k.e("s_mov_b64 exec, -1")
    k.dump(kidx)
    k.e("s_branch %s" % nxt if nxt else "s_endpgm")
    k.label("ka_fallback")
    k.e("s_mov_b32 s%d, 1" % S_FLAG)
    k.e("v_mov_b32 v%d, 0" % (QA + 5))
    k.e("v_mov_b32 v%d, 0" % (QB + 5))
    k.e("v_mov_b32 v6, 0xff800000")
    k.e("v_mov_b32 v7, 0xff800000")
    k.e("s_add_u32 s38, s%d, 49152" % S_WB)
    k.e("v_lshlrev_b32 v12, 4, v1")
    k.e("v_add_u32 v13, s38, v%d" % VKB)
    k.e("v_add_u32 v14, s38, v%d" % VVB)
    for ps in (0, 1):
        k.e("s_mov_b32 s%d, s33" % S_DOFF)
        k.e("s_mov_b32 s%d, 64" % S_CNT)
        k.label("ka_fb%d" % ps)
        k.e("s_mov_b32 m0, s38")
        k.e("s_nop 0")
        for i in range(4):
            k.e("buffer_load_dwordx4 v12, s[%d:%d], s%d offen offset:%d lds" % (SB, SB + 3, S_DOFF, i * 1024))
        k.e("s_add_u32 s%d, s%d, 4096" % (S_DOFF, S_DOFF))
        k.e("s_waitcnt vmcnt(0)")
        ldk(0, 13, 0)
        if ps:
            ldv(0, 14, 0)
        k.e("s_waitcnt lgkmcnt(0)")
        for S, Q in ((SAq, QA), (SBq, QB)):
            k.e(qk(S, 0, Q, 0))
            k.e(qk(S, 0, Q, 1))
        k.e("s_nop 7")
        k.e("s_nop 7")
        if ps == 0:
            rowmax_patch(SAq, QA, False, 6)
            rowmax_patch(SBq, QB, False, 7)
        else:
            for S, P in ((SAq, PA), (SBq, PB)):
                for o in softmax_ops(S, P):
                    k.e(o)
            k.e("s_nop 1")
            for O, P in ((OA, PA), (OB, PB)):
                k.e(pv(O, 0, P, 0))
                k.e(pv(O, 0, P, 1))
        k.e("s_sub_u32 s%d, s%d, 1" % (S_CNT, S_CNT))
        k.e("s_cmp_lg_u32 s%d, 0" % S_CNT)
        k.e("s_cbranch_scc1 ka_fb%d" % ps)
        if ps == 0:
            patch(6, QA)
            patch(7, QB)
            for r in range(32):
                k.e("v_mov_b32 v%d, 0" % (OA + r))
            k.e("s_nop 1")
    k.e("s_branch ka_fin")


def mixed_kernel(name, half, kidx, gemm, nv, lds):
    k = K(name)
    load_args(k)
    prologue_ids(k)
    k.e("s_cmp_ge_u32 s2, 512")
    k.e("s_cbranch_scc1 %s_exit" % name)
    k.e("s_waitcnt lgkmcnt(0)")
    if "noattn" in sys.argv:
        k.e("s_cmp_lt_u32 s2, 256")
        k.e("s_cbranch_scc1 %s_exit" % name)
    k.e("s_cmp_lt_u32 s2, 256")
    k.e("s_cbranch_scc1 %s_attn" % name)
    if "nogemm" in sys.argv:
        k.e("s_branch %s_exit" % name)
    k.priok = None
    for f in sys.argv:
        if f.startswith("prio"):
            k.priok = int(f[4:])
            k.e("s_setprio 3")
    gemm(k)
    k.label(name + "_attn")
    k.vm = []
    k.lg = []
    attn(k, half, kidx)
    k.label(name + "_exit")
    k.e("s_endpgm")
    return k, nv, lds, 512


def k2():
    return mixed_kernel("k2", 0, 1, k2_gemm1, 252, 65536)


NSLAB = 4


def k3_gemm2(k, fused=False):
    g = G(4, 3, 2, 1, 4)
    k.e("s_and_b32 s5, s2, 3")
    k.e("s_bfe_u32 s3, s2, 0x10002")
    k.e("s_lshl_b32 s3, s3, 3")
    k.e("s_bfe_u32 s4, s2, 0x30005")
    k.e("s_add_u32 s3, s3, s4")
    k.e("s_lshl_b32 s3, s3, 3")
    k.e("s_bfe_u32 s4, s2, 0x20003")
    k.e("s_lshr_b32 s6, s%d, 1" % S_W)
    k.e("s_and_b32 s7, s%d, 1" % S_W)
    k.e("s_lshl_b32 s28, s5, 1")
    k.e("s_add_u32 s28, s28, s6")
    k.srd(SA, P_WS, WS_H, SZ_H)
    k.srd(SB, P_W2, 0, 4608 * 576 * 2)
    k.e("s_mul_i32 s%d, s28, %d" % (S_BOFF, 576 * 1152))
    k.e("s_mul_i32 s29, s4, 288")
    k.e("s_add_u32 s%d, s%d, s29" % (S_BOFF, S_BOFF))
    k.e("s_mul_i32 s%d, s28, %d" % (S_AOFF, 18 * 1024))
    k.e("s_lshl_b32 s28, s7, 2")
    k.e("s_add_u32 s3, s3, s28")
    k.e("s_mul_i32 s28, s3, 147456")
    k.e("v_lshlrev_b32 v2, 4, v1")
    k.e("v_add_u32 v2, s28, v2")
    for i in range(4):
        k.e("v_add_u32 v%d, %d, v2" % (g.VA + i, i * 147456))
    gemm_setup_b(k, g, 1152, False)
    wf = None
    if fused:
        k.e("s_lshr_b32 s39, s3, 4")
        k.e("s_lshl_b32 s39, s39, 5")
        k.e("s_lshl_b32 s28, s5, 3")
        k.e("s_add_u32 s39, s39, s28")
        wf = lambda: (await_flags(k, F_H, 39, 8), k.stamp())
    gemm_main(k, g, 18, 1152, False, True, waitfn=wf)
    k.c("---- exchange halves through LDS, add, store f32 partial tile")
    k.srd(SO, P_WS, WS_P, NSLAB * SLAB)
    if "t9" in sys.argv:
        k.c("the wave that holds this workgroup's own tail rows keeps them (its stores are dropped)")
        k.e("s_and_b32 s28, s5, 1")
        k.e("s_lshl_b32 s28, s28, 1")
        k.e("s_lshr_b32 s29, s5, 1")
        k.e("s_or_b32 s28, s28, s29")
        k.e("s_cmp_eq_u32 s28, s%d" % S_W)
        k.e("s_cselect_b32 s37, 1, 0")
        k.e("s_cselect_b32 s%d, 0, s%d" % (SO + 2, SO + 2))
    k.e("v_lshlrev_b32 v2, 4, v1")
    k.e("s_mul_i32 s28, s%d, 18432" % S_W)
    k.e("v_add_u32 v3, s28, v2")
    k.e("s_xor_b32 s29, s%d, 2" % S_W)
    k.e("s_mul_i32 s29, s29, 18432")
    k.e("v_add_u32 v4, s29, v2")
    k.e("s_lshl_b32 s28, s6, 1")
    k.e("s_add_u32 s28, s28, s3")
    k.e("s_lshl_b32 s28, s28, 2")
    k.e("s_add_u32 s28, s28, s4")
    k.e("s_mul_i32 s28, s28, 9216")
    k.e("s_mul_i32 s29, s5, %d" % SLAB)
    k.e("s_add_u32 s28, s28, s29")
    k.e("s_barrier")
    k.e("s_cmp_lg_u32 s6, 0")
    k.e("s_cbranch_scc1 k3_hi")
    for kh in (0, 1):
        if kh:
            k.label("k3_hi")
        give = [g.acc(mi, j) for mi in ((2, 3) if kh == 0 else (0, 1)) for j in range(9)]
        keep = [g.acc(mi, j) for mi in ((0, 1) if kh == 0 else (2, 3)) for j in range(9)]
        for n, a in enumerate(give):
            k.e("ds_write_b128 v3, %s offset:%d" % (vr(a, 4), n * 1024))
        k.e("s_waitcnt lgkmcnt(0)")
        k.e("s_barrier")
        for n, a in enumerate(give):
            k.e("ds_read_b128 %s, v4 offset:%d" % (vr(a, 4), n * 1024))
            if n >= 8:
                m = n - 8
                k.e("s_waitcnt lgkmcnt(8)")
                k3_fin(k, keep, give, m)
        for m in range(10, 18):
            k.e("s_waitcnt lgkmcnt(%d)" % (17 - m))
            k3_fin(k, keep, give, m)
        k.dump(2)
        if "t8" in sys.argv:
            k3_tail4(k, kh)
        elif "t4" in sys.argv:
            k3_tail(k, kh)
        else:
            k.e("s_endpgm")


def k3_tail(k, kh):
    k.vm = []
    k.lg = []
    k.e("s_lshr_b32 s3, s3, 3")
    k.e("s_lshl_b32 s39, s3, 2")
    k.e("s_add_u32 s39, s39, s4")
    k.e("s_lshl_b32 s39, s39, 2")
    k.e("s_add_u32 s38, s39, s5")
    if "tp0" in sys.argv:
        k.e("s_setprio 0")
    publish(k, F_P, 38)
    k.stamp()
    DYN = "td" in sys.argv
    T5 = "t5" in sys.argv
    g = G(2, int(opt("tla", 4)), 1, 1, 4 if T5 else 3, AR=4 if DYN else 12 if "t6" in sys.argv else 13, PAD=True)
    STR = g.NBUF * g.BUF
    XT = 0 if T5 else 2 * STR
    XO = g.BUF if T5 else 0
    SG = 32
    k.e("s_lshl_b32 s3, s3, 3")
    k.e("s_lshl_b32 s28, s5, 1")
    k.e("s_add_u32 s3, s3, s28")
    k.srd(SG, P_WS, WS_G, 8192)
    k.e("s_mul_i32 s40, s4, 288")
    k.e("s_and_b32 s41, s%d, 1" % S_W)
    k.e("s_mul_i32 s43, s41, %d" % (STR if T5 else 9216))
    k.e("s_add_u32 s41, s41, s3")
    k.e("v_lshlrev_b32 v10, 4, v1")
    T9 = "t9" in sys.argv
    if T9:
        assert not T5
        sk = k.newlabel("own")
        k.e("s_cmp_eq_u32 s37, 0")
        k.e("s_cbranch_scc1 %s" % sk)
        k.e("v_add_u32 v9, %d, v10" % XT)
        for m in range(18):
            k.e("ds_write_b128 v9, %s offset:%d" % (vr(16 + 72 * kh + 4 * m, 4), m * 1024))
        k.e("s_waitcnt lgkmcnt(0)")
        k.label(sk)
        k.e("s_barrier")
    k.e("s_add_u32 s43, s43, %d" % XT)
    k.e("v_add_u32 v15, s43, v10")
    k.e("s_lshl_b32 s42, s41, 4")
    k.e("v_and_b32 v11, 15, v1")
    k.e("v_add_u32 v11, s42, v11")
    k.e("v_lshrrev_b32 v12, 4, v1")
    k.e("v_lshlrev_b32 v12, 3, v12")
    k.e("v_lshlrev_b32 v13, 2, v11")
    k.vmem("buffer_load_dword v14, v13, s[%d:%d], 0 offen" % (SG, SG + 3), "g")
    if kh == 0:
        k.srd(SA, P_WS, WS_O, 128 * 24576)
        k.srd(SB, P_WO, 0, 576 * 576 * 2)
        k.srd(SO, P_OUT, 0, SZ_X)
        k.e("s_mul_i32 s%d, s%d, %d" % (S_BOFF, S_W, 288 * 1152))
        k.e("s_add_u32 s%d, s%d, s40" % (S_BOFF, S_BOFF))
        k.e("s_mul_i32 s%d, s%d, %d" % (S_AOFF, S_W, 12 * 1024))
        k.e("v_mul_u32_u24 v11, 1152, v11")
        k.e("v_add_u32 v11, v11, v12")
        k.e("s_mul_i32 s28, s3, 24576")
        k.e("v_add_u32 v%d, s28, v10" % g.VA)
        k.e("v_add_u32 v%d, 24576, v%d" % (g.VA + 1, g.VA))
        k.e("s_mul_i32 s28, s%d, %d" % (S_W, STR))
        k.e("s_add_u32 s28, s28, %d" % XO)
        k.e("v_add_u32 v13, s28, v10")
        k.e("s_xor_b32 s28, s%d, 1" % S_W)
        k.e("s_mul_i32 s28, s28, %d" % STR)
        k.e("s_add_u32 s28, s28, %d" % XO)
        k.e("v_add_u32 v12, s28, v10")
        gemm_setup_b(k, g, 1152, True)
        k.e("s_lshr_b32 s38, s3, 4")
        k.e("s_lshl_b32 s38, s38, 5")
        if DYN:
            S_REM, S_SEL, S_RDY, S_B0, S_A0 = 36, 37, 39, 93, 94
            k.e("s_mov_b32 s%d, s%d" % (S_B0, S_BOFF))
            k.e("s_mov_b32 s%d, s%d" % (S_A0, S_AOFF))
            k.e("s_mov_b32 s%d, 0x1111" % S_REM)
            nonce_get(k)
            k.e("s_lshl_b32 s28, s%d, 4" % S_W)
            k.e("s_add_u32 s28, s28, s38")
            k.e("s_lshl_b32 s28, s28, 2")
            k.e("s_add_u32 s28, s28, %d" % F_O)
            k.e("v_lshlrev_b32 v9, 2, v1")
            k.e("v_add_u32 v9, s28, v9")
            for r in range(72):
                k.e("v_mov_b32 v%d, 0" % (g.ACC + r))
            k.e("s_mov_b32 s%d, %d" % (S_SP, SPIN))

            def poll(mask, out):
                lp = k.newlabel("tp")
                d = k.newlabel("tpd")
                k.e("s_mov_b64 exec, 0xffff")
                k.e("s_mov_b32 s%d, %d" % (S_SP, SPIN))
                k.label(lp)
                k.e("buffer_load_dword v2, v9, s[%d:%d], 0 offen sc1" % (SF, SF + 3))
                k.e("s_waitcnt vmcnt(0)")
                k.e("v_cmp_eq_u32 vcc, s%d, v2" % S_NONCE)
                k.e("s_nop 1")
                k.e("s_mov_b32 s28, vcc_lo")
                k.e("s_lshr_b32 s29, s28, 1")
                k.e("s_and_b32 s28, s28, s29")
                k.e("s_lshr_b32 s29, s28, 2")
                k.e("s_and_b32 s28, s28, s29")
                k.e("s_and_b32 s%d, s28, s%d" % (out, mask))
                k.e("s_cbranch_scc1 %s" % d)
                k.e("s_mov_b32 s%d, s%d" % (out, mask))
                k.e("s_sub_u32 s%d, s%d, 1" % (S_SP, S_SP))
                k.e("s_cbranch_scc1 %s" % d)
                k.e("s_sleep %d" % int(opt("slp", 1)))
                k.e("s_branch %s" % lp)
                k.label(d)
                k.e("s_mov_b64 exec, -1")
            k.label("kt_loop")
            k.vm = []
            k.lg = []
            k.e("s_mov_b32 s%d, s%d" % (S_RDY, S_REM))
            k.e("s_bcnt1_i32_b32 s28, s%d" % S_REM)
            k.e("s_cmp_eq_u32 s28, 1")
            k.e("s_cbranch_scc1 kt_have")
            poll(S_REM, S_RDY)
            k.label("kt_have")
            k.e("s_ff1_i32_b32 s28, s%d" % S_RDY)
            k.e("s_lshl_b32 s%d, 1, s28" % S_SEL)
            k.e("s_mul_i32 s29, s28, %d" % (18 * 1152))
            k.e("s_add_u32 s%d, s%d, s29" % (S_BOFF, S_B0))
            k.e("s_mul_i32 s29, s28, 768")
            k.e("s_add_u32 s%d, s%d, s29" % (S_AOFF, S_A0))
            gemm_main(k, g, 3, 1152, True, True, waitfn=lambda: (poll(S_SEL, S_RDY), k.stamp()), zero=False)
            k.e("s_andn2_b32 s%d, s%d, s%d" % (S_REM, S_REM, S_SEL))
            k.e("s_cbranch_scc1 kt_loop")
        elif "t6" in sys.argv:
            S_REM = 36

            def loader():
                lp = k.newlabel("tl")
                go = k.newlabel("tlg")
                nonce_get(k)
                k.e("s_lshl_b32 s28, s%d, 4" % S_W)
                k.e("s_add_u32 s28, s28, s38")
                k.e("s_lshl_b32 s28, s28, 2")
                k.e("s_add_u32 s28, s28, %d" % F_O)
                k.e("v_lshlrev_b32 v3, 2, v1")
                k.e("v_add_u32 v3, s28, v3")
                k.e("s_mov_b32 s%d, 0x1111" % S_REM)
                k.e("s_mov_b32 s%d, %d" % (S_SP, SPIN))
                k.label(lp)
                k.e("s_mov_b64 exec, 0xffff")
                k.e("buffer_load_dword v2, v3, s[%d:%d], 0 offen sc1" % (SF, SF + 3))
                k.e("s_waitcnt vmcnt(0)")
                k.e("v_cmp_eq_u32 vcc, s%d, v2" % S_NONCE)
                k.e("s_mov_b64 exec, -1")
                k.e("s_nop 0")
                k.e("s_mov_b32 s28, vcc_lo")
                k.e("s_lshr_b32 s29, s28, 1")
                k.e("s_and_b32 s28, s28, s29")
                k.e("s_lshr_b32 s29, s28, 2")
                k.e("s_and_b32 s28, s28, s29")
                k.e("s_and_b32 s29, s28, s%d" % S_REM)
                k.e("s_cbranch_scc1 %s" % go)
                k.e("s_mov_b32 s29, s%d" % S_REM)
                k.e("s_sub_u32 s%d, s%d, 1" % (S_SP, S_SP))
                k.e("s_cbranch_scc1 %s" % go)
                k.e("s_sleep %d" % int(opt("slp", 1)))
                k.e("s_branch %s" % lp)
                k.label(go)
                for gr in range(4):
                    sk = k.newlabel("tls")
                    k.e("s_bitcmp1_b32 s29, %d" % (4 * gr))
                    k.e("s_cbranch_scc0 %s" % sk)
                    k.e("s_add_u32 s30, s%d, %d" % (S_AOFF, gr * 3072))
                    for ks in range(3):
                        for i in range(2):
                            k.e("buffer_load_dwordx4 %s, v%d, s[%d:%d], s30 offen offset:%d sc1" % (vr(g.a(3 * gr + ks, i), 4), g.VA + i, SA, SA + 3, ks * 1024))
                    k.label(sk)
                k.e("s_andn2_b32 s%d, s%d, s29" % (S_REM, S_REM))
                k.e("s_cbranch_scc1 %s" % lp)
                k.stamp()
                k.e("s_waitcnt vmcnt(0)")
                k.vm = []
            for r in range(72):
                k.e("v_mov_b32 v%d, 0" % (g.ACC + r))
            if "t3" in sys.argv:
                for n in range(27):
                    k.e("ds_write_b128 v13, %s offset:%d" % (vr(g.ACC, 4), n * 1024))
                k.e("s_waitcnt lgkmcnt(0)")
            gemm_main(k, g, 12, 1152, True, True, waitfn=loader, aext=True, zero=False, lazy="t7" in sys.argv,
                      atchunk=(lambda c: k.e("s_barrier") if c == 9 else None) if T5 else None)
        else:
            gemm_main(k, g, 12, 1152, True, True, waitfn=lambda: (await_solo(k, F_O, 38, 32), k.stamp()),
                      atchunk=(lambda c: k.e("s_barrier") if c == 9 else None) if T5 else None)
        k.wait(vm='*')
        k.e("s_cmp_lg_u32 s%d, 0" % S_W)
        k.e("s_cbranch_scc1 kt_w1")
        T = 88
        for w in (0, 1):
            if w:
                k.label("kt_w1")
            for jj in range(9):
                k.e("ds_write_b128 v13, %s offset:%d" % (vr(g.acc(1 - w, jj), 4), jj * 1024))
            k.e("s_waitcnt lgkmcnt(0)")
            k.e("s_barrier")
            for jj in range(9):
                k.e("ds_read_b128 %s, v12 offset:%d" % (vr(g.acc(1 - w, jj), 4), jj * 1024))
            for jj in range(9):
                k.e("ds_read_b128 %s, v15 offset:%d" % (vr(T + 4 * jj, 4), jj * 1024))
            for jj in range(9):
                a = g.acc(w, jj)
                b = g.acc(1 - w, jj)
                k.e("s_waitcnt lgkmcnt(%d)" % min(15, 17 - jj))
                k.e("v_pk_add_f32 %s, %s, %s" % (vr(a, 2), vr(a, 2), vr(b, 2)))
                k.e("v_pk_add_f32 %s, %s, %s" % (vr(a + 2, 2), vr(a + 2, 2), vr(b + 2, 2)))
                rnd2(k, a, a + 1)
                rnd2(k, a + 2, a + 3)
                for r in range(4):
                    k.e("v_mul_f32 v%d, v14, v%d" % (a + r, a + r))
                rnd2(k, a, a + 1)
                rnd2(k, a + 2, a + 3)
            for jj in range(9):
                a = g.acc(w, jj)
                b = T + 4 * jj
                k.e("s_waitcnt lgkmcnt(%d)" % (8 - jj))
                k.e("v_pk_add_f32 %s, %s, %s" % (vr(a, 2), vr(a, 2), vr(b, 2)))
                k.e("v_pk_add_f32 %s, %s, %s" % (vr(a + 2, 2), vr(a + 2, 2), vr(b + 2, 2)))
                k.e("v_cvt_pk_bf16_f32 v%d, v%d, v%d" % (a, a, a + 1))
                k.e("v_cvt_pk_bf16_f32 v%d, v%d, v%d" % (a + 1, a + 2, a + 3))
                k.e("buffer_store_dwordx2 %s, v11, s[%d:%d], s40 offen offset:%d" % (vr(a, 2), SO, SO + 3, jj * 32))
            ns = k.nstamp
            k.dump(3)
            k.nstamp = ns
            k.e("s_endpgm")
        return
    SP = SA
    SL, BIAS = 16, 160
    k.srd(SP, P_WS, WS_P, NSLAB * SLAB)
    k.srd(SX, P_B2, 0, 1152)
    k.srd(SB, P_WO, 0, 576 * 576 * 2)
    for jj in range(9):
        k.e("buffer_load_dwordx2 %s, v12, s[%d:%d], s40 offen offset:%d" % (vr(BIAS + 2 * jj, 2), SX, SX + 3, jj * 32))
    k.c("pull this die's copy of Wo into its L2 (read only, results unused)")
    k.e("s_bfe_u32 s28, s2, 0x50003")
    k.e("s_lshl_b32 s28, s28, 1")
    k.e("s_and_b32 s29, s%d, 1" % S_W)
    k.e("s_add_u32 s28, s28, s29")
    k.e("s_lshl_b32 s28, s28, 10")
    for i in range(11):
        k.e("buffer_load_dwordx4 %s, v10, s[%d:%d], s28 offen" % (vr(SL, 4), SB, SB + 3))
        if i < 10:
            k.e("s_add_u32 s28, s28, 65536")
    await_solo(k, F_P, 39, 4)
    k.e("s_lshl_b32 s42, s41, 2")
    k.e("s_add_u32 s42, s42, s4")
    k.e("s_mul_i32 s42, s42, 9216")
    for sl in range(4 if T9 else 0):
        lo = k.newlabel("slo")
        dn = k.newlabel("sld")
        k.e("s_cmp_eq_u32 s5, %d" % sl)
        k.e("s_cbranch_scc1 %s" % lo)
        k.e("s_add_u32 s28, s42, %d" % (sl * SLAB))
        k.e("s_add_u32 s29, s28, 4096")
        k.e("s_add_u32 s30, s28, 8192")
        for jj in range(9):
            k.e("buffer_load_dwordx4 %s, v10, s[%d:%d], s%d offen offset:%d sc1" % (vr(SL + (sl * 9 + jj) * 4, 4), SP, SP + 3, 28 + jj // 4, (jj % 4) * 1024))
        k.e("s_branch %s" % dn)
        k.label(lo)
        for jj in range(9):
            k.e("ds_read_b128 %s, v15 offset:%d" % (vr(SL + (sl * 9 + jj) * 4, 4), jj * 1024))
        k.label(dn)
    for n in range(0 if T9 else 36):
        sl, jj = divmod(n, 9)
        k.e("buffer_load_dwordx4 %s, v10, s[%d:%d], s42 offen offset:%d sc1%s" % (vr(SL + n * 4, 4), SP, SP + 3, (jj % 4) * 1024, " nt" if "tnt" in sys.argv else ""))
        if jj % 4 == 3:
            k.e("s_add_u32 s42, s42, 4096")
        if jj == 8:
            k.e("s_add_u32 s42, s42, %d" % (SLAB - 8192))
    k.e("v_sub_f32 v6, 1.0, v14")
    bf16_round(k, 6, 6, 6)
    k.e("s_waitcnt vmcnt(0) lgkmcnt(0)")
    BT = 180
    for jj in range(9):
        b = SL + jj * 4
        k.e("v_lshlrev_b32 v%d, 16, v%d" % (BT, BIAS + 2 * jj))
        k.e("v_and_b32 v%d, 0xffff0000, v%d" % (BT + 1, BIAS + 2 * jj))
        k.e("v_lshlrev_b32 v%d, 16, v%d" % (BT + 2, BIAS + 1 + 2 * jj))
        k.e("v_and_b32 v%d, 0xffff0000, v%d" % (BT + 3, BIAS + 1 + 2 * jj))
        for x, y in ((b, b + 36), (b + 72, b + 108), (b, b + 72)):
            for h in (0, 2):
                k.e("v_pk_add_f32 %s, %s, %s" % (vr(x + h, 2), vr(x + h, 2), vr(y + h, 2)))
        rnd2(k, b, b + 1)
        rnd2(k, b + 2, b + 3)
        for h in (0, 2):
            k.e("v_pk_add_f32 %s, %s, %s" % (vr(b + h, 2), vr(b + h, 2), vr(BT + h, 2)))
        rnd2(k, b, b + 1)
        rnd2(k, b + 2, b + 3)
        for r in range(4):
            k.e("v_mul_f32 v%d, v6, v%d" % (b + r, b + r))
        rnd2(k, b, b + 1)
        rnd2(k, b + 2, b + 3)
        if not T5:
            k.e("ds_write_b128 v15, %s offset:%d" % (vr(b, 4), jj * 1024))
    if T5:
        k.e("s_barrier")
        for jj in range(9):
            k.e("ds_write_b128 v15, %s offset:%d" % (vr(SL + jj * 4, 4), jj * 1024))
    k.e("s_waitcnt lgkmcnt(0)")
    k.e("s_barrier")
    k.e("s_endpgm")


def k3_tail4(k, kh):
    k.vm = []
    k.lg = []
    k.e("s_lshr_b32 s3, s3, 3")
    k.e("s_lshl_b32 s39, s3, 2")
    k.e("s_add_u32 s39, s39, s4")
    k.e("s_lshl_b32 s39, s39, 2")
    k.e("s_add_u32 s38, s39, s5")
    if "tpe" in sys.argv:
        k.e("s_setprio 0")
    publish(k, F_P, 38)
    k.srd(SF, P_DBG, 0, 256)
    k.e("buffer_load_dword v0, off, s[%d:%d], 0 sc1" % (SF, SF + 3))
    k.stamp()
    g = G(2, 7, 1, 1, 2, AR=11, PAD=True)
    R = g.A + 48
    CT = g.FREE
    assert CT == 238
    STR = g.NBUF * g.BUF
    SG, S_REM = 32, 36
    HALF = 8 * 288
    def loader(single):
        lp = k.newlabel("tl")
        go = k.newlabel("tlg")
        dn = k.newlabel("tld")
        if single or not kh:
            if not kh:
                nonce_fast(k)
            k.e("s_lshl_b32 s28, s%d, 3" % S_W)
            k.e("s_add_u32 s28, s28, s38")
            k.e("s_lshl_b32 s28, s28, 2")
            k.e("s_add_u32 s28, s28, %d" % F_O)
            k.e("v_lshlrev_b32 v3, 2, v1")
            k.e("v_add_u32 v3, s28, v3")
            k.e("s_mov_b32 s%d, 0x11" % S_REM)
            k.e("s_mov_b32 s%d, %d" % (S_SP, SPIN))
        else:
            k.e("s_cmp_eq_u32 s%d, 0" % S_REM)
            k.e("s_cbranch_scc1 %s" % dn)
        k.label(lp)
        k.e("s_mov_b64 exec, 0xff")
        k.e("buffer_load_dword v2, v3, s[%d:%d], 0 offen sc1" % (SF, SF + 3))
        k.e("s_waitcnt vmcnt(0)")
        k.e("v_cmp_eq_u32 vcc, s%d, v2" % S_NONCE)
        k.e("s_mov_b64 exec, -1")
        k.e("s_nop 0")
        k.e("s_mov_b32 s28, vcc_lo")
        k.e("s_lshr_b32 s29, s28, 1")
        k.e("s_and_b32 s28, s28, s29")
        k.e("s_lshr_b32 s29, s28, 2")
        k.e("s_and_b32 s28, s28, s29")
        k.e("s_and_b32 s29, s28, s%d" % S_REM)
        if not single:
            k.e("s_cbranch_scc1 %s" % go)
            k.e("s_mov_b32 s29, s%d" % S_REM)
            k.e("s_sub_u32 s%d, s%d, 1" % (S_SP, S_SP))
            k.e("s_cbranch_scc1 %s" % go)
            k.e("s_sleep %d" % int(opt("slp", 1)))
            k.e("s_branch %s" % lp)
            k.label(go)
        for gr in range(2):
            sk = k.newlabel("tls")
            k.e("s_bitcmp1_b32 s29, %d" % (4 * gr))
            k.e("s_cbranch_scc0 %s" % sk)
            k.e("s_add_u32 s30, s%d, %d" % (S_AOFF, gr * 3072))
            for ks in range(3):
                for i in range(2):
                    k.e("buffer_load_dwordx4 %s, v%d, s[%d:%d], s30 offen offset:%d sc1" % (vr(g.a(3 * gr + ks, i), 4), g.VA + i, SA, SA + 3, ks * 1024))
            k.label(sk)
        k.e("s_andn2_b32 s%d, s%d, s29" % (S_REM, S_REM))
        if not single:
            k.e("s_cbranch_scc1 %s" % lp)
        k.label(dn)

    k.e("s_lshl_b32 s3, s3, 3")
    k.e("s_lshl_b32 s28, s5, 1")
    k.e("s_add_u32 s3, s3, s28")
    k.e("s_mul_i32 s40, s4, 288")
    k.e("v_lshlrev_b32 v10, 4, v1")
    k.srd(SB, P_WO, 0, 576 * 576 * 2)
    k.e("s_mul_i32 s%d, s%d, %d" % (S_BOFF, S_W, 144 * 1152))
    k.e("s_add_u32 s%d, s%d, s40" % (S_BOFF, S_BOFF))
    k.e("s_mul_i32 s%d, s%d, %d" % (S_AOFF, S_W, 6 * 1024))
    k.e("s_mul_i32 s28, s3, 24576")
    k.e("v_add_u32 v%d, s28, v10" % g.VA)
    k.e("v_add_u32 v%d, 24576, v%d" % (g.VA + 1, g.VA))
    k.e("s_mul_i32 s28, s%d, %d" % (S_W, STR))
    k.e("v_add_u32 v13, s28, v10")
    gemm_setup_b(k, g, 1152, True)
    for c in (0, 1):
        for op in gemm_dma_ops(k, g, c, 1152):
            op()
    if "tp0" in sys.argv:
        k.e("s_setprio 0")
    k.e("s_lshr_b32 s38, s3, 4")
    k.e("s_lshl_b32 s38, s38, 5")
    if kh:
        SP = SA
        SL, BIAS = 16, 238
        Q = [16 + 4 * i for i in range(18)] + [136 + 4 * i for i in range(18)]
        k.srd(SG, P_WS, WS_G, 8192)
        k.e("s_and_b32 s41, s%d, 1" % S_W)
        k.e("s_add_u32 s41, s41, s3")
        k.e("s_lshl_b32 s42, s41, 4")
        k.e("v_and_b32 v11, 15, v1")
        k.e("v_add_u32 v11, s42, v11")
        k.e("v_lshrrev_b32 v12, 4, v1")
        k.e("v_lshlrev_b32 v12, 3, v12")
        k.e("v_lshlrev_b32 v15, 2, v11")
        k.e("buffer_load_dword v14, v15, s[%d:%d], 0 offen" % (SG, SG + 3))
        k.e("v_mul_u32_u24 v11, 1152, v11")
        k.e("v_add_u32 v11, v11, v12")
        k.srd(SP, P_WS, WS_P, NSLAB * SLAB)
        k.srd(SX, P_B2, 0, 1152)
        k.srd(SO, P_OUT, 0, SZ_X)
        for jj in range(9):
            k.e("buffer_load_dwordx2 %s, v12, s[%d:%d], s40 offen offset:%d" % (vr(BIAS + 2 * jj, 2), SX, SX + 3, jj * 32))
        k.c("pull this die's copy of Wo into its L2 (read only, results unused)")
        k.e("s_bfe_u32 s28, s2, 0x50003")
        k.e("s_lshl_b32 s28, s28, 1")
        k.e("s_and_b32 s29, s%d, 1" % S_W)
        k.e("s_add_u32 s28, s28, s29")
        k.e("s_lshl_b32 s28, s28, 10")
        for i in range(11):
            k.e("buffer_load_dwordx4 %s, v10, s[%d:%d], s28 offen" % (vr(SL, 4), SB, SB + 3))
            if i < 10:
                k.e("s_add_u32 s28, s28, 65536")
        await_solo(k, F_P, 39, 4, True)
        k.stamp()
        k.e("s_lshl_b32 s42, s41, 2")
        k.e("s_add_u32 s42, s42, s4")
        k.e("s_mul_i32 s42, s42, 9216")
        for n in range(36):
            sl, jj = divmod(n, 9)
            k.e("buffer_load_dwordx4 %s, v10, s[%d:%d], s42 offen offset:%d sc1" % (vr(Q[4 * jj + sl], 4), SP, SP + 3, (jj % 4) * 1024))
            if jj % 4 == 3:
                k.e("s_add_u32 s42, s42, 4096")
            if jj == 8:
                k.e("s_add_u32 s42, s42, %d" % (SLAB - 8192))
        k.e("v_sub_f32 v6, 1.0, v14")
        bf16_round(k, 6, 6, 6)
        k.srd(SA, P_WS, WS_O, 128 * 24576)
        loader(True)
        k.stamp()
        k.vm = []
        for jj in range(9):
            b, b1, b2, b3 = Q[4 * jj:4 * jj + 4]
            k.e("v_lshlrev_b32 v4, 16, v%d" % (BIAS + 2 * jj))
            k.e("v_and_b32 v5, 0xffff0000, v%d" % (BIAS + 2 * jj))
            k.e("v_lshlrev_b32 v8, 16, v%d" % (BIAS + 1 + 2 * jj))
            k.e("v_and_b32 v9, 0xffff0000, v%d" % (BIAS + 1 + 2 * jj))
            for x, y in ((b, b1), (b2, b3), (b, b2)):
                for h in (0, 2):
                    k.e("v_pk_add_f32 %s, %s, %s" % (vr(x + h, 2), vr(x + h, 2), vr(y + h, 2)))
            rnd2(k, b, b + 1)
            rnd2(k, b + 2, b + 3)
            k.e("v_pk_add_f32 %s, %s, v[4:5]" % (vr(b, 2), vr(b, 2)))
            k.e("v_pk_add_f32 %s, %s, v[8:9]" % (vr(b + 2, 2), vr(b + 2, 2)))
            rnd2(k, b, b + 1)
            rnd2(k, b + 2, b + 3)
            for r in range(4):
                k.e("v_mul_f32 v%d, v6, v%d" % (b + r, b + r))
            k.e("v_cvt_pk_bf16_f32 v%d, v%d, v%d" % (CT + 2 * jj, b, b + 1))
            k.e("v_cvt_pk_bf16_f32 v%d, v%d, v%d" % (CT + 2 * jj + 1, b + 2, b + 3))
    else:
        k.srd(SA, P_WS, WS_O, 128 * 24576)
        k.wait(vm='*')
    k.c("first weight chunk goes to registers, its buffer takes the third")
    for j in range(9):
        k.e("ds_read_b64_tr_b16 %s, v%d offset:%d" % (vr(R + 4 * j, 2), g.VL, j * 32))
        k.e("ds_read_b64_tr_b16 %s, v%d offset:%d" % (vr(R + 4 * j + 2, 2), g.VL, j * 32 + HALF))
    for r in range(72):
        k.e("v_mov_b32 v%d, 0" % (g.ACC + r))
    k.e("s_waitcnt lgkmcnt(0)")
    for op in gemm_dma_ops(k, g, 2, 1152):
        op()
    k.stamp()
    loader(False)
    if not kh:
        k.stamp()
    tiles = [(c, j) for c in (1, 2, 0, 3, 4, 5) for j in range(9)]
    LA = g.LA

    def bread(n):
        c, j = tiles[n]
        if c == 0:
            return
        if j == 0 and c >= 3:
            while q:
                q.pop(0)()
            k.wait(vm=("D", c))
        off = (c % 2) * g.BUF + j * 32
        b = g.b(n)
        k.ds("ds_read_b64_tr_b16 %s, v%d offset:%d" % (vr(b, 2), g.VL, off), ("B", n))
        k.ds("ds_read_b64_tr_b16 %s, v%d offset:%d" % (vr(b + 2, 2), g.VL, off + HALF), ("B", n))
    q = []
    k.vm = []
    k.lg = []
    for n in range(LA):
        bread(n)
    k.e("s_waitcnt vmcnt(0)")
    k.stamp()
    for n, (c, j) in enumerate(tiles):
        if n + LA < len(tiles):
            bread(n + LA)
        if q:
            q.pop(0)()
        if c:
            k.wait(lg=("B", n))
        b = g.b(n) if c else R + 4 * j
        for i in range(2):
            a = g.acc(i, j)
            k.e("v_mfma_f32_16x16x32_bf16 %s, %s, %s, %s" % (vr(a, 4), vr(b, 4), vr(g.a(c, i), 4), vr(a, 4)))
        if j == 8 and 1 <= c <= 3:
            q += gemm_dma_ops(k, g, c + 2, 1152)
    assert not q
    k.e("s_nop 7")
    k.e("s_nop 7")
    k.stamp()
    if kh == 0:
        for n in range(18):
            k.e("ds_write_b128 v13, %s offset:%d" % (vr(g.ACC + 4 * n, 4), n * 1024))
        k.e("s_waitcnt lgkmcnt(0)")
        k.e("s_barrier")
        k.dump(3, 7 if "d2" in sys.argv else 0)
        k.e("s_endpgm")
        return
    k.e("s_cmp_lg_u32 s%d, 2" % S_W)
    k.e("s_cbranch_scc1 kt_w3")
    T = 88
    for w in (0, 1):
        if w:
            k.label("kt_w3")
        for jj in range(9):
            k.e("ds_write_b128 v13, %s offset:%d" % (vr(g.acc(1 - w, jj), 4), (1 - w) * 9216 + jj * 1024))
        k.e("s_waitcnt lgkmcnt(0)")
        k.e("s_barrier")
        for jj in range(9):
            for n, src in enumerate((0, 1, 3 - w)):
                k.e("ds_read_b128 %s, v10 offset:%d" % (vr(T + 12 * jj + 4 * n, 4), src * STR + w * 9216 + jj * 1024))
        for jj in range(9):
            a = g.acc(w, jj)
            p = T + 12 * jj
            k.e("s_waitcnt lgkmcnt(%d)" % min(15, 24 - 3 * jj))
            for h in (0, 2):
                k.e("v_pk_add_f32 %s, %s, %s" % (vr(p + h, 2), vr(p + h, 2), vr(p + 4 + h, 2)))
                k.e("v_pk_add_f32 %s, %s, %s" % (vr(a + h, 2), vr(a + h, 2), vr(p + 8 + h, 2)))
            for h in (0, 2):
                k.e("v_pk_add_f32 %s, %s, %s" % (vr(a + h, 2), vr(a + h, 2), vr(p + h, 2)))
            rnd2(k, a, a + 1)
            rnd2(k, a + 2, a + 3)
            for r in range(4):
                k.e("v_mul_f32 v%d, v14, v%d" % (a + r, a + r))
            rnd2(k, a, a + 1)
            rnd2(k, a + 2, a + 3)
            k.e("v_lshlrev_b32 v%d, 16, v%d" % (p, CT + 2 * jj))
            k.e("v_and_b32 v%d, 0xffff0000, v%d" % (p + 1, CT + 2 * jj))
            k.e("v_lshlrev_b32 v%d, 16, v%d" % (p + 2, CT + 2 * jj + 1))
            k.e("v_and_b32 v%d, 0xffff0000, v%d" % (p + 3, CT + 2 * jj + 1))
            for h in (0, 2):
                k.e("v_pk_add_f32 %s, %s, %s" % (vr(a + h, 2), vr(a + h, 2), vr(p + h, 2)))
            k.e("v_cvt_pk_bf16_f32 v%d, v%d, v%d" % (a, a, a + 1))
            k.e("v_cvt_pk_bf16_f32 v%d, v%d, v%d" % (a + 1, a + 2, a + 3))
            k.e("buffer_store_dwordx2 %s, v11, s[%d:%d], s40 offen offset:%d" % (vr(a, 2), SO, SO + 3, jj * 32))
        if "d2" in sys.argv:
            ns = k.nstamp
            k.e("s_waitcnt vmcnt(0)")
            k.dump(3, 2)
            k.nstamp = ns
        k.e("s_endpgm")


def k3():
    return mixed_kernel("k3", 1, 2, k3_gemm2, 236, 73728)


def k23():
    k = K("k2")
    load_args(k)
    prologue_ids(k)
    k.e("s_cmp_ge_u32 s2, 512")
    k.e("s_cbranch_scc1 k2_exit")
    k.e("s_waitcnt lgkmcnt(0)")
    nonce_write(k)
    k.e("s_cmp_lt_u32 s2, 256")
    k.e("s_cbranch_scc1 k2_attn")
    k.priok = None
    if "gp" in sys.argv:
        k.e("s_setprio 3")
    k2_gemm1(k, True)
    k.priok = int(opt("g2p", -1))
    k3_gemm2(k, True)
    k.label("k2_attn")
    k.vm = []
    k.lg = []
    k.nstamp = 1
    if "a1" in sys.argv:
        attn(k, 0, 1, "k2_attn2")
        k.label("k2_attn2")
        k.e("s_barrier")
        attn(k, 1, 2)
    else:
        attn2(k, 1)
    k.label("k2_exit")
    k.e("s_endpgm")
    return k, 256 if "t8" in sys.argv else 252, 73728, 512


def k3_fin(k, keep, give, m):
    a, b = keep[m], give[m]
    k.e("v_pk_add_f32 %s, %s, %s" % (vr(a, 2), vr(a, 2), vr(b, 2)))
    k.e("v_pk_add_f32 %s, %s, %s" % (vr(a + 2, 2), vr(a + 2, 2), vr(b + 2, 2)))
    j = m % 9
    k.e("buffer_store_dwordx4 %s, v2, s[%d:%d], s28 offen offset:%d%s" % (vr(a, 4), SO, SO + 3, (j % 4) * 1024, " sc1"))
    if j % 4 == 3:
        k.e("s_add_u32 s28, s28, 4096")
    if j == 8:
        k.e("s_add_u32 s28, s28, %d" % (36864 - 8192))


def rnd2(k, x, y):
    k.e("v_cvt_pk_bf16_f32 v7, v%d, v%d" % (x, y))
    k.e("v_lshlrev_b32 v%d, 16, v7" % x)
    k.e("v_and_b32 v%d, 0xffff0000, v7" % y)


def k4():
    k = K("k4")
    load_args(k)
    prologue_ids(k)
    k.e("s_cmp_ge_u32 s2, 256")
    k.e("s_cbranch_scc1 k4_exit")
    k.e("s_waitcnt lgkmcnt(0)")
    g = G(2, 4, 1, 1, 4, AR=int(opt("oar", 3)))
    XCH = 8 * g.BUF
    SG = 36
    k.e("s_and_b32 s4, s2, 3")
    k.e("s_lshr_b32 s3, s2, 2")
    k.e("s_lshl_b32 s3, s3, 1")
    k.srd(SG, P_WS, WS_G, 8192)
    k.e("s_mul_i32 s40, s4, 288")
    k.e("s_and_b32 s41, s%d, 1" % S_W)
    k.e("s_mul_i32 s43, s41, %d" % (STR if T5 else 9216))
    k.e("s_add_u32 s41, s41, s3")
    k.e("v_lshlrev_b32 v10, 4, v1")
    k.e("s_add_u32 s43, s43, %d" % XCH)
    k.e("v_add_u32 v15, s43, v10")
    k.e("s_lshl_b32 s42, s41, 4")
    k.e("v_and_b32 v11, 15, v1")
    k.e("v_add_u32 v11, s42, v11")
    k.e("v_lshrrev_b32 v12, 4, v1")
    k.e("v_lshlrev_b32 v12, 3, v12")
    k.e("v_lshlrev_b32 v13, 2, v11")
    k.vmem("buffer_load_dword v14, v13, s[%d:%d], 0 offen" % (SG, SG + 3), "g")
    k.e("s_cmp_ge_u32 s%d, 2" % S_W)
    k.e("s_cbranch_scc1 k4_help")
    k.srd(SA, P_WS, WS_O, SZ_X)
    k.srd(SB, P_WO, 0, 576 * 576 * 2)
    k.srd(SO, P_OUT, 0, SZ_X)
    k.e("s_mul_i32 s%d, s%d, %d" % (S_BOFF, S_W, 288 * 1152))
    k.e("s_add_u32 s%d, s%d, s40" % (S_BOFF, S_BOFF))
    k.e("s_mul_i32 s%d, s%d, %d" % (S_AOFF, S_W, 9 * 1024))
    k.e("v_mul_u32_u24 v11, 1152, v11")
    k.e("v_add_u32 v11, v11, v12")
    k.e("s_mul_i32 s28, s3, 18432")
    k.e("v_add_u32 v%d, s28, v10" % g.VA)
    k.e("v_add_u32 v%d, 18432, v%d" % (g.VA + 1, g.VA))
    k.e("s_xor_b32 s28, s%d, 1" % S_W)
    k.e("s_mul_i32 s28, s28, 9216")
    k.e("s_add_u32 s28, s28, %d" % XCH)
    k.e("v_add_u32 v13, s28, v10")
    gemm_setup_b(k, g, 1152, True)
    if "k4nog" in sys.argv:
        k.e("s_barrier")
        k.stamp()
    else:
        gemm_main(k, g, 9, 1152, True, True, pre=lambda: k.e("s_barrier"))
    k.wait(vm='*')
    k.e("s_cmp_lg_u32 s%d, 0" % S_W)
    k.e("s_cbranch_scc1 k4_w1")
    T = 88
    for w in (0, 1):
        if w:
            k.label("k4_w1")
        for jj in range(9):
            k.e("ds_write_b128 v13, %s offset:%d" % (vr(g.acc(1 - w, jj), 4), 18432 + jj * 1024))
        k.e("s_waitcnt lgkmcnt(0)")
        k.e("s_barrier")
        for jj in range(9):
            k.e("ds_read_b128 %s, v15 offset:%d" % (vr(g.acc(1 - w, jj), 4), 18432 + jj * 1024))
        for jj in range(9):
            k.e("ds_read_b128 %s, v15 offset:%d" % (vr(T + 4 * jj, 4), jj * 1024))
        for jj in range(9):
            a = g.acc(w, jj)
            b = g.acc(1 - w, jj)
            k.e("s_waitcnt lgkmcnt(%d)" % min(15, 17 - jj))
            k.e("v_pk_add_f32 %s, %s, %s" % (vr(a, 2), vr(a, 2), vr(b, 2)))
            k.e("v_pk_add_f32 %s, %s, %s" % (vr(a + 2, 2), vr(a + 2, 2), vr(b + 2, 2)))
            rnd2(k, a, a + 1)
            rnd2(k, a + 2, a + 3)
            for r in range(4):
                k.e("v_mul_f32 v%d, v14, v%d" % (a + r, a + r))
            rnd2(k, a, a + 1)
            rnd2(k, a + 2, a + 3)
        for jj in range(9):
            a = g.acc(w, jj)
            b = T + 4 * jj
            k.e("s_waitcnt lgkmcnt(%d)" % (8 - jj))
            k.e("v_pk_add_f32 %s, %s, %s" % (vr(a, 2), vr(a, 2), vr(b, 2)))
            k.e("v_pk_add_f32 %s, %s, %s" % (vr(a + 2, 2), vr(a + 2, 2), vr(b + 2, 2)))
            k.e("v_cvt_pk_bf16_f32 v%d, v%d, v%d" % (a, a, a + 1))
            k.e("v_cvt_pk_bf16_f32 v%d, v%d, v%d" % (a + 1, a + 2, a + 3))
            k.e("buffer_store_dwordx2 %s, v11, s[%d:%d], s40 offen offset:%d" % (vr(a, 2), SO, SO + 3, jj * 32))
        k.dump(3)
        k.e("s_endpgm")
    k.label("k4_help")
    k.vm = []
    k.lg = []
    SP = 32
    SL, BIAS = 16, 160
    k.srd(SP, P_WS, WS_P, NSLAB * SLAB)
    k.srd(SX, P_B2, 0, 1152)
    k.e("s_lshl_b32 s42, s41, 2")
    k.e("s_add_u32 s42, s42, s4")
    k.e("s_mul_i32 s42, s42, 9216")
    k.e("s_barrier")
    for n in range(36 if "k4nos" not in sys.argv else 0):
        sl, jj = divmod(n, 9)
        k.e("buffer_load_dwordx4 %s, v10, s[%d:%d], s42 offen offset:%d%s" % (vr(SL + n * 4, 4), SP, SP + 3, (jj % 4) * 1024, pol("pl")))
        if jj % 4 == 3:
            k.e("s_add_u32 s42, s42, 4096")
        if jj == 8:
            k.e("s_add_u32 s42, s42, %d" % (SLAB - 8192))
    for jj in range(9):
        k.e("buffer_load_dwordx2 %s, v12, s[%d:%d], s40 offen offset:%d" % (vr(BIAS + 2 * jj, 2), SX, SX + 3, jj * 32))
    k.e("s_waitcnt vmcnt(0)")
    k.e("v_sub_f32 v6, 1.0, v14")
    bf16_round(k, 6, 6, 6)
    BT = 180
    for jj in range(9):
        b = SL + jj * 4
        k.e("v_lshlrev_b32 v%d, 16, v%d" % (BT, BIAS + 2 * jj))
        k.e("v_and_b32 v%d, 0xffff0000, v%d" % (BT + 1, BIAS + 2 * jj))
        k.e("v_lshlrev_b32 v%d, 16, v%d" % (BT + 2, BIAS + 1 + 2 * jj))
        k.e("v_and_b32 v%d, 0xffff0000, v%d" % (BT + 3, BIAS + 1 + 2 * jj))
        for x, y in ((b, b + 36), (b + 72, b + 108), (b, b + 72)):
            for h in (0, 2):
                k.e("v_pk_add_f32 %s, %s, %s" % (vr(x + h, 2), vr(x + h, 2), vr(y + h, 2)))
        rnd2(k, b, b + 1)
        rnd2(k, b + 2, b + 3)
        for h in (0, 2):
            k.e("v_pk_add_f32 %s, %s, %s" % (vr(b + h, 2), vr(b + h, 2), vr(BT + h, 2)))
        rnd2(k, b, b + 1)
        rnd2(k, b + 2, b + 3)
        for r in range(4):
            k.e("v_mul_f32 v%d, v6, v%d" % (b + r, b + r))
        rnd2(k, b, b + 1)
        rnd2(k, b + 2, b + 3)
        k.e("ds_write_b128 v15, %s offset:%d" % (vr(b, 4), jj * 1024))
    k.e("s_waitcnt lgkmcnt(0)")
    k.e("s_barrier")
    k.label("k4_exit")
    k.e("s_endpgm")
    return k, 184, XCH + 36864, 256


def emit(kernels):
    out = []
    hdr = open("cdna_kernels/%s.s.ref" % NAME).read().split("\n")
    for l in hdr:
        if l.startswith("; @launch") or l.startswith("; Override") or l.startswith("; grid="):
            continue
        if l.startswith(";"):
            out.append(l)
    for k, nv, lds, nwg in kernels:
        out.append("; @launch kernel=%s_kernel grid=(%d,1,1) block=(%d,1,1) lds=%d" % (k.name, nwg, k.block, lds))
    out.append('.amdgcn_target "amdgcn-amd-amdhsa--gfx950"')
    out.append(".text")
    for k, nv, lds, nwg in kernels:
        out.append(".globl %s_kernel" % k.name)
        out.append(".p2align 8")
        out.append(".type %s_kernel,@function" % k.name)
        out.append("%s_kernel:" % k.name)
        out += k.L
    out.append('.section .rodata,"a"')
    for k, nv, lds, nwg in kernels:
        out.append(".p2align 6")
        out.append(".amdhsa_kernel %s_kernel" % k.name)
        out.append("  .amdhsa_next_free_vgpr %d" % nv)
        out.append("  .amdhsa_next_free_sgpr 102")
        out.append("  .amdhsa_accum_offset %d" % ((nv + 3) // 4 * 4))
        out.append("  .amdhsa_group_segment_fixed_size 0")
        out.append("  .amdhsa_kernarg_size 96")
        out.append("  .amdhsa_user_sgpr_count 2")
        out.append("  .amdhsa_user_sgpr_kernarg_segment_ptr 1")
        out.append("  .amdhsa_system_sgpr_workgroup_id_x 1")
        out.append(".end_amdhsa_kernel")
    return "\n".join(out) + "\n"


def k123():
    k = K("k2")
    load_args(k)
    prologue_ids(k)
    k.e("s_cmp_ge_u32 s2, 512")
    k.e("s_cbranch_scc1 k2_exit")
    k.e("s_waitcnt lgkmcnt(0)")
    nonce_write(k)
    k.e("s_cmp_ge_u32 s2, 256")
    k.e("s_cbranch_scc1 k2_g0")
    k.e("s_mov_b32 s3, s2")
    k.e("s_cmp_lt_u32 s2, 192")
    k.e("s_cbranch_scc1 k2_q")
    k.e("s_sub_u32 s3, s2, 192")
    k1_ln(k, True)
    k.label("k2_q")
    if "qp" in sys.argv:
        k.e("s_setprio 3")
    qkv_tile(k)
    k.dump(0)
    if "qp" in sys.argv:
        k.e("s_setprio 0")
    k.label("k2_attn")
    k.vm = []
    k.lg = []
    if "a1" in sys.argv:
        attn(k, 0, 1, "k2_attn2", wait=True)
        k.label("k2_attn2")
        k.e("s_barrier")
        attn(k, 1, 2)
    else:
        attn2(k, 1, wait=True)
    k.label("k2_g0")
    k.e("s_cmp_lg_u32 s%d, 0" % S_W)
    k.e("s_cbranch_scc1 k2_g")
    nonce_get(k)
    k.label("k2_g")
    k.vm = []
    k.lg = []
    k.nstamp = 1
    k.priok = None
    k2_gemm1(k, 2)
    k3_gemm2(k, True)
    k.label("k2_exit")
    k.e("s_endpgm")
    return k, 256 if "t8" in sys.argv else 252, 73728, 512


def klist():
    if "old" in sys.argv:
        return [k1(), k2(), k3(), k4()]
    if "t4" in sys.argv:
        return [k1(), k23()]
    if "s1" in sys.argv:
        return [k1(), k23(), k4()]
    return [k123(), k4()]


if __name__ == "__main__":
    if "diag" in sys.argv:
        DIAG = True
        open("diag%s.s" % "".join(a.replace("=", "").replace("+", "") for a in sys.argv[1:] if a != "diag"), "w").write(emit(klist()))
        sys.exit(0)
    ks = klist()
    open("cdna_kernels/%s.s" % NAME, "w").write(emit(ks))
    print("written")
```
